```python
import torch

def _softmax(x, axis=-1):
    return torch.softmax(x, dim=axis)

def _gelu(x):
    return torch.nn.functional.gelu(x, approximate='tanh')

def _silu(x):
    return torch.nn.functional.silu(x)

def _sigmoid(x):
    return torch.sigmoid(x)

def _layernorm(x, axis=-1, eps=1e-05):
    m = x.mean(dim=axis, keepdim=True)
    v = x.var(dim=axis, keepdim=True, unbiased=False)
    return (x - m) / torch.sqrt(v + eps)

def _scatter_add(tgt, idx, src, axis=0):
    return tgt.clone().index_add_(axis, idx, src)

def _segment_sum(src, seg, n):
    out = torch.zeros((n,) + src.shape[1:], dtype=src.dtype)
    return out.index_add_(0, seg, src)

def _pad(x, pw):
    flat = tuple((v for pair in reversed(pw) for v in pair))
    return torch.nn.functional.pad(x, flat)
kernel_name = 'adaLN_cond__compressed_kv_cla__dense_activation_relu__decode'

def setup_inputs():

    _w = lambda a: (lambda t: t.to(torch.bfloat16) if t.is_floating_point() else t)(torch.as_tensor(a))

    def _A_setup():
        B, H, Sq, Sk, D, M = (1, 32, 1, 32768, 128, 640)
        Dc = 4 * D
        return {'x': _w((lambda *s: torch.randn(*s, dtype=torch.bfloat16) * 0.05)(B, Sq, M)), 'c_kv': _w((lambda *s: torch.randn(*s, dtype=torch.bfloat16) * 1.6)(B, Sk, Dc)), 'w_q': _w((lambda *s: torch.randn(*s, dtype=torch.bfloat16) * 1.6)(M, H, D) * M ** (-0.5)), 'w_uk': _w((lambda *s: torch.randn(*s, dtype=torch.bfloat16) * 1.6)(Dc, H, D) * Dc ** (-0.5)), 'w_uv': _w((lambda *s: torch.randn(*s, dtype=torch.bfloat16) * 1.6)(Dc, H, D) * Dc ** (-0.5)), 'w_o': _w((lambda *s: torch.randn(*s, dtype=torch.bfloat16) * 1.6)(H, D, M) * (H * D) ** (-0.5))}
    _A_in = _A_setup()

    def _B_setup():
        B, S, D, Dff = (1, 1, 640, 1728)
        return {'x': _w((lambda *s: torch.randn(*s, dtype=torch.bfloat16) * 0.05)(B, S, D)), 'w1': _w((lambda *s: torch.randn(*s, dtype=torch.bfloat16) * 0.05)(D, Dff)), 'w2': _w((lambda *s: torch.randn(*s, dtype=torch.bfloat16) * 0.05)(Dff, D))}
    _B_in = _B_setup()
    return {'A_x': _A_in['x'], 'A_c_kv': _A_in['c_kv'], 'A_w_q': _A_in['w_q'], 'A_w_uk': _A_in['w_uk'], 'A_w_uv': _A_in['w_uv'], 'A_w_o': _A_in['w_o'], 'B_x': _B_in['x'], 'B_w1': _B_in['w1'], 'B_w2': _B_in['w2'], 'c': _w((lambda *s: torch.randn(*s, dtype=torch.bfloat16) * 0.2)(1, 640) * 8.0), 'w_mod': _w((lambda *s: torch.randn(*s, dtype=torch.bfloat16) * 0.2)(640, 6 * 640) * 640 ** (-0.5) * 8.0)}

def reference(A_x, A_c_kv, A_w_q, A_w_uk, A_w_uv, A_w_o, B_x, B_w1, B_w2, c, w_mod):

    def _A_ref(x, c_kv, w_q, w_uk, w_uv, w_o):
        B, Sq, M = (x.shape[0], x.shape[1], x.shape[2])
        Sk = c_kv.shape[1]
        H, D = (w_q.shape[1], w_q.shape[2])
        q = torch.einsum('bqm,mhd->bhqd', x, w_q)
        k = torch.einsum('bkc,chd->bhkd', c_kv, w_uk)
        v = torch.einsum('bkc,chd->bhkd', c_kv, w_uv)
        scores = torch.einsum('bhqd,bhkd->bhqk', q, k) * D ** (-0.5)
        off = Sk - Sq
        qi = torch.arange(Sq)[:, None]
        kj = torch.arange(Sk)[None, :]
        cmask = kj <= qi + off
        scores = torch.where(cmask[None, None], scores, -1000000000.0)
        p = _softmax(scores, axis=-1)
        ctx = torch.einsum('bhqk,bhkd->bhqd', p, v)
        return torch.einsum('bhqd,hdm->bqm', ctx, w_o)

    def _B_ref(x, w1, w2):
        h = torch.einsum('bsd,df->bsf', x, w1)
        zero = torch.zeros_like(h)
        h = torch.maximum(h, zero)
        return torch.einsum('bsf,fd->bsd', h, w2)
    x = A_x
    mod = (_silu(c) @ w_mod).reshape(c.shape[0], 6, 1, -1)
    sa, ca, ga, sb, cb, gb = (mod[:, 0].clone(), mod[:, 1].clone(), mod[:, 2].clone(), mod[:, 3].clone(), mod[:, 4].clone(), mod[:, 5].clone())
    h = _layernorm(x, axis=-1) * (1 + ca) + sa
    x = x + ga * _A_ref(h, A_c_kv, A_w_q, A_w_uk, A_w_uv, A_w_o)
    h = _layernorm(x, axis=-1) * (1 + cb) + sb
    x = x + gb * _B_ref(h, B_w1, B_w2)
    return x
```

```python
import sys
NAME = "adaLN_cond__compressed_kv_cla__dense_activation_relu__decode"
STAMPS = '--stamps' in sys.argv
OUT = [a for a in sys.argv[1:] if not a.startswith('--')]
OUT = OUT[0] if OUT else 'cdna_kernels/%s.s' % NAME

L = []
def e(s=''):
    for ln in s.split('\n'):
        L.append('    ' + ln.strip() if ln.strip() and not ln.strip().endswith(':') else ln.strip())
_lab = [0]
def lab(p='L'):
    _lab[0] += 1
    return '%s_%d' % (p, _lab[0])
def nop(n):
    while n > 0:
        k = min(n, 16); e('s_nop %d' % (k-1)); n -= k

WS_GEN=0; WS_MOD=0x1000; MOD_KH=0x4000; WS_Q=0x10000; WS_QAF=0x20000; WS_QA=0x28000
WS_STATS=0x40000; WS_CTX=0x60000; WS_X1P=0x70000; WS_MLP=0x80000; WS_STAMP=0xC0000; WS_PART=0x100000
WS_SIZE=0x900000
SCR=131072
XX=SCR; RED=SCR+4096
QSCALE = (128**-0.5)*1.4426950408889634
import struct
def f2u(f): return struct.unpack('<I', struct.pack('<f', f))[0]

sID='s3'; sW='s4'; sN='s42'; WS='s[44:47]'; SA='s[48:51]'; SB='s[52:55]'
SEL_LO='s56'; SEL_HI='s57'
vT='v0'; vL='v1'; vN='v2'; vG='v3'
MK=[4,5,6,7]; AB=[8,12]; ACC=16
WR=32; XR=192

nst=[0]
def stamp(k):
    if STAMPS: e('s_memrealtime s[%d:%d]' % (60+2*k, 61+2*k))

def srd(q, plo, size, add=None):
    b = int(q[2:q.index(':')])
    if add is None:
        e('s_mov_b32 s%d, s%d' % (b, plo)); e('s_mov_b32 s%d, s%d' % (b+1, plo+1))
    else:
        e('s_add_u32 s%d, s%d, %s' % (b, plo, add)); e('s_addc_u32 s%d, s%d, 0' % (b+1, plo+1))
    e('s_mov_b32 s%d, %d' % (b+2, size)); e('s_mov_b32 s%d, 0x20000' % (b+3))

def gemv(n, wbase, xbase, acc=ACC, wait=None):
    def ands(i):
        a = AB[i & 1]
        for d in range(4): e('v_and_b32 v%d, v%d, v%d' % (a+d, xbase+i, MK[d]))
    ands(0)
    for i in range(n):
        if i+1 < n: ands(i+1)
        else: nop(2)
        if wait: wait(i)
        a = AB[i & 1]
        c = '0' if i == 0 else 'v[%d:%d]' % (acc, acc+3)
        e('v_mfma_f32_16x16x32_bf16 v[%d:%d], v[%d:%d], v[%d:%d], %s' % (acc, acc+3, a, a+3, wbase+4*i, wbase+4*i+3, c))
    nop(8)

def wave_reduce(v, op='add', tmp=None):
    ins = 'v_add_f32_dpp' if op == 'add' else 'v_max_f32_dpp'
    for sh in (1,2,4,8):
        nop(2)
        if op == 'add': e('%s v%d, v%d, v%d row_shr:%d row_mask:0xf bank_mask:0xf bound_ctrl:0' % (ins, v, v, v, sh))
        else: e('%s v%d, v%d, v%d row_shr:%d row_mask:0xf bank_mask:0xf' % (ins, v, v, v, sh))
    nop(2); e('%s v%d, v%d, v%d row_bcast:15 row_mask:0xa bank_mask:0xf' % (ins, v, v, v))
    nop(2); e('%s v%d, v%d, v%d row_bcast:31 row_mask:0xc bank_mask:0xf' % (ins, v, v, v))
    nop(1)

def poll(loads, tags, sleep=1, pre=None):
    l0 = lab('P'); l1 = lab('PD')
    e(l0 + ':')
    for s in loads: e(s)
    e('s_waitcnt vmcnt(0)')
    e('v_xor_b32 v30, %s, v%d' % (sN, tags[0]))
    for t in tags[1:]:
        e('v_xor_b32 v31, %s, v%d' % (sN, t)); e('v_or_b32 v30, v30, v31')
    e('v_cmp_ne_u32 vcc, 0, v30')
    e('s_cbranch_vccz %s' % l1)
    e('s_sub_u32 s59, s59, 1')
    e('s_cbranch_scc1 L_END')
    e('s_sleep %d' % sleep)
    e('s_branch %s' % l0)
    e(l1 + ':')

def exec_lt(n, lbl):
    e('v_cmp_gt_u32 vcc, %d, %s' % (n, vT)); e('s_and_saveexec_b64 s[14:15], vcc'); e('s_cbranch_execz %s' % lbl)
def exec_restore(lbl):
    e(lbl + ':'); e('s_mov_b64 exec, s[14:15]')

def unpack(lo, hi, src):
    e('v_lshlrev_b32 v%d, 16, v%d' % (lo, src)); e('v_and_b32 v%d, 0xffff0000, v%d' % (hi, src))

def barrier(lds=True):
    if lds: e('s_waitcnt lgkmcnt(0)')
    e('s_barrier')

def hash_nonce():
    e('s_waitcnt lgkmcnt(0)')
    e('s_mul_i32 s8, %s, 0x9e3779b1' % sN); e('s_add_u32 %s, s8, 0x7f4a7c15' % sN)

L[-1] = L[-1].strip()
L.append('; @launch grid=(256,1,1) block=(256,1,1) lds=163840')
L.append('.amdgcn_target "amdgcn-amd-amdhsa--gfx950"')
L.append('.text')
L.append('.globl %s_kernel' % NAME)
L.append('.p2align 8')
L.append('.type %s_kernel,@function' % NAME)
L.append('%s_kernel:' % NAME)
e('s_cmp_ge_u32 s2, 256')
e('s_cbranch_scc1 L_END')
stamp(0)
e('s_mov_b32 s3, s2')
e('s_load_dwordx16 s[16:31], s[0:1], 0')
e('s_load_dwordx8 s[32:39], s[0:1], 64')
e('s_load_dwordx2 s[40:41], s[0:1], 104')
e('v_and_b32 v1, 63, v0')
e('v_and_b32 v2, 15, v0')
e('v_bfe_u32 v3, v0, 4, 2')
e('v_lshrrev_b32 v20, 6, v0')
e('s_mov_b32 s56, 0x01000100')
e('s_mov_b32 s57, 0x03020302')
e('s_mov_b32 s59, 0x8000')
e('v_readfirstlane_b32 s4, v20')
e('v_and_b32 v20, 1, v0')
e('v_lshlrev_b32 v20, 4, v20')
e('v_mov_b32 v21, 0xffff')
e('v_lshlrev_b32 v21, v20, v21')
e('v_bfe_u32 v22, v0, 1, 2')
for d in range(4):
    e('v_cmp_eq_u32 vcc, %d, v22' % d); nop(2); e('v_cndmask_b32 v%d, 0, v21, vcc' % MK[d])
e('s_waitcnt lgkmcnt(0)')
e('s_load_dword s42, s[40:41], 0')
srd(WS, 40, WS_SIZE)
e('s_cmp_lt_u32 s3, 128')
e('s_cbranch_scc1 L_GROUPE')

e('s_cmp_ge_u32 s3, 248')
e('s_cbranch_scc1 L_NOS0')
e('s_sub_u32 s5, s3, 128')
e('s_lshr_b32 s6, s5, 1')
e('s_and_b32 s7, s5, 1')
srd(SA, 36, 640*7680)
e('v_lshrrev_b32 v20, 3, v2'); e('v_lshl_add_u32 v20, v20, 2, v3')
e('v_mul_u32_u24 v20, 10, v20')
e('s_mul_i32 s8, s4, 80'); e('v_add_u32 v24, s8, v20')
e('s_mul_i32 s9, s7, 320'); e('v_add_u32 v20, s9, v24')
e('s_movk_i32 s10, 7680'); e('v_mul_lo_u32 v20, v20, s10')
e('v_and_b32 v21, 7, v2'); e('v_lshlrev_b32 v21, 4, v21')
e('s_lshl_b32 s11, s6, 7'); e('v_add3_u32 v20, v20, v21, s11')
srd(SB, 34, 1280)
e('v_lshlrev_b32 v21, 2, v0'); e('s_mul_i32 s12, s7, 640');
e('buffer_load_dword v25, v21, %s, s12 offen' % SB)
for i in range(10):
    e('s_mov_b32 s12, %d' % (i*7680)); e('buffer_load_dwordx4 v[%d:%d], v20, %s, s12 offen nt' % (WR+4*i, WR+4*i+3, SA))
e('s_waitcnt vmcnt(10)')
unpack(26, 27, 25)
for r in (26, 27):
    e('v_mul_f32 v28, 0xbfb8aa3b, v%d' % r); e('v_exp_f32 v28, v28'); nop(1)
    e('v_add_f32 v28, 1.0, v28'); e('v_rcp_f32 v28, v28'); nop(1); e('v_mul_f32 v%d, v%d, v28' % (r, r))
e('v_cvt_pk_bf16_f32 v26, v26, v27')
e('v_perm_b32 v28, v26, v26, %s' % SEL_LO); e('v_perm_b32 v29, v26, v26, %s' % SEL_HI)
e('v_lshlrev_b32 v21, 3, v0'); e('v_add_u32 v21, %d, v21' % XX)
l = lab(); exec_lt(160, l); e('ds_write_b64 v21, v[28:29]'); exec_restore(l)
barrier()
hash_nonce()

def gemv_w8_tail(nx, pub):
    e('v_lshlrev_b32 v21, 2, v24'); e('v_add_u32 v21, %d, v21' % XX)
    for i in range(0, nx, 2): e('ds_read_b64 v[%d:%d], v21 offset:%d' % (XR+i, XR+i+1, 4*i))
    e('s_waitcnt vmcnt(0) lgkmcnt(0)')
    gemv(nx, WR, XR)
    e('v_lshrrev_b32 v20, 3, v2'); e('v_lshrrev_b32 v21, 1, v3'); e('v_cmp_eq_u32 vcc, v20, v21')
    e('s_lshl_b32 s8, s4, 1'); e('v_add_u32 v20, s8, v20'); e('v_lshlrev_b32 v20, 8, v20')
    e('v_and_b32 v21, 7, v2'); e('v_lshlrev_b32 v21, 5, v21'); e('v_and_b32 v22, 1, v3'); e('v_lshlrev_b32 v22, 4, v22')
    e('v_add3_u32 v20, v20, v21, v22'); e('v_add_u32 v20, %d, v20' % RED)
    e('s_and_saveexec_b64 s[14:15], vcc')
    e('ds_write_b128 v20, v[%d:%d]' % (ACC, ACC+3))
    e('s_mov_b64 exec, s[14:15]')
    barrier()

gemv_w8_tail(10, None)
l = lab(); exec_lt(32, l)
e('v_lshlrev_b32 v20, 3, v0'); e('v_add_u32 v20, %d, v20' % RED)
for s in range(8): e('ds_read_b64 v[%d:%d], v20 offset:%d' % (XR+2*s, XR+2*s+1, 256*s))
e('s_waitcnt lgkmcnt(0)')
for s in range(1, 8):
    e('v_add_f32 v%d, v%d, v%d' % (XR, XR, XR+2*s)); e('v_add_f32 v%d, v%d, v%d' % (XR+1, XR+1, XR+2*s+1))
e('v_cvt_pk_bf16_f32 v22, v%d, v%d' % (XR, XR+1)); e('v_mov_b32 v23, %s' % sN)
e('s_lshl_b32 s8, s7, 14'); e('s_lshl_b32 s9, s6, 8'); e('s_add_u32 s8, s8, s9'); e('s_add_u32 s8, s8, %d' % WS_MOD)
e('v_lshlrev_b32 v20, 3, v0')
e('buffer_store_dwordx2 v[22:23], v20, %s, s8 offen sc1' % WS)
exec_restore(l)
stamp(1)
e('s_branch L_ATT')

e('L_GROUPE:')
e('s_lshr_b32 s5, s3, 2')
e('s_bfe_u32 s6, s3, 0x10001')
e('s_and_b32 s7, s3, 1')
srd(SA, 20, 640*8192)
e('v_lshrrev_b32 v20, 3, v2'); e('v_lshl_add_u32 v20, v20, 2, v3'); e('v_mul_u32_u24 v20, 10, v20')
e('s_mul_i32 s8, s4, 80'); e('v_add_u32 v24, s8, v20')
e('s_mul_i32 s9, s7, 320'); e('v_add_u32 v20, s9, v24'); e('v_lshlrev_b32 v20, 13, v20')
e('v_and_b32 v21, 7, v2'); e('v_lshlrev_b32 v21, 4, v21')
e('s_lshl_b32 s10, s5, 8'); e('s_lshl_b32 s11, s6, 7'); e('s_add_u32 s10, s10, s11'); e('v_add3_u32 v20, v20, v21, s10')
srd(SB, 16, 1280)
e('v_mul_u32_u24 v21, 20, v1')
e('buffer_load_dwordx4 v[104:107], v21, %s, 0 offen' % SB); e('buffer_load_dword v108, v21, %s, 0 offen offset:16' % SB)
e('v_lshlrev_b32 v21, 2, v0'); e('s_mul_i32 s12, s7, 640'); e('buffer_load_dword v109, v21, %s, s12 offen' % SB)
for i in range(10):
    e('s_mov_b32 s12, %d' % (i*8192)); e('buffer_load_dwordx4 v[%d:%d], v20, %s, s12 offen nt' % (WR+4*i, WR+4*i+3, SA))
srd(SB, 22, 512*8192)
e('s_and_b32 s8, s3, 3'); e('s_lshl_b32 s8, s8, 7'); e('s_lshl_b32 s9, s4, 5'); e('s_add_u32 s8, s8, s9')
e('v_add_u32 v20, s8, v2'); e('v_lshlrev_b32 v20, 13, v20'); e('v_lshlrev_b32 v21, 4, v3')
e('s_lshl_b32 s10, s5, 8'); e('v_add3_u32 v20, v20, v21, s10')
for tt in range(2):
    e('s_mov_b32 s12, %d' % (tt*16*8192))
    for ks in range(4):
        r = 72 + 16*tt + 4*ks
        e('buffer_load_dwordx4 v[%d:%d], v20, %s, s12 offen offset:%d nt' % (r, r+3, SB, ks*64))
e('s_waitcnt vmcnt(18)')
for k in range(5): unpack(110+2*k, 111+2*k, 104+k)
e('v_add_f32 v20, v110, v111')
for k in range(2, 10): e('v_add_f32 v20, v20, v%d' % (110+k))
wave_reduce(20); e('v_readlane_b32 s8, v20, 63'); nop(2)
e('v_mov_b32 v21, s8'); e('v_mul_f32 v21, %s, v21' % hex(f2u(1/640.)))
e('v_mov_b32 v20, 0')
for k in range(10):
    e('v_sub_f32 v22, v%d, v21' % (110+k)); e('v_fmac_f32 v20, v22, v22')
wave_reduce(20); e('v_readlane_b32 s8, v20, 63'); nop(2)
e('v_mov_b32 v22, s8'); e('v_mul_f32 v22, %s, v22' % hex(f2u(1/640.))); e('v_add_f32 v22, %s, v22' % hex(f2u(1e-5)))
e('v_rsq_f32 v22, v22'); nop(1)
unpack(110, 111, 109)
for r in (110, 111):
    e('v_sub_f32 v%d, v%d, v21' % (r, r)); e('v_mul_f32 v%d, v%d, v22' % (r, r))
hash_nonce()
l = lab(); exec_lt(160, l)
e('v_lshlrev_b32 v20, 3, v0'); e('s_mul_i32 s8, s7, 1280'); e('s_add_u32 s8, s8, %d' % WS_MOD)
e('s_add_u32 s9, s8, 2560'); e('s_add_u32 s10, s8, %d' % MOD_KH); e('s_add_u32 s11, s9, %d' % MOD_KH)
poll(['buffer_load_dwordx2 v[112:113], v20, %s, s8 offen sc1' % WS, 'buffer_load_dwordx2 v[114:115], v20, %s, s10 offen sc1' % WS,
      'buffer_load_dwordx2 v[116:117], v20, %s, s9 offen sc1' % WS, 'buffer_load_dwordx2 v[118:119], v20, %s, s11 offen sc1' % WS],
     [113, 115, 117, 119])
unpack(120, 121, 112); unpack(122, 123, 114); unpack(124, 125, 116); unpack(126, 127, 118)
e('v_add_f32 v120, v120, v122'); e('v_add_f32 v121, v121, v123')
e('v_add_f32 v124, v124, v126'); e('v_add_f32 v125, v125, v127')
e('v_add_f32 v124, 1.0, v124'); e('v_add_f32 v125, 1.0, v125')
e('v_fma_f32 v120, v110, v124, v120'); e('v_fma_f32 v121, v111, v125, v121')
e('v_cvt_pk_bf16_f32 v26, v120, v121')
e('v_perm_b32 v28, v26, v26, %s' % SEL_LO); e('v_perm_b32 v29, v26, v26, %s' % SEL_HI)
e('v_add_u32 v21, %d, v20' % XX); e('ds_write_b64 v21, v[28:29]')
exec_restore(l)
stamp(1)
barrier()
gemv_w8_tail(10, None)
l = lab(); exec_lt(64, l)
e('v_lshlrev_b32 v20, 2, v0'); e('v_add_u32 v20, %d, v20' % RED)
for s in range(8): e('ds_read_b32 v%d, v20 offset:%d' % (XR+s, 256*s))
e('s_waitcnt lgkmcnt(0)')
for s in range(1, 8): e('v_add_f32 v%d, v%d, v%d' % (XR, XR, XR+s))
e('v_mov_b32 v22, v%d' % XR); e('v_mov_b32 v23, %s' % sN)
e('s_lshl_b32 s8, s5, 11'); e('s_lshl_b32 s9, s7, 10'); e('s_add_u32 s8, s8, s9'); e('s_lshl_b32 s9, s6, 9'); e('s_add_u32 s8, s8, s9'); e('s_add_u32 s8, s8, %d' % WS_Q)
e('v_lshlrev_b32 v20, 3, v0')
e('buffer_store_dwordx2 v[22:23], v20, %s, s8 offen sc1' % WS)
exec_restore(l)
l = lab(); exec_lt(128, l)
e('v_lshlrev_b32 v20, 3, v0'); e('s_lshl_b32 s8, s5, 11'); e('s_add_u32 s8, s8, %d' % WS_Q); e('s_add_u32 s9, s8, 1024')
poll(['buffer_load_dwordx2 v[112:113], v20, %s, s8 offen sc1' % WS, 'buffer_load_dwordx2 v[114:115], v20, %s, s9 offen sc1' % WS], [113, 115])
e('v_add_f32 v112, v112, v114'); e('v_cvt_pk_bf16_f32 v112, v112, v112')
e('v_lshlrev_b32 v21, 1, v0'); e('v_add_u32 v21, %d, v21' % XX); e('ds_write_b16 v21, v112')
exec_restore(l)
stamp(2)
barrier()
e('v_lshlrev_b32 v21, 4, v3'); e('v_add_u32 v21, %d, v21' % XX)
for ks in range(4): e('ds_read_b128 v[%d:%d], v21 offset:%d' % (XR+4*ks, XR+4*ks+3, 64*ks))
e('s_waitcnt lgkmcnt(0)')
for ks in range(4):
    for tt in range(2):
        r = 72 + 16*tt + 4*ks; a = 16 + 4*tt
        e('v_mfma_f32_16x16x32_bf16 v[%d:%d], v[%d:%d], v[%d:%d], %s' % (a, a+3, r, r+3, XR+4*ks, XR+4*ks+3, '0' if ks == 0 else 'v[%d:%d]' % (a, a+3)))
nop(8)
e('v_cmp_eq_u32 vcc, 1, v2'); nop(2)
for r in range(4): e('v_cndmask_b32 v%d, v%d, v%d, vcc' % (16+r, 16+r, 20+r))
e('s_mov_b32 s8, %s' % hex(f2u(QSCALE)))
for r in range(4): e('v_mul_f32 v%d, s8, v%d' % (16+r, 16+r))
e('v_cvt_pk_bf16_f32 v22, v16, v17'); e('v_cvt_pk_bf16_f32 v23, v18, v19')
e('s_and_b32 s8, s3, 3'); e('s_lshl_b32 s8, s8, 3'); e('s_lshl_b32 s9, s4, 1'); e('s_add_u32 s8, s8, s9'); e('s_lshl_b32 s8, s8, 10')
e('s_lshl_b32 s9, s5, 4'); e('s_add_u32 s8, s8, s9'); e('s_add_u32 s8, s8, %d' % WS_QA)
e('v_lshlrev_b32 v20, 10, v2'); e('v_lshrrev_b32 v21, 1, v3'); e('v_lshlrev_b32 v21, 9, v21'); e('v_and_b32 v24, 1, v3'); e('v_lshlrev_b32 v24, 3, v24')
e('v_add3_u32 v20, v20, v21, v24')
e('v_cmp_gt_u32 vcc, 2, v2'); e('s_and_saveexec_b64 s[14:15], vcc')
e('buffer_store_dwordx2 v[22:23], v20, %s, s8 offen sc1' % WS)
e('s_mov_b64 exec, s[14:15]')
e('s_waitcnt vmcnt(0)'); e('s_barrier')
l = lab(); exec_lt(8, l)
e('v_lshlrev_b32 v20, 11, v0'); e('s_lshl_b32 s8, s3, 4'); e('s_add_u32 s8, s8, %d' % WS_QAF); e('v_mov_b32 v22, %s' % sN)
e('buffer_store_dword v22, v20, %s, s8 offen sc1' % WS)
exec_restore(l)
stamp(3)
e('s_branch L_ATT2')

e('L_NOS0:')
hash_nonce()
e('L_ATT:')
e('L_ATT2:')
e('s_lshl_b32 s8, s3, 17')
srd(SB, 18, 131072, add='s8')
e('v_lshlrev_b32 v21, 4, v1')
e('s_lshl_b32 s10, s4, 15')
def swz(k): return ((k & 3) << 2) | ((k >> 2) & 3)
for r in range(32):
    e('s_mov_b32 m0, s10')
    e('v_xor_b32 v20, %d, v21' % (swz(r) << 4))
    e('buffer_load_dwordx4 v20, %s, s10 offen nt lds' % SB)
    e('s_add_u32 s10, s10, 1024')
stamp(4)
QA_ADDR=224; S_ACC=208; QB=232
e('v_and_b32 v20, 31, v1'); e('v_lshrrev_b32 v22, 5, v1')
e('v_and_b32 v23, 3, v20'); e('v_lshlrev_b32 v23, 2, v23'); e('v_bfe_u32 v24, v20, 2, 2'); e('v_or_b32 v23, v23, v24')
e('v_xor_b32 v23, v23, v22'); e('v_lshlrev_b32 v23, 4, v23')
e('s_lshl_b32 s8, s4, 15'); e('v_lshlrev_b32 v24, 10, v20'); e('v_add3_u32 v23, v23, v24, s8')
for jj in range(8): e('v_xor_b32 v%d, %d, v23' % (QA_ADDR+jj, jj << 5))
e('v_lshlrev_b32 v%d, 4, v1' % QB); e('v_add_u32 v%d, %d, v%d' % (QB, SCR, QB))
e('s_cmp_lg_u32 s4, 0'); e('s_cbranch_scc1 L_E3D')
e('s_and_b32 s8, s3, 7'); e('s_lshl_b32 s8, s8, 11'); e('s_add_u32 s8, s8, %d' % WS_QAF)
poll(['buffer_load_dword v26, v21, %s, s8 offen sc1' % WS, 'buffer_load_dword v27, v21, %s, s8 offen offset:1024 sc1' % WS], [26, 27], sleep=2)
e('L_E3D:')
e('s_barrier')
stamp(5)
e('s_lshl_b32 s8, s4, 13'); e('s_add_u32 s8, s8, %d' % WS_QA)
for i in range(8):
    if i == 4: e('s_add_u32 s8, s8, 4096')
    e('buffer_load_dwordx4 a[%d:%d], v21, %s, s8 offen offset:%d sc1' % (192+4*i, 195+4*i, WS, (i & 3)*1024))
e('s_cmp_lt_u32 s3, 128'); e('s_cbranch_scc1 L_NOUV')
srd(SA, 24, 512*8192)
e('s_and_b32 s8, s3, 3'); e('s_lshl_b32 s8, s8, 7'); e('s_lshl_b32 s9, s4, 5'); e('s_add_u32 s8, s8, s9')
e('v_lshrrev_b32 v20, 1, v3'); e('v_lshlrev_b32 v20, 4, v20'); e('v_and_b32 v22, 1, v3'); e('v_lshlrev_b32 v22, 2, v22'); e('v_add3_u32 v20, v20, v22, s8')
e('v_lshlrev_b32 v20, 13, v20'); e('v_lshlrev_b32 v22, 4, v2')
e('s_sub_u32 s9, s3, 128'); e('s_lshr_b32 s9, s9, 2'); e('s_lshl_b32 s9, s9, 8'); e('v_add3_u32 v20, v20, v22, s9')
for i in range(8):
    e('s_mov_b32 s12, %d' % ((8*(i >> 2) + (i & 3))*8192)); e('buffer_load_dwordx4 v[%d:%d], v20, %s, s12 offen nt' % (WR+4*i, WR+4*i+3, SA))
e('s_waitcnt vmcnt(8)'); e('s_branch L_UVD')
e('L_NOUV:'); e('s_waitcnt vmcnt(0)')
e('L_UVD:')
e('s_lshl_b32 s8, s4, 13'); e('v_add_u32 v20, s8, v%d' % QB)
for i in range(8): e('ds_write_b128 v20, a[%d:%d] offset:%d' % (192+4*i, 195+4*i, i*1024))
barrier()
stamp(6)
D = 4; R = 8
def qk_read(j):
    e('ds_read_b128 a[%d:%d], v%d offset:%d' % (128+4*(j % R), 131+4*(j % R), QA_ADDR+(j & 7), (j >> 3)*256))
    e('ds_read_b128 a[%d:%d], v%d offset:%d' % (160+4*(j % R), 163+4*(j % R), QB, j*1024))
for j in range(D): qk_read(j)
for j in range(32):
    if j+D < 32: qk_read(j+D)
    out = min(D, 31-j)
    e('s_waitcnt lgkmcnt(%d)' % (2*out))
    e('v_mfma_f32_32x32x16_bf16 v[%d:%d], a[%d:%d], a[%d:%d], %s' % (S_ACC, S_ACC+15, 128+4*(j % R), 131+4*(j % R), 160+4*(j % R), 163+4*(j % R), '0' if j == 0 else 'v[%d:%d]' % (S_ACC, S_ACC+15)))
PV1=224; PV2=228
e('v_bfe_u32 v20, v1, 2, 2')
e('v_lshrrev_b32 v22, 5, v1')
e('v_bfe_u32 v23, v1, 4, 1')
e('v_bfe_u32 v24, v1, 1, 1')
e('v_lshl_or_b32 v23, v23, 1, v24')
e('v_xor_b32 v23, v23, v22')
e('v_lshl_or_b32 v23, v20, 2, v23')
e('v_lshlrev_b32 v23, 4, v23')
e('v_and_b32 v24, 1, v1'); e('v_lshlrev_b32 v24, 3, v24')
e('v_lshlrev_b32 v25, 2, v22'); e('v_add_u32 v25, v25, v20'); e('v_lshlrev_b32 v25, 10, v25')
e('s_lshl_b32 s8, s4, 8'); e('v_add3_u32 v23, v23, v24, v25'); e('v_add_u32 v23, s8, v23')
for t in range(4):
    e('v_xor_b32 v%d, %d, v23' % (PV1+t, t << 6))
    e('v_xor_b32 v%d, %d, v23' % (PV2+t, (t << 6) ^ (2 << 4))); e('v_add_u32 v%d, 8192, v%d' % (PV2+t, PV2+t))
s0 = S_ACC
e('v_max3_f32 v26, v%d, v%d, v%d' % (s0, s0+1, s0+2))
for k in range(3, 15, 2): e('v_max3_f32 v26, v26, v%d, v%d' % (s0+k, s0+k+1))
e('v_max_f32 v26, v26, v%d' % (s0+15))
e('v_mov_b32 v27, v26'); nop(2); e('v_permlane32_swap_b32 v26, v27'); nop(1); e('v_max_f32 v26, v26, v27')
e('s_barrier')
MX = SCR + 8192
e('v_and_b32 v20, 31, v1'); e('v_lshlrev_b32 v20, 2, v20'); e('v_add_u32 v20, %d, v20' % MX)
e('s_lshl_b32 s8, s4, 7'); e('v_add_u32 v22, s8, v20')
e('ds_write_b32 v22, v26')
barrier()
for w in range(4): e('ds_read_b32 v%d, v20 offset:%d' % (28+w, 128*w))
e('s_waitcnt lgkmcnt(0)')
e('v_max3_f32 v26, v28, v29, v30'); e('v_max_f32 v26, v26, v31')
for k in range(16): e('v_sub_f32 v%d, v%d, v26' % (s0+k, s0+k))
for k in range(16): e('v_exp_f32 v%d, v%d' % (s0+k, s0+k))
e('v_add_f32 v27, v%d, v%d' % (s0, s0+1))
for k in range(2, 16): e('v_add_f32 v27, v27, v%d' % (s0+k))
for k in range(8): e('v_cvt_pk_bf16_f32 v%d, v%d, v%d' % (s0+k, s0+2*k, s0+2*k+1))
e('s_lshl_b32 s8, s4, 11'); e('v_add_u32 v23, s8, v%d' % QB)
e('ds_write_b128 v23, v[%d:%d]' % (s0, s0+3)); e('ds_write_b128 v23, v[%d:%d] offset:1024' % (s0+4, s0+7))
e('v_mov_b32 v28, v27'); nop(2); e('v_permlane32_swap_b32 v27, v28'); nop(1); e('v_add_f32 v27, v27, v28')
e('ds_write_b32 v22, v27 offset:512')
barrier()
stamp(7)
for ks in range(8): e('ds_read_b128 a[%d:%d], v%d offset:%d' % (96+4*ks, 99+4*ks, QB, ks*1024))
for w in range(4): e('ds_read_b32 v%d, v20 offset:%d' % (28+w, 512+128*w))
e('s_waitcnt lgkmcnt(0)')
e('v_add_f32 v27, v28, v29'); e('v_add_f32 v27, v27, v30'); e('v_add_f32 v27, v27, v31')
steps = [(ks, t) for ks in range(8) for t in range(4)]
def pv_read(q):
    ks, t = steps[q]
    if ks == 4 and t == 0:
        for k in range(8): e('v_add_u32 v%d, 0x10000, v%d' % (PV1+k, PV1+k))
    o = (ks & 3)*16384; r = 128 + 4*(q % R)
    e('ds_read_b64_tr_b16 a[%d:%d], v%d offset:%d' % (r, r+1, PV1+t, o))
    e('ds_read_b64_tr_b16 a[%d:%d], v%d offset:%d' % (r+2, r+3, PV2+t, o))
for q in range(D): pv_read(q)
for q in range(32):
    if q+D < 32: pv_read(q+D)
    out = min(D, 31-q)
    e('s_waitcnt lgkmcnt(%d)' % (2*out))
    ks, t = steps[q]; r = 128 + 4*(q % R)
    e('v_mfma_f32_32x32x16_bf16 a[%d:%d], a[%d:%d], a[%d:%d], %s' % (16*t, 16*t+15, r, r+3, 96+4*ks, 99+4*ks, '0' if ks == 0 else 'a[%d:%d]' % (16*t, 16*t+15)))
e('v_and_b32 v20, 31, v1'); e('v_lshrrev_b32 v22, 5, v1'); e('v_and_b32 v23, 15, v20'); e('v_xor_b32 v23, v23, v22'); e('v_lshlrev_b32 v23, 4, v23')
e('v_lshlrev_b32 v24, 10, v20'); e('s_lshl_b32 s8, s4, 8'); e('v_add3_u32 v23, v23, v24, s8')
e('s_barrier')
nop(8)
for s in range(8):
    b = 208 + 8*(s & 1)
    for k in range(8): e('v_accvgpr_read_b32 v%d, a%d' % (b+k, 8*s+k))
    for k in range(4): e('v_cvt_pk_bf16_f32 v%d, v%d, v%d' % (b+k, b+2*k, b+2*k+1))
    e('v_xor_b32 v24, %d, v23' % (s << 5))
    e('ds_write_b128 v24, v[%d:%d]' % (b, b+3))
barrier()
stamp(8)
e('v_lshlrev_b32 v21, 4, v1')
e('s_lshl_b32 s8, s4, 13'); e('v_add_u32 v20, s8, v21')
for i in range(8): e('ds_read_b128 v[%d:%d], v20 offset:%d' % (208+4*i, 211+4*i, i*1024))
e('v_lshlrev_b32 v22, 16, v3'); e('v_lshlrev_b32 v23, 4, v2')
e('s_lshl_b32 s9, s3, 8'); e('s_add_u32 s9, s9, %d' % WS_PART); e('s_lshl_b32 s10, s4, 21'); e('s_add_u32 s9, s9, s10')
e('s_bfe_u32 s11, s4, 0x10000'); e('s_lshl_b32 s11, s11, 7')
e('v_xor_b32 v23, s11, v23')
for i in range(8):
    e('v_xor_b32 v24, %d, v23' % (i << 4)); e('v_add_u32 v24, v24, v22')
    e('s_waitcnt lgkmcnt(%d)' % (7-i))
    e('buffer_store_dwordx4 v[%d:%d], v24, %s, s9 offen sc1' % (208+4*i, 211+4*i, WS))
    e('s_add_u32 s9, s9, 0x40000')
e('s_waitcnt vmcnt(0)'); e('s_barrier')
l = lab(); exec_lt(32, l)
e('v_mov_b32 v208, v26'); e('v_mov_b32 v209, %s' % sN); e('v_mov_b32 v210, v27'); e('v_mov_b32 v211, %s' % sN)
e('v_lshlrev_b32 v20, 12, v0'); e('s_lshl_b32 s8, s3, 4'); e('s_add_u32 s8, s8, %d' % WS_STATS)
e('buffer_store_dwordx4 v[208:211], v20, %s, s8 offen sc1' % WS)
exec_restore(l)
stamp(9)
e('s_cmp_lt_u32 s3, 128'); e('s_cbranch_scc1 L_LATE_E')

e('s_sub_u32 s5, s3, 128'); e('s_lshr_b32 s5, s5, 2')
e('s_and_b32 s6, s3, 3')
e('v_lshlrev_b32 v21, 4, v1')
e('s_lshl_b32 s8, s5, 12'); e('s_add_u32 s8, s8, %d' % WS_STATS)
poll(['buffer_load_dwordx4 v[%d:%d], v21, %s, s8 offen offset:%d sc1' % (208+4*k, 211+4*k, WS, 1024*k) for k in range(4)],
     [209+2*k for k in range(8)], sleep=1)
stamp(10)
e('s_lshl_b32 s8, s5, 2'); e('s_add_u32 s8, s8, s6'); e('s_lshl_b32 s8, s8, 16'); e('s_add_u32 s8, s8, %d' % WS_PART)
e('s_lshl_b32 s9, s4, 14'); e('s_add_u32 s8, s8, s9')
e('v_lshlrev_b32 v20, 12, v3'); e('v_lshl_add_u32 v20, v2, 4, v20')
for i in range(16):
    e('buffer_load_dwordx4 v[%d:%d], v20, %s, s8 offen offset:%d sc1' % (64+4*i, 67+4*i, WS, 256*i))
e('v_max3_f32 v22, v208, v212, v216'); e('v_max_f32 v22, v22, v220')
wave_reduce(22, 'max'); e('v_readlane_b32 s9, v22, 63'); nop(2)
for k in range(4):
    e('v_subrev_f32 v%d, s9, v%d' % (208+4*k, 208+4*k)); e('v_exp_f32 v%d, v%d' % (208+4*k, 208+4*k))
nop(1)
e('v_mul_f32 v22, v208, v210')
for k in range(1, 4): e('v_fmac_f32 v22, v%d, v%d' % (208+4*k, 210+4*k))
wave_reduce(22); e('v_readlane_b32 s10, v22, 63')
e('v_mov_b32 v23, v208')
for k in range(1, 4):
    e('s_cmp_eq_u32 s4, %d' % k); e('s_cselect_b64 vcc, -1, 0'); e('v_cndmask_b32 v23, v23, v%d, vcc' % (208+4*k))
e('v_cvt_pk_bf16_f32 v24, v23, v23')
e('v_and_b32 v25, 0xffff0000, v24'); e('v_sub_f32 v25, v23, v25'); e('v_cvt_pk_bf16_f32 v25, v25, v25')
e('v_lshlrev_b32 v26, 2, v0'); e('v_add_u32 v26, %d, v26' % XX)
e('ds_write_b32 v26, v24'); e('ds_write_b32 v26, v25 offset:1024')
e('v_lshrrev_b32 v26, 3, v2'); e('v_lshlrev_b32 v26, 10, v26'); e('v_lshl_add_u32 v26, v3, 6, v26'); e('s_lshl_b32 s9, s4, 8'); e('s_add_u32 s9, s9, %d' % XX); e('v_add_u32 v26, s9, v26')
e('s_waitcnt lgkmcnt(0)')
for k in range(4): e('ds_read_b128 v[%d:%d], v26 offset:%d' % (XR+4*k, XR+4*k+3, 16*k))
e('s_waitcnt lgkmcnt(0)')
gemv(16, 64, XR, wait=lambda i: e('s_waitcnt vmcnt(%d)' % (15-i)))
stamp(11)
e('v_lshrrev_b32 v20, 1, v3'); e('s_lshl_b32 s8, s4, 1'); e('v_add_u32 v20, s8, v20'); e('v_lshlrev_b32 v20, 9, v20')
e('v_and_b32 v22, 1, v3'); e('v_lshlrev_b32 v22, 4, v22'); e('v_lshl_add_u32 v22, v2, 5, v22'); e('v_add3_u32 v20, v20, v22, %s' % 's58')
L.insert(len(L)-1, '    s_mov_b32 s58, %d' % RED)
e('ds_write_b128 v20, v[%d:%d]' % (ACC, ACC+3))
barrier()
l = lab(); exec_lt(128, l)
e('v_lshlrev_b32 v20, 2, v0'); e('v_add_u32 v22, %d, v20' % RED)
for s in range(8): e('ds_read_b32 v%d, v22 offset:%d' % (XR+s, 512*s))
e('v_mov_b32 v23, s10'); e('v_rcp_f32 v23, v23')
e('s_waitcnt lgkmcnt(0)')
for s in range(1, 8): e('v_add_f32 v%d, v%d, v%d' % (XR, XR, XR+s))
e('v_mul_f32 v23, v23, v%d' % XR); e('v_cvt_pk_bf16_f32 v23, v23, v23')
e('v_add_u32 v20, %d, v20' % XX); e('ds_write_b32 v20, v23')
exec_restore(l)
barrier()
e('v_lshlrev_b32 v26, 5, v3'); e('s_lshl_b32 s9, s4, 7'); e('s_add_u32 s9, s9, %d' % XX); e('v_add_u32 v26, s9, v26')
for k in range(2): e('ds_read_b128 v[%d:%d], v26 offset:%d' % (XR+4*k, XR+4*k+3, 16*k))
e('s_waitcnt lgkmcnt(0)')
gemv(8, WR, XR)

def red_w16(nslot_bytes):
    e('v_and_b32 v22, 1, v3'); e('v_lshlrev_b32 v22, 4, v22'); e('v_lshl_add_u32 v22, v2, 5, v22')
    e('s_mul_i32 s8, s4, %d' % nslot_bytes); e('s_add_u32 s8, s8, %d' % RED); e('v_add_u32 v20, s8, v22')
    e('v_cmp_gt_u32 vcc, 2, v3'); e('s_and_saveexec_b64 s[14:15], vcc')
    e('ds_write_b128 v20, v[%d:%d]' % (ACC, ACC+3))
    e('s_mov_b64 exec, s[14:15]')
    barrier()
def pair_sum_publish(sbase):
    l = lab(); exec_lt(64, l)
    e('v_lshlrev_b32 v20, 3, v0'); e('v_add_u32 v22, %d, v20' % RED)
    for s in range(4): e('ds_read_b64 v[%d:%d], v22 offset:%d' % (XR+2*s, XR+2*s+1, 512*s))
    e('s_waitcnt lgkmcnt(0)')
    for s in range(1, 4):
        e('v_add_f32 v%d, v%d, v%d' % (XR, XR, XR+2*s)); e('v_add_f32 v%d, v%d, v%d' % (XR+1, XR+1, XR+2*s+1))
    e('v_cvt_pk_bf16_f32 v22, v%d, v%d' % (XR, XR+1)); e('v_mov_b32 v23, %s' % sN)
    e('buffer_store_dwordx2 v[22:23], v20, %s, %s offen sc1' % (WS, sbase))
    exec_restore(l)
red_w16(512)
e('s_lshl_b32 s9, s5, 2'); e('s_add_u32 s9, s9, s6'); e('s_lshl_b32 s9, s9, 9'); e('s_add_u32 s9, s9, %d' % WS_CTX)
pair_sum_publish('s9')
stamp(12)
e('s_branch L_FIN')

e('L_LATE_E:')
e('s_cmp_ge_u32 s3, 67'); e('s_cbranch_scc1 L_FIN')
e('s_cmp_ge_u32 s3, 40'); e('s_cbranch_scc1 L_MLP')
e('s_mul_i32 s5, s3, 52'); e('s_lshr_b32 s5, s5, 8')
e('s_mul_i32 s6, s5, 5'); e('s_sub_u32 s6, s3, s6')
srd(SA, 26, 4096*1280)
e('s_lshl_b32 s8, s5, 9'); e('s_lshl_b32 s9, s4, 7'); e('s_add_u32 s8, s8, s9'); e('v_lshl_add_u32 v20, v3, 5, s8')
e('s_movk_i32 s10, 1280'); e('v_mul_lo_u32 v20, v20, s10'); e('s_lshl_b32 s9, s6, 8'); e('v_lshlrev_b32 v22, 4, v2'); e('v_add3_u32 v20, v20, v22, s9')
for i in range(32):
    e('s_mov_b32 s12, %d' % ((i // 3)*3*1280)); e('buffer_load_dwordx4 v[%d:%d], v20, %s, s12 offen offset:%d nt' % (WR+4*i, WR+4*i+3, SA, (i % 3)*1280))
e('s_lshl_b32 s8, s5, 2'); e('s_add_u32 s8, s8, s4'); e('s_lshl_b32 s8, s8, 11'); e('s_add_u32 s8, s8, %d' % WS_CTX)
e('v_lshlrev_b32 v21, 3, v1')
poll(['buffer_load_dwordx2 v[%d:%d], v21, %s, s8 offen offset:%d sc1' % (208+2*k, 209+2*k, WS, 512*k) for k in range(4)], [209+2*k for k in range(4)], sleep=1)
stamp(10)
for k in range(4): unpack(216+2*k, 217+2*k, 208+2*k)
for k in range(1, 4): e('v_add_f32 v216, v216, v%d' % (216+2*k)); e('v_add_f32 v217, v217, v%d' % (217+2*k))
e('v_cvt_pk_bf16_f32 v26, v216, v217')
e('v_perm_b32 v28, v26, v26, %s' % SEL_LO); e('v_perm_b32 v29, v26, v26, %s' % SEL_HI)
e('s_lshl_b32 s9, s4, 9'); e('s_add_u32 s9, s9, %d' % XX); e('v_add_u32 v22, s9, v21'); e('ds_write_b64 v22, v[28:29]')
e('v_lshlrev_b32 v26, 7, v3'); e('v_add_u32 v26, s9, v26')
e('s_waitcnt lgkmcnt(0)')
for k in range(8): e('ds_read_b128 v[%d:%d], v26 offset:%d' % (XR+4*k, XR+4*k+3, 16*k))
e('s_waitcnt lgkmcnt(0)')
gemv(32, WR, XR)
red_w16(512)
e('s_lshl_b32 s9, s5, 12'); e('s_lshl_b32 s10, s6, 9'); e('s_add_u32 s9, s9, s10'); e('s_add_u32 s9, s9, %d' % WS_X1P)
pair_sum_publish('s9')
stamp(12)
e('s_branch L_FIN')

e('L_MLP:')
e('s_sub_u32 s5, s3, 40')
srd(SA, 30, 640*3456)
e('v_lshrrev_b32 v20, 3, v2'); e('v_lshl_add_u32 v20, v20, 2, v3'); e('v_mul_u32_u24 v20, 20, v20')
e('s_mul_i32 s8, s4, 160'); e('v_add_u32 v24, s8, v20')
e('s_movk_i32 s10, 3456'); e('v_mul_lo_u32 v20, v24, s10'); e('v_and_b32 v21, 7, v2'); e('v_lshlrev_b32 v21, 4, v21')
e('s_lshl_b32 s9, s5, 7'); e('v_add3_u32 v20, v20, v21, s9')
for i in range(20):
    e('s_mov_b32 s12, %d' % (i*3456)); e('buffer_load_dwordx4 v[%d:%d], v20, %s, s12 offen nt' % (WR+4*i, WR+4*i+3, SA))
srd(SA, 32, 1728*1280)
e('s_lshl_b32 s8, s5, 6'); e('s_lshl_b32 s9, s4, 4'); e('s_add_u32 s8, s8, s9'); e('v_lshl_add_u32 v20, v3, 2, s8')
e('s_movk_i32 s10, 1280'); e('v_mul_lo_u32 v20, v20, s10'); e('v_lshl_add_u32 v20, v2, 4, v20')
for i in range(4):
    e('s_mov_b32 s12, %d' % (i*1280))
    for cg in range(5):
        r = 112 + 4*(5*i + cg)
        e('buffer_load_dwordx4 v[%d:%d], v20, %s, s12 offen offset:%d nt' % (r, r+3, SA, cg*256))
srd(SB, 16, 1280)
lm = lab(); exec_lt(160, lm)
e('v_lshlrev_b32 v21, 3, v0'); e('buffer_load_dwordx2 v[224:225], v21, %s, 0 offen' % SB)
e('v_lshlrev_b32 v21, 4, v0')
lds_ = []
for q in range(4):
    for kh in range(2):
        lds_.append('s_mov_b32 s12, %d' % (WS_MOD + kh*MOD_KH + (2+q)*2560))
        lds_.append('buffer_load_dwordx4 v[%d:%d], v21, %s, s12 offen sc1' % (192+8*q+4*kh, 195+8*q+4*kh, WS))
poll(lds_, [193+2*k for k in range(16)], sleep=4)
for q in range(4):
    b = 192+8*q; d = 240+4*q
    unpack(d, d+1, b); unpack(d+2, d+3, b+2); unpack(226, 227, b+4); unpack(228, 229, b+6)
    for k in range(4): e('v_add_f32 v%d, v%d, v%d' % (d+k, d+k, 226+k))
unpack(236, 237, 224); unpack(238, 239, 225)
for k in range(4): e('v_add_f32 v%d, 1.0, v%d' % (248+k, 248+k))
lds_ = []
for kg in range(8):
    lds_.append('s_mov_b32 s12, %d' % (WS_X1P + kg*4096))
    lds_.append('buffer_load_dwordx4 v[%d:%d], v21, %s, s12 offen sc1' % (192+4*kg, 195+4*kg, WS))
poll(lds_, [193+2*k for k in range(16)], sleep=1)
stamp(10)
e('v_mov_b32 v232, 0'); e('v_mov_b32 v233, 0'); e('v_mov_b32 v234, 0'); e('v_mov_b32 v235, 0')
for kg in range(8):
    b = 192+4*kg
    unpack(226, 227, b); unpack(228, 229, b+2)
    for k in range(4): e('v_add_f32 v%d, v%d, v%d' % (232+k, 232+k, 226+k))
for k in range(4): e('v_fma_f32 v%d, v%d, v%d, v%d' % (232+k, 240+k, 232+k, 236+k))
e('v_add_f32 v22, v232, v233'); e('v_add_f32 v23, v234, v235'); e('v_add_f32 v22, v22, v23')
e('v_mul_f32 v23, v232, v232')
for k in range(1, 4): e('v_fmac_f32 v23, v%d, v%d' % (232+k, 232+k))
X1L = SCR + 16384; GBL = X1L + 4096
e('v_add_u32 v20, %d, v21' % X1L); e('ds_write_b128 v20, v[232:235]'); e('ds_write_b128 v20, v[252:255] offset:4096')
e('s_branch L_MS1')
e(lm + ':')
e('L_MS1:')
e('s_mov_b64 exec, s[14:15]')
e('v_cmp_gt_u32 vcc, 160, v0'); nop(2); e('v_cndmask_b32 v22, 0, v22, vcc'); e('v_cndmask_b32 v23, 0, v23, vcc')
wave_reduce(22); wave_reduce(23)
e('v_readlane_b32 s8, v22, 63'); e('v_readlane_b32 s9, v23, 63'); nop(2)
e('v_mov_b32 v22, s8'); e('v_mov_b32 v23, s9')
ST = SCR + 3072
e('s_lshl_b32 s10, s4, 3'); e('s_add_u32 s10, s10, %d' % ST); e('v_mov_b32 v20, s10'); e('ds_write_b64 v20, v[22:23]')
barrier()
e('v_mov_b32 v20, %d' % ST); e('ds_read_b128 v[24:27], v20'); e('ds_read_b128 v[28:31], v20 offset:16')
e('s_waitcnt lgkmcnt(0)')
e('v_add_f32 v22, v24, v26'); e('v_add_f32 v22, v22, v28'); e('v_add_f32 v22, v22, v30')
e('v_add_f32 v23, v25, v27'); e('v_add_f32 v23, v23, v29'); e('v_add_f32 v23, v23, v31')
e('v_mul_f32 v22, %s, v22' % hex(f2u(1/640.))); e('v_mul_f32 v23, %s, v23' % hex(f2u(1/640.)))
e('v_fma_f32 v23, -v22, v22, v23'); e('v_max_f32 v23, 0, v23'); e('v_add_f32 v23, %s, v23' % hex(f2u(1e-5))); e('v_rsq_f32 v23, v23'); nop(1)
lm = lab(); exec_lt(160, lm)
for k in range(4):
    e('v_sub_f32 v%d, v%d, v22' % (224+k, 232+k)); e('v_mul_f32 v%d, v%d, v23' % (224+k, 224+k)); e('v_fma_f32 v%d, v%d, v%d, v%d' % (224+k, 224+k, 248+k, 244+k))
e('v_cvt_pk_bf16_f32 v26, v224, v225'); e('v_cvt_pk_bf16_f32 v27, v226, v227')
e('v_perm_b32 v28, v26, v26, %s' % SEL_LO); e('v_perm_b32 v29, v26, v26, %s' % SEL_HI)
e('v_perm_b32 v30, v27, v27, %s' % SEL_LO); e('v_perm_b32 v31, v27, v27, %s' % SEL_HI)
e('v_lshlrev_b32 v21, 4, v0'); e('v_add_u32 v20, %d, v21' % XX); e('ds_write_b128 v20, v[28:31]')
exec_restore(lm)
barrier()

e('v_lshrrev_b32 v20, 3, v2'); e('v_lshl_add_u32 v20, v20, 2, v3'); e('v_mul_u32_u24 v20, 20, v20')
e('s_mul_i32 s8, s4, 160'); e('v_add_u32 v24, s8, v20')
e('v_lshlrev_b32 v21, 2, v24'); e('v_add_u32 v21, %d, v21' % XX)
for i in range(0, 20, 4): e('ds_read_b128 v[%d:%d], v21 offset:%d' % (XR+i, XR+i+3, 4*i))
e('s_waitcnt vmcnt(0) lgkmcnt(0)')
gemv(20, WR, XR)
e('v_lshrrev_b32 v20, 3, v2'); e('v_lshrrev_b32 v21, 1, v3'); e('v_cmp_eq_u32 vcc, v20, v21')
e('s_lshl_b32 s8, s4, 1'); e('v_add_u32 v20, s8, v20'); e('v_lshlrev_b32 v20, 8, v20')
e('v_and_b32 v21, 7, v2'); e('v_lshlrev_b32 v21, 5, v21'); e('v_and_b32 v22, 1, v3'); e('v_lshlrev_b32 v22, 4, v22')
e('v_add3_u32 v20, v20, v21, v22'); e('v_add_u32 v20, %d, v20' % RED)
e('s_and_saveexec_b64 s[14:15], vcc')
e('ds_write_b128 v20, v[%d:%d]' % (ACC, ACC+3))
e('s_mov_b64 exec, s[14:15]')
barrier()
XX3 = SCR + 3584
l = lab(); exec_lt(64, l)
e('v_lshlrev_b32 v20, 2, v0'); e('v_add_u32 v21, %d, v20' % RED)
for s in range(8): e('ds_read_b32 v%d, v21 offset:%d' % (XR+s, 256*s))
e('s_waitcnt lgkmcnt(0)')
for s in range(1, 8): e('v_add_f32 v%d, v%d, v%d' % (XR, XR, XR+s))
e('v_max_f32 v22, 0, v%d' % XR); e('v_cvt_pk_bf16_f32 v22, v22, v22')
e('v_add_u32 v20, %d, v20' % XX3); e('ds_write_b32 v20, v22')
exec_restore(l)
barrier()
stamp(11)
e('v_lshlrev_b32 v20, 4, v3'); e('s_lshl_b32 s8, s4, 6'); e('s_add_u32 s8, s8, %d' % XX3); e('v_add_u32 v20, s8, v20')
e('ds_read_b128 v[%d:%d], v20' % (XR, XR+3))
e('s_waitcnt lgkmcnt(0)')
AF = 208
for i in range(4):
    for d in range(4): e('v_and_b32 v%d, v%d, v%d' % (AF+4*i+d, XR+i, MK[d]))
nop(2)
AC2 = 224
for i in range(4):
    for cg in range(5):
        r = 112 + 4*(5*i+cg); a = AC2+4*cg
        e('v_mfma_f32_16x16x32_bf16 v[%d:%d], v[%d:%d], v[%d:%d], %s' % (a, a+3, AF+4*i, AF+4*i+3, r, r+3, '0' if i == 0 else 'v[%d:%d]' % (a, a+3)))
nop(8)
e('v_and_b32 v22, 1, v3'); e('v_lshlrev_b32 v22, 4, v22'); e('v_lshl_add_u32 v22, v2, 5, v22')
e('s_mul_i32 s8, s4, 2560'); e('s_add_u32 s8, s8, %d' % RED); e('v_add_u32 v20, s8, v22')
e('v_cmp_gt_u32 vcc, 2, v3'); e('s_and_saveexec_b64 s[14:15], vcc')
for cg in range(5): e('ds_write_b128 v20, v[%d:%d] offset:%d' % (AC2+4*cg, AC2+4*cg+3, 512*cg))
e('s_mov_b64 exec, s[14:15]')
barrier()
l = lab(); exec_lt(160, l)
e('v_lshlrev_b32 v21, 4, v0'); e('v_add_u32 v20, %d, v21' % RED)
for s in range(4): e('ds_read_b128 v[%d:%d], v20 offset:%d' % (XR+4*s, XR+4*s+3, 2560*s))
e('s_waitcnt lgkmcnt(0)')
for s in range(1, 4):
    for k in range(4): e('v_add_f32 v%d, v%d, v%d' % (XR+k, XR+k, XR+4*s+k))
e('v_mov_b32 v208, v192'); e('v_mov_b32 v209, %s' % sN); e('v_mov_b32 v210, v193'); e('v_mov_b32 v211, %s' % sN)
e('v_mov_b32 v212, v194'); e('v_mov_b32 v213, %s' % sN); e('v_mov_b32 v214, v195'); e('v_mov_b32 v215, %s' % sN)
e('v_lshlrev_b32 v20, 5, v0'); e('s_lshl_b32 s8, s5, 13'); e('s_add_u32 s8, s8, %d' % WS_MLP)
e('buffer_store_dwordx4 v[208:211], v20, %s, s8 offen sc1' % WS); e('buffer_store_dwordx4 v[212:215], v20, %s, s8 offen offset:16 sc1' % WS)
exec_restore(l)
stamp(12)
e('s_cmp_ge_u32 s5, 20'); e('s_cbranch_scc1 L_FIN')
e('v_and_b32 v20, 31, v0'); e('v_lshrrev_b32 v21, 5, v0')
e('v_lshlrev_b32 v22, 13, v21'); e('v_lshl_add_u32 v22, v20, 3, v22')
e('s_lshl_b32 s8, s5, 8'); e('s_add_u32 s8, s8, %d' % WS_MLP)
e('v_cmp_gt_u32 vcc, 3, v21'); e('v_add_u32 v23, %d, v22' % (24*8192)); nop(1); e('v_cndmask_b32 v23, v22, v23, vcc')
e('s_add_u32 s9, s8, %d' % (8*8192)); e('s_add_u32 s10, s8, %d' % (16*8192))
e('s_mov_b64 s[12:13], vcc')
poll(['buffer_load_dwordx2 v[192:193], v22, %s, s8 offen sc1' % WS, 'buffer_load_dwordx2 v[194:195], v22, %s, s9 offen sc1' % WS,
      'buffer_load_dwordx2 v[196:197], v22, %s, s10 offen sc1' % WS, 'buffer_load_dwordx2 v[198:199], v23, %s, s8 offen sc1' % WS], [193, 195, 197, 199], sleep=1)
stamp(13)
e('v_cndmask_b32 v198, 0, v198, s[12:13]')
e('v_add_f32 v192, v192, v194'); e('v_add_f32 v196, v196, v198'); e('v_add_f32 v192, v192, v196')
FR = SCR + 24576
e('v_lshlrev_b32 v22, 2, v0'); e('v_add_u32 v22, %d, v22' % FR); e('ds_write_b32 v22, v192')
barrier()
l = lab(); exec_lt(16, l)
e('v_lshlrev_b32 v20, 3, v0'); e('v_add_u32 v22, %d, v20' % FR)
for p in range(8): e('ds_read_b64 v[%d:%d], v22 offset:%d' % (192+2*p, 193+2*p, 128*p))
e('s_lshl_b32 s8, s5, 7'); e('s_add_u32 s8, s8, %d' % X1L); e('v_add_u32 v23, s8, v20')
e('ds_read_b64 v[208:209], v23'); e('ds_read_b64 v[210:211], v23 offset:4096')
e('s_waitcnt lgkmcnt(0)')
for p in range(1, 8): e('v_add_f32 v192, v192, v%d' % (192+2*p)); e('v_add_f32 v193, v193, v%d' % (193+2*p))
e('v_fma_f32 v192, v210, v192, v208'); e('v_fma_f32 v193, v211, v193, v209')
e('v_cvt_pk_bf16_f32 v192, v192, v193')
srd(SA, 38, 1280)
e('v_lshlrev_b32 v20, 2, v0'); e('s_lshl_b32 s8, s5, 6')
e('buffer_store_dword v192, v20, %s, s8 offen' % SA)
exec_restore(l)
e('s_cmp_lg_u32 s3, 40'); e('s_cbranch_scc1 L_FIN')
l = lab(); exec_lt(1, l)
e('v_mov_b32 v20, 0'); e('v_mov_b32 v22, %s' % sN); e('buffer_store_dword v22, v20, %s, 0 offen sc1' % WS)
exec_restore(l)
e('L_FIN:')
if STAMPS:
    stamp(14)
    e('s_waitcnt lgkmcnt(0)')
    l = lab(); exec_lt(1, l)
    e('s_lshl_b32 s8, s3, 6'); e('s_add_u32 s8, s8, %d' % WS_STAMP); e('v_mov_b32 v20, 0')
    for k in range(0, 16, 4):
        for j in range(4): e('v_mov_b32 v%d, s%d' % (24+j, 60+2*(k+j)))
        e('buffer_store_dwordx4 v[24:27], v20, %s, s8 offen offset:%d' % (WS, 4*k)); nop(2)
    exec_restore(l)
e('L_END:')
e('s_endpgm')
L.append('.section .rodata,"a"')
L.append('.p2align 6')
L.append('.amdhsa_kernel %s_kernel' % NAME)
for k, v in [('next_free_vgpr', 512), ('next_free_sgpr', 102), ('accum_offset', 256), ('group_segment_fixed_size', 0), ('kernarg_size', 112),
             ('user_sgpr_count', 2), ('user_sgpr_kernarg_segment_ptr', 1), ('system_sgpr_workgroup_id_x', 1)]:
    L.append('  .amdhsa_%s %d' % (k, v))
L.append('.end_amdhsa_kernel')
open(OUT, 'w').write('\n'.join(L) + '\n')
print('wrote', OUT, len(L), 'lines')
```

```python
import sys
def ARG(k,d):
    for a in sys.argv[1:]:
        if a.startswith('--%s='%k): return a.split('=')[1]
    return d
NAME = "adaLN_cond__compressed_kv_cla__dense_activation_relu__decode"
STAMPS = '--stamps' in sys.argv
OUT = [a for a in sys.argv[1:] if not a.startswith('--')]
OUT = OUT[0] if OUT else 'cdna_kernels/%s.s' % NAME

L = []
def e(s=''):
    for ln in s.split('\n'):
        L.append('    ' + ln.strip() if ln.strip() and not ln.strip().endswith(':') else ln.strip())
_lab = [0]
def lab(p='L'):
    _lab[0] += 1
    return '%s_%d' % (p, _lab[0])
def nop(n):
    while n > 0:
        k = min(n, 16); e('s_nop %d' % (k-1)); n -= k

WS_GEN=0; WS_MOD=0x1000; MOD_KH=0x4000; WS_Q=0x10000; WS_QAF=0x20000; WS_QA=0x28000
WS_STATS=0x900000; WS_CTX=0x60000; WS_X1P=0x70000; WS_MLP=0x80000; WS_STAMP=0xC0000; WS_PART=0x100000
WS_SIZE=0x980000
SCR=131072
XX=SCR; RED=SCR+4096
QSCALE = (128**-0.5)*1.4426950408889634
import struct
def f2u(f): return struct.unpack('<I', struct.pack('<f', f))[0]

sID='s3'; sW='s4'; sN='s42'; WS='s[44:47]'; SA='s[48:51]'; SB='s[52:55]'
SEL_LO='s56'; SEL_HI='s57'
vT='v0'; vL='v1'; vN='v2'; vG='v3'
MK=[4,5,6,7]; AB=[8,12]; ACC=16
WR=32; XR=192

nst=[0]
LATE = '--late' in sys.argv
ATT = '--att' in sys.argv
EARLY = '--early' in sys.argv
def estamp(k, wait=None):
    if STAMPS and EARLY:
        if wait is not None: e('s_waitcnt vmcnt(%d)' % wait)
        e('s_memrealtime s[%d:%d]' % (60+2*k, 61+2*k))
def stamp(k):
    if EARLY and 5 <= k <= 8: return
    if STAMPS and not ((LATE or ATT) and 1 <= k <= 8): e('s_memrealtime s[%d:%d]' % (60+2*k, 61+2*k))
def lstamp(k):
    if STAMPS and LATE: e('s_memrealtime s[%d:%d]' % (60+2*k, 61+2*k))
def astamp(k):
    if STAMPS and ATT: e('s_memrealtime s[%d:%d]' % (60+2*k, 61+2*k))

def srd(q, plo, size, add=None):
    b = int(q[2:q.index(':')])
    if add is None:
        e('s_mov_b32 s%d, s%d' % (b, plo)); e('s_mov_b32 s%d, s%d' % (b+1, plo+1))
    else:
        e('s_add_u32 s%d, s%d, %s' % (b, plo, add)); e('s_addc_u32 s%d, s%d, 0' % (b+1, plo+1))
    e('s_mov_b32 s%d, %d' % (b+2, size)); e('s_mov_b32 s%d, 0x20000' % (b+3))

def gemv(n, wbase, xbase, acc=ACC, wait=None):
    def ands(i):
        a = AB[i & 1]
        for d in range(4): e('v_and_b32 v%d, v%d, v%d' % (a+d, xbase+i, MK[d]))
    ands(0)
    for i in range(n):
        if i+1 < n: ands(i+1)
        else: nop(2)
        if wait: wait(i)
        a = AB[i & 1]
        c = '0' if i == 0 else 'v[%d:%d]' % (acc, acc+3)
        e('v_mfma_f32_16x16x32_bf16 v[%d:%d], v[%d:%d], v[%d:%d], %s' % (acc, acc+3, a, a+3, wbase+4*i, wbase+4*i+3, c))
    nop(8)

def wave_reduce(v, op='add', tmp=None):
    ins = 'v_add_f32_dpp' if op == 'add' else 'v_max_f32_dpp'
    for sh in (1,2,4,8):
        nop(2)
        if op == 'add': e('%s v%d, v%d, v%d row_shr:%d row_mask:0xf bank_mask:0xf bound_ctrl:0' % (ins, v, v, v, sh))
        else: e('%s v%d, v%d, v%d row_shr:%d row_mask:0xf bank_mask:0xf' % (ins, v, v, v, sh))
    nop(2); e('%s v%d, v%d, v%d row_bcast:15 row_mask:0xa bank_mask:0xf' % (ins, v, v, v))
    nop(2); e('%s v%d, v%d, v%d row_bcast:31 row_mask:0xc bank_mask:0xf' % (ins, v, v, v))
    nop(1)

def tagchk(tags):
    e('v_sad_u32 v30, v%d, %s, 0' % (tags[0], sN))
    for t in tags[1:]: e('v_sad_u32 v30, v%d, %s, v30' % (t, sN))
    e('v_cmp_ne_u32 vcc, 0, v30')
def poll(loads, tags, sleep=1, pre=None):
    l0 = lab('P'); l1 = lab('PD')
    e(l0 + ':')
    for s_ in loads: e(s_)
    e('s_waitcnt vmcnt(0)')
    tagchk(tags)
    e('s_cbranch_vccz %s' % l1)
    e('s_sub_u32 s59, s59, 1')
    e('s_cbranch_scc1 L_END')
    if sleep: e('s_sleep %d' % sleep)
    e('s_branch %s' % l0)
    e(l1 + ':')
def pollp(K, loads, tags, regs, sleep=0):
    P = sum(1 for x in loads(0) if x.startswith('buffer_'))
    l0 = lab('P'); ld = lab('PD'); dn = [lab('PK') for _ in range(K)]
    for k in range(K):
        for s_ in loads(k): e(s_)
    e(l0 + ':')
    for k in range(K):
        e('s_waitcnt vmcnt(%d)' % ((K-1)*P))
        tagchk(tags(k))
        e('s_cbranch_vccz %s' % dn[k])
        if k == 0:
            e('s_sub_u32 s59, s59, 1'); e('s_cbranch_scc1 L_END')
        if sleep: e('s_sleep %d' % sleep)
        for s_ in loads(k): e(s_)
    e('s_branch %s' % l0)
    for k in range(K-1, 0, -1):
        e(dn[k] + ':')
        e('s_waitcnt vmcnt(%d)' % ((K-1-k)*P if False else 0)) if False else None
        for d_, s_ in zip(regs(K), regs(k)): e('v_mov_b32 v%d, v%d' % (d_, s_))
        e('s_branch %s' % ld)
    e(dn[0] + ':')
    for d_, s_ in zip(regs(K), regs(0)): e('v_mov_b32 v%d, v%d' % (d_, s_))
    e(ld + ':')

def exec_lt(n, lbl):
    e('v_cmp_gt_u32 vcc, %d, %s' % (n, vT)); e('s_and_saveexec_b64 s[14:15], vcc'); e('s_cbranch_execz %s' % lbl)
def exec_restore(lbl):
    e(lbl + ':'); e('s_mov_b64 exec, s[14:15]')

def unpack(lo, hi, src):
    e('v_lshlrev_b32 v%d, 16, v%d' % (lo, src)); e('v_and_b32 v%d, 0xffff0000, v%d' % (hi, src))

def barrier(lds=True):
    if lds: e('s_waitcnt lgkmcnt(0)')
    e('s_barrier')

def hash_nonce():
    e('s_waitcnt lgkmcnt(0)')
    e('s_mul_i32 s8, %s, 0x9e3779b1' % sN); e('s_add_u32 s97, s8, 0x7f4a7c15')
    e('s_and_b32 %s, s97, 0xbfffbfff' % sN)

def swz(k): return ((k & 3) << 2) | ((k >> 2) & 3)
S1_A, S2_A = int(ARG('s1a',0)), int(ARG('s2a',8))
def dma_setup():
    e('s_lshl_b32 s8, s3, 17')
    srd('s[92:95]', 18, 131072, add='s8')
    e('v_lshlrev_b32 v19, 4, v1')
    e('s_lshl_b32 s96, s4, 15')
def dma_rows(r0, r1):
    e('v_lshlrev_b32 v31, 4, v1')
    for r in range(r0, r1):
        e('s_mov_b32 m0, s96')
        e('v_xor_b32 v30, %d, v31' % (swz(r) << 4))
        e('buffer_load_dwordx4 v30, s[92:95], s96 offen nt lds')
        e('s_add_u32 s96, s96, 1024')

L[-1] = L[-1].strip()
L.append('; @launch grid=(256,1,1) block=(256,1,1) lds=163840')
L.append('.amdgcn_target "amdgcn-amd-amdhsa--gfx950"')
L.append('.text')
L.append('.globl %s_kernel' % NAME)
L.append('.p2align 8')
L.append('.type %s_kernel,@function' % NAME)
L.append('%s_kernel:' % NAME)
e('s_cmp_ge_u32 s2, 256')
e('s_cbranch_scc1 L_END')
stamp(0)
e('s_load_dwordx16 s[16:31], s[0:1], 0')
e('s_load_dwordx8 s[32:39], s[0:1], 64')
e('s_load_dwordx2 s[40:41], s[0:1], 104')
e('s_sub_u32 s3, s2, 40'); e('s_add_u32 s5, s2, 192'); e('s_cmp_lt_u32 s2, 40'); e('s_cselect_b32 s3, s5, s3')
e('s_cmp_ge_u32 s2, 232'); e('s_cselect_b32 s3, s2, s3')
e('v_and_b32 v1, 63, v0')
e('v_and_b32 v2, 15, v0')
e('v_bfe_u32 v3, v0, 4, 2')
e('v_lshrrev_b32 v20, 6, v0')
e('s_mov_b32 s56, 0x01000100')
e('s_mov_b32 s57, 0x03020302')
e('s_mov_b32 s59, 0x10000')
e('v_readfirstlane_b32 s4, v20')
def masks():
    e('v_and_b32 v20, 1, v0'); e('v_lshlrev_b32 v20, 4, v20'); e('v_mov_b32 v21, 0xffff'); e('v_lshlrev_b32 v21, v20, v21')
    e('v_bfe_u32 v22, v0, 1, 2')
    for d in range(4):
        e('v_cmp_eq_u32 vcc, %d, v22' % d); nop(2); e('v_cndmask_b32 v%d, 0, v21, vcc' % MK[d])
e('v_lshrrev_b32 v24, 3, v2'); e('v_lshl_add_u32 v24, v24, 2, v3'); e('v_mul_u32_u24 v24, 10, v24')
e('s_mul_i32 s8, s4, 80'); e('v_add_u32 v24, s8, v24')
e('s_waitcnt lgkmcnt(0)')
e('s_load_dword s42, s[40:41], 0')
srd(WS, 40, WS_SIZE)
e('s_cmp_lt_u32 s3, 128'); e('s_cbranch_scc1 L_S1')
e('s_cmp_lt_u32 s3, 192'); e('s_cbranch_scc1 L_S2ONLY')
e('s_cmp_ge_u32 s3, 232'); e('s_cbranch_scc1 L_NOS0')

UK = 72
def s2_issue():
    e('s_sub_u32 s8, s3, 128'); e('s_lshr_b32 s8, s8, 1'); e('s_and_b32 s9, s3, 1')
    srd(SB, 22, 512*8192)
    e('s_lshl_b32 s9, s9, 8'); e('s_lshl_b32 s10, s4, 6'); e('s_add_u32 s9, s9, s10')
    e('v_add_u32 v20, s9, v2'); e('v_lshlrev_b32 v20, 13, v20'); e('v_lshlrev_b32 v21, 4, v3')
    e('s_lshl_b32 s10, s8, 8'); e('v_add3_u32 v20, v20, v21, s10')
    for tt in range(4):
        e('s_mov_b32 s12, %d' % (tt*16*8192))
        for ks in range(4):
            r = UK + 16*tt + 4*ks
            e('buffer_load_dwordx4 v[%d:%d], v20, %s, s12 offen offset:%d nt' % (r, r+3, SB, ks*64))
def s0_issue():
    e('s_lshr_b32 s6, s5, 1'); e('s_and_b32 s7, s5, 1')
    srd(SA, 36, 640*7680); srd(SB, 34, 1280)
    e('s_mul_i32 s9, s7, 320'); e('v_add_u32 v20, s9, v24')
    e('s_movk_i32 s10, 7680'); e('v_mul_lo_u32 v20, v20, s10')
    e('v_and_b32 v21, 7, v2'); e('v_lshlrev_b32 v21, 4, v21')
    e('s_lshl_b32 s11, s6, 7'); e('v_add3_u32 v20, v20, v21, s11')
    e('v_lshlrev_b32 v21, 2, v0'); e('s_mul_i32 s12, s7, 640')
    e('buffer_load_dword v25, v21, %s, s12 offen' % SB)
    for i in range(10):
        e('s_mov_b32 s12, %d' % (i*7680)); e('buffer_load_dwordx4 v[%d:%d], v20, %s, s12 offen nt' % (WR+4*i, WR+4*i+3, SA))
def gemv_w8_tail(nx, vm=0, rowreg=24):
    e('v_lshlrev_b32 v21, 2, v%d' % rowreg); e('v_add_u32 v21, %d, v21' % XX)
    for i in range(0, nx, 2): e('ds_read_b64 v[%d:%d], v21 offset:%d' % (XR+i, XR+i+1, 4*i))
    e('v_lshrrev_b32 v20, 3, v2'); e('v_lshrrev_b32 v21, 1, v3'); e('v_cmp_eq_u32 s[12:13], v20, v21')
    e('s_lshl_b32 s8, s4, 1'); e('v_add_u32 v20, s8, v20'); e('v_lshlrev_b32 v20, 8, v20')
    e('v_and_b32 v21, 7, v2'); e('v_lshlrev_b32 v21, 5, v21'); e('v_and_b32 v22, 1, v3'); e('v_lshlrev_b32 v22, 4, v22')
    e('v_add3_u32 v20, v20, v21, v22'); e('v_add_u32 v20, %d, v20' % RED)
    e('s_waitcnt vmcnt(%d) lgkmcnt(0)' % vm)
    gemv(nx, WR, XR)
    e('s_mov_b64 s[14:15], exec'); e('s_mov_b64 exec, s[12:13]')
    e('ds_write_b128 v20, v[%d:%d]' % (ACC, ACC+3))
    e('s_mov_b64 exec, s[14:15]')
    barrier()
def s0_finish(vm):
    e('s_waitcnt vmcnt(%d)' % (10+vm))
    unpack(26, 27, 25)
    for r in (26, 27):
        e('v_mul_f32 v28, 0xbfb8aa3b, v%d' % r); e('v_exp_f32 v28, v28'); nop(1)
        e('v_add_f32 v28, 1.0, v28'); e('v_rcp_f32 v28, v28'); nop(1); e('v_mul_f32 v%d, v%d, v28' % (r, r))
    e('v_cvt_pk_bf16_f32 v26, v26, v27')
    e('v_perm_b32 v28, v26, v26, %s' % SEL_LO); e('v_perm_b32 v29, v26, v26, %s' % SEL_HI)
    e('v_lshlrev_b32 v21, 3, v0'); e('v_add_u32 v21, %d, v21' % XX)
    l = lab(); exec_lt(160, l); e('ds_write_b64 v21, v[28:29]'); exec_restore(l)
    barrier()
    gemv_w8_tail(10, vm)
    l = lab(); exec_lt(32, l)
    e('v_lshlrev_b32 v20, 3, v0'); e('v_add_u32 v21, %d, v20' % RED)
    for s_ in range(8): e('ds_read_b64 v[%d:%d], v21 offset:%d' % (XR+2*s_, XR+2*s_+1, 256*s_))
    e('s_lshl_b32 s8, s7, 14'); e('s_lshl_b32 s9, s6, 8'); e('s_add_u32 s8, s8, s9'); e('s_add_u32 s8, s8, %d' % WS_MOD)
    e('v_mov_b32 v23, %s' % sN)
    e('s_waitcnt lgkmcnt(0)')
    for s_ in (4, 2, 1):
        for k in range(s_): e('v_pk_add_f32 v[%d:%d], v[%d:%d], v[%d:%d]' % (XR+2*k, XR+2*k+1, XR+2*k, XR+2*k+1, XR+2*(k+s_), XR+2*(k+s_)+1))
    e('v_cvt_pk_bf16_f32 v22, v%d, v%d' % (XR, XR+1))
    e('buffer_store_dwordx2 v[22:23], v20, %s, s8 offen sc1' % WS)
    exec_restore(l)

e('s_sub_u32 s5, s3, 192')
s0_issue()
masks()
hash_nonce()
s0_finish(0)
stamp(1)
dma_setup(); dma_rows(0, 32)
e('s_branch L_DMA_D')

e('L_S1:')
e('s_lshr_b32 s5, s3, 2'); e('s_bfe_u32 s6, s3, 0x10001'); e('s_and_b32 s7, s3, 1')
srd(SA, 20, 640*8192); srd(SB, 16, 1280)
e('s_mul_i32 s9, s7, 320'); e('v_add_u32 v20, s9, v24'); e('v_lshlrev_b32 v20, 13, v20')
e('v_and_b32 v21, 7, v2'); e('v_lshlrev_b32 v21, 4, v21')
e('s_lshl_b32 s10, s5, 8'); e('s_lshl_b32 s11, s6, 7'); e('s_add_u32 s10, s10, s11'); e('v_add3_u32 v20, v20, v21, s10')
e('v_mul_u32_u24 v21, 20, v1')
e('buffer_load_dwordx4 v[104:107], v21, %s, 0 offen' % SB); e('buffer_load_dword v108, v21, %s, 0 offen offset:16' % SB)
e('v_lshlrev_b32 v21, 2, v0'); e('s_mul_i32 s12, s7, 640'); e('buffer_load_dword v109, v21, %s, s12 offen' % SB)
e('v_mov_b32 v23, v20')
masks()
e('s_waitcnt vmcnt(0)')
for k in range(5): unpack(110+2*k, 111+2*k, 104+k)
e('v_add_f32 v20, v110, v111')
for k in range(2, 10): e('v_add_f32 v20, v20, v%d' % (110+k))
wave_reduce(20); e('v_readlane_b32 s8, v20, 63'); nop(2)
e('v_mov_b32 v21, s8'); e('v_mul_f32 v21, %s, v21' % hex(f2u(1/640.)))
e('v_mov_b32 v20, 0')
for k in range(10):
    e('v_sub_f32 v22, v%d, v21' % (110+k)); e('v_fmac_f32 v20, v22, v22')
wave_reduce(20); e('v_readlane_b32 s8, v20, 63'); nop(2)
e('v_mov_b32 v22, s8'); e('v_mul_f32 v22, %s, v22' % hex(f2u(1/640.))); e('v_add_f32 v22, %s, v22' % hex(f2u(1e-5)))
e('v_rsq_f32 v22, v22'); nop(1)
for i in range(10):
    e('s_mov_b32 s12, %d' % (i*8192)); e('buffer_load_dwordx4 v[%d:%d], v23, %s, s12 offen nt' % (WR+4*i, WR+4*i+3, SA))
dma_setup(); dma_rows(0, S1_A)
unpack(110, 111, 109)
for r in (110, 111):
    e('v_sub_f32 v%d, v%d, v21' % (r, r)); e('v_mul_f32 v%d, v%d, v22' % (r, r))
hash_nonce()
estamp(5, S1_A)
l = lab(); exec_lt(160, l)
e('v_lshlrev_b32 v20, 3, v0'); e('s_mul_i32 s8, s7, 1280'); e('s_add_u32 s8, s8, %d' % WS_MOD)
e('s_add_u32 s9, s8, 2560'); e('s_add_u32 s10, s8, %d' % MOD_KH); e('s_add_u32 s11, s9, %d' % MOD_KH)
st = lambda k: 112 + 8*k
pollp(3, lambda k: ['buffer_load_dwordx2 v[%d:%d], v20, %s, %s offen sc1' % (st(k)+2*j, st(k)+2*j+1, WS, so) for j, so in enumerate(['s8', 's10', 's9', 's11'])],
      lambda k: [st(k)+1, st(k)+3, st(k)+5, st(k)+7], lambda k: [st(k), st(k)+2, st(k)+4, st(k)+6] if k < 3 else [136, 137, 138, 139])
unpack(140, 141, 136); unpack(142, 143, 137); unpack(144, 145, 138); unpack(146, 147, 139)
e('v_pk_add_f32 v[140:141], v[140:141], v[142:143]'); e('v_pk_add_f32 v[144:145], v[144:145], v[146:147]')
e('v_fma_f32 v140, v110, v144, v140'); e('v_fma_f32 v141, v111, v145, v141')
e('v_add_f32 v140, v140, v110'); e('v_add_f32 v141, v141, v111')
e('v_cvt_pk_bf16_f32 v26, v140, v141')
e('v_perm_b32 v28, v26, v26, %s' % SEL_LO); e('v_perm_b32 v29, v26, v26, %s' % SEL_HI)
e('v_add_u32 v21, %d, v20' % XX); e('ds_write_b64 v21, v[28:29]')
exec_restore(l)
stamp(1)
barrier()
gemv_w8_tail(10, S1_A)
l = lab(); exec_lt(64, l)
e('v_lshlrev_b32 v20, 2, v0'); e('v_add_u32 v20, %d, v20' % RED)
for s_ in range(8): e('ds_read_b32 v%d, v20 offset:%d' % (XR+s_, 256*s_))
e('s_lshl_b32 s8, s5, 11'); e('s_lshl_b32 s9, s7, 10'); e('s_add_u32 s8, s8, s9'); e('s_lshl_b32 s9, s6, 9'); e('s_add_u32 s8, s8, s9'); e('s_add_u32 s8, s8, %d' % WS_Q)
e('v_mov_b32 v23, %s' % sN); e('v_lshlrev_b32 v20, 3, v0')
e('s_waitcnt lgkmcnt(0)')
for s_ in (2, 1):
    for k in range(s_): e('v_pk_add_f32 v[%d:%d], v[%d:%d], v[%d:%d]' % (XR+2*k, XR+2*k+1, XR+2*k, XR+2*k+1, XR+2*(k+s_), XR+2*(k+s_)+1)) if s_ == 2 else None
e('v_pk_add_f32 v[%d:%d], v[%d:%d], v[%d:%d]' % (XR, XR+1, XR, XR+1, XR+2, XR+3)); e('v_add_f32 v22, v%d, v%d' % (XR, XR+1))
e('buffer_store_dwordx2 v[22:23], v20, %s, s8 offen sc1' % WS)
exec_restore(l)
stamp(2)
dma_rows(S1_A, 32)
e('s_branch L_DMA_D')

def s2_finish():
    e('s_sub_u32 s5, s3, 128'); e('s_lshr_b32 s5, s5, 1'); e('s_and_b32 s6, s3, 1')
    l = lab(); exec_lt(128, l)
    e('v_lshlrev_b32 v20, 3, v0'); e('s_lshl_b32 s8, s5, 11'); e('s_add_u32 s8, s8, %d' % WS_Q); e('s_add_u32 s9, s8, 1024')
    st = lambda k: 140 + 4*k
    pollp(3, lambda k: ['buffer_load_dwordx2 v[%d:%d], v20, %s, %s offen sc1' % (st(k)+2*j, st(k)+2*j+1, WS, so) for j, so in enumerate(['s8', 's9'])],
          lambda k: [st(k)+1, st(k)+3], lambda k: [st(k), st(k)+2] if k < 3 else [136, 137], sleep=1)
    e('v_add_f32 v136, v136, v137'); e('v_cvt_pk_bf16_f32 v136, v136, v136')
    e('v_lshlrev_b32 v21, 1, v0'); e('v_add_u32 v21, %d, v21' % XX); e('ds_write_b16 v21, v136')
    exec_restore(l)
    stamp(2)
    barrier()
    e('v_lshlrev_b32 v21, 4, v3'); e('v_add_u32 v21, %d, v21' % XX)
    for ks in range(4): e('ds_read_b128 v[%d:%d], v21 offset:%d' % (XR+4*ks, XR+4*ks+3, 64*ks))
    e('s_lshl_b32 s8, s6, 4'); e('s_lshl_b32 s9, s4, 2'); e('s_add_u32 s8, s8, s9'); e('s_lshl_b32 s8, s8, 10')
    e('s_lshl_b32 s9, s5, 4'); e('s_add_u32 s8, s8, s9'); e('s_add_u32 s8, s8, %d' % WS_QA)
    e('v_lshlrev_b32 v20, 10, v2'); e('v_lshrrev_b32 v21, 1, v3'); e('v_lshlrev_b32 v21, 9, v21'); e('v_and_b32 v24, 1, v3'); e('v_lshlrev_b32 v24, 3, v24')
    e('v_add3_u32 v20, v20, v21, v24')
    e('v_cmp_eq_u32 s[10:11], 1, v2'); e('v_cmp_eq_u32 s[12:13], 2, v2'); e('v_cmp_eq_u32 s[14:15], 3, v2')
    e('s_mov_b32 s9, %s' % hex(f2u(QSCALE)))
    e('s_waitcnt vmcnt(%d) lgkmcnt(0)' % S2_A)
    for ks in range(4):
        for tt in range(4):
            r = UK + 16*tt + 4*ks; a = 208 + 4*tt
            e('v_mfma_f32_16x16x32_bf16 v[%d:%d], v[%d:%d], v[%d:%d], %s' % (a, a+3, r, r+3, XR+4*ks, XR+4*ks+3, '0' if ks == 0 else 'v[%d:%d]' % (a, a+3)))
    nop(8)
    for tt, m in ((1, 's[10:11]'), (2, 's[12:13]'), (3, 's[14:15]')):
        for r in range(4): e('v_cndmask_b32 v%d, v%d, v%d, %s' % (208+r, 208+r, 208+4*tt+r, m))
    for r in range(4): e('v_mul_f32 v%d, s9, v%d' % (208+r, 208+r))
    e('v_cvt_pk_bf16_f32 v22, v208, v209'); e('v_cvt_pk_bf16_f32 v23, v210, v211')
    e('v_cmp_gt_u32 vcc, 4, v2'); e('s_and_saveexec_b64 s[14:15], vcc')
    e('buffer_store_dwordx2 v[22:23], v20, %s, s8 offen sc1' % WS)
    e('s_mov_b64 exec, s[14:15]')
    estamp(6)
    e('s_waitcnt vmcnt(0)'); e('s_barrier')
    l = lab(); exec_lt(8, l)
    e('v_lshlrev_b32 v20, 10, v0'); e('s_sub_u32 s8, s3, 128'); e('s_lshl_b32 s8, s8, 4'); e('s_add_u32 s8, s8, %d' % WS_QAF); e('v_mov_b32 v22, %s' % sN)
    e('buffer_store_dword v22, v20, %s, s8 offen sc1' % WS)
    exec_restore(l)
    stamp(3)
e('L_S2ONLY:')
masks(); hash_nonce()
s2_issue(); dma_setup(); dma_rows(0, S2_A)
s2_finish()
dma_rows(S2_A, 32)
e('s_branch L_DMA_D')

e('L_NOS0:')
masks()
hash_nonce()
dma_setup(); dma_rows(0, 32)
e('L_DMA_D:')
e('v_lshlrev_b32 v21, 4, v1')
stamp(4)
QA_ADDR=224; S_ACC=208; QB=232
e('v_and_b32 v20, 31, v1'); e('v_lshrrev_b32 v22, 5, v1')
e('v_and_b32 v23, 3, v20'); e('v_lshlrev_b32 v23, 2, v23'); e('v_bfe_u32 v24, v20, 2, 2'); e('v_or_b32 v23, v23, v24')
e('v_xor_b32 v23, v23, v22'); e('v_lshlrev_b32 v23, 4, v23')
e('s_lshl_b32 s8, s4, 15'); e('v_lshlrev_b32 v24, 10, v20'); e('v_add3_u32 v23, v23, v24, s8')
for jj in range(8): e('v_xor_b32 v%d, %d, v23' % (QA_ADDR+jj, jj << 5))
e('v_lshlrev_b32 v%d, 4, v1' % QB); e('v_add_u32 v%d, %d, v%d' % (QB, SCR, QB))
e('s_waitcnt vmcnt(0)')
for j in range(32):
    e('ds_read_b128 a[%d:%d], v%d offset:%d' % (4*j, 4*j+3, QA_ADDR+(j & 7), (j >> 3)*256))
    if j >= 12: e('s_waitcnt lgkmcnt(12)')
e('s_cmp_lg_u32 s4, 0'); e('s_cbranch_scc1 L_E3D')
e('s_and_b32 s8, s3, 7'); e('s_lshl_b32 s8, s8, 10'); e('s_add_u32 s8, s8, %d' % WS_QAF)
pollp(2, lambda k: ['buffer_load_dword v%d, v21, %s, s8 offen sc1' % (26+k, WS)], lambda k: [26+k], lambda k: [], sleep=1)
e('L_E3D:')
e('s_barrier')
stamp(5)
e('s_mov_b32 s9, %d' % WS_QA)
e('buffer_load_dwordx4 a[224:227], v21, %s, s9 offen sc1' % WS)
e('s_lshl_b32 s8, s4, 13'); e('s_add_u32 s8, s8, %d' % WS_QA)
for i in range(8):
    if i == 4: e('s_add_u32 s8, s8, 4096')
    e('buffer_load_dwordx4 a[%d:%d], v21, %s, s8 offen offset:%d sc1' % (192+4*i, 195+4*i, WS, (i & 3)*1024))
e('s_cmp_lt_u32 s3, 128'); e('s_cbranch_scc1 L_NOUV')
srd(SA, 24, 512*8192)
e('s_and_b32 s8, s3, 3'); e('s_lshl_b32 s8, s8, 7'); e('s_lshl_b32 s9, s4, 5'); e('s_add_u32 s8, s8, s9')
e('v_lshrrev_b32 v20, 1, v3'); e('v_lshlrev_b32 v20, 4, v20'); e('v_and_b32 v22, 1, v3'); e('v_lshlrev_b32 v22, 2, v22'); e('v_add3_u32 v20, v20, v22, s8')
e('v_lshlrev_b32 v20, 13, v20'); e('v_lshlrev_b32 v22, 4, v2')
e('s_sub_u32 s9, s3, 128'); e('s_lshr_b32 s9, s9, 2'); e('s_lshl_b32 s9, s9, 8'); e('v_add3_u32 v20, v20, v22, s9')
for i in range(8):
    e('s_mov_b32 s12, %d' % ((8*(i >> 2) + (i & 3))*8192)); e('buffer_load_dwordx4 v[%d:%d], v20, %s, s12 offen nt' % (WR+4*i, WR+4*i+3, SA))
e('s_waitcnt vmcnt(8)'); e('s_branch L_UVD')
e('L_NOUV:'); e('s_waitcnt vmcnt(0)')
e('L_UVD:')
e('s_lshl_b32 s8, s4, 13'); e('v_add_u32 v20, s8, v%d' % QB)
for i in range(8): e('ds_write_b128 v20, a[%d:%d] offset:%d' % (192+4*i, 195+4*i, i*1024))
barrier()
stamp(6)
D = 6; R = 8
def qk_read(j):
    e('ds_read_b128 a[%d:%d], v%d offset:%d' % (160+4*(j % R), 163+4*(j % R), QB, j*1024))
for j in range(1, D): qk_read(j)
for j in range(32):
    if j+D < 32: qk_read(j+D)
    if j > 0: e('s_waitcnt lgkmcnt(%d)' % min(D, 31-j))
    b = 'a[224:227]' if j == 0 else 'a[%d:%d]' % (160+4*(j % R), 163+4*(j % R))
    e('v_mfma_f32_32x32x16_bf16 v[%d:%d], a[%d:%d], %s, %s' % (S_ACC, S_ACC+15, 4*j, 4*j+3, b, '0' if j == 0 else 'v[%d:%d]' % (S_ACC, S_ACC+15)))
D = 4
astamp(1)
PV1=224; PV2=228
e('v_bfe_u32 v20, v1, 2, 2')
e('v_lshrrev_b32 v22, 5, v1')
e('v_bfe_u32 v23, v1, 4, 1')
e('v_bfe_u32 v24, v1, 1, 1')
e('v_lshl_or_b32 v23, v23, 1, v24')
e('v_xor_b32 v23, v23, v22')
e('v_lshl_or_b32 v23, v20, 2, v23')
e('v_lshlrev_b32 v23, 4, v23')
e('v_and_b32 v24, 1, v1'); e('v_lshlrev_b32 v24, 3, v24')
e('v_lshlrev_b32 v25, 2, v22'); e('v_add_u32 v25, v25, v20'); e('v_lshlrev_b32 v25, 10, v25')
e('s_lshl_b32 s8, s4, 8'); e('v_add3_u32 v23, v23, v24, v25'); e('v_add_u32 v23, s8, v23')
for t in range(4):
    e('v_xor_b32 v%d, %d, v23' % (PV1+t, t << 6))
    e('v_xor_b32 v%d, %d, v23' % (PV2+t, (t << 6) ^ (2 << 4))); e('v_add_u32 v%d, 8192, v%d' % (PV2+t, PV2+t))
s0 = S_ACC
e('v_max3_f32 v26, v%d, v%d, v%d' % (s0, s0+1, s0+2))
for k in range(3, 15, 2): e('v_max3_f32 v26, v26, v%d, v%d' % (s0+k, s0+k+1))
e('v_max_f32 v26, v26, v%d' % (s0+15))
e('v_mov_b32 v27, v26'); nop(2); e('v_permlane32_swap_b32 v26, v27'); nop(1); e('v_max_f32 v26, v26, v27')
astamp(2)
MX = SCR
e('v_and_b32 v20, 31, v1'); e('v_lshlrev_b32 v20, 2, v20'); e('v_add_u32 v20, %d, v20' % MX)
e('s_lshl_b32 s8, s4, 7'); e('v_add_u32 v22, s8, v20')
e('ds_write_b32 v22, v26')
barrier()
for w in range(4): e('ds_read_b32 v%d, v20 offset:%d' % (28+w, 128*w))
e('s_lshl_b32 s8, s4, 11'); e('s_add_u32 s8, s8, 8192'); e('v_add_u32 v23, s8, v%d' % QB)
e('s_waitcnt lgkmcnt(0)')
e('v_max3_f32 v26, v28, v29, v30'); e('v_max_f32 v26, v26, v31')
astamp(3)
e('v_mov_b32 v27, v26'); nop(1)
for k in range(0, 16, 2): e('v_pk_add_f32 v[%d:%d], v[%d:%d], v[26:27] neg_lo:[0,1] neg_hi:[0,1]' % (s0+k, s0+k+1, s0+k, s0+k+1))
for k in range(16): e('v_exp_f32 v%d, v%d' % (s0+k, s0+k))
e('v_pk_add_f32 v[28:29], v[%d:%d], v[%d:%d]' % (s0, s0+1, s0+2, s0+3)); e('v_pk_add_f32 v[30:31], v[%d:%d], v[%d:%d]' % (s0+4, s0+5, s0+6, s0+7))
for k in (8, 12): e('v_pk_add_f32 v[28:29], v[28:29], v[%d:%d]' % (s0+k, s0+k+1)); e('v_pk_add_f32 v[30:31], v[30:31], v[%d:%d]' % (s0+k+2, s0+k+3))
for k in range(8): e('v_cvt_pk_bf16_f32 v%d, v%d, v%d' % (s0+k, s0+2*k, s0+2*k+1))
e('v_pk_add_f32 v[28:29], v[28:29], v[30:31]')
e('ds_write_b128 v23, v[%d:%d]' % (s0, s0+3)); e('ds_write_b128 v23, v[%d:%d] offset:1024' % (s0+4, s0+7))
e('v_add_f32 v27, v28, v29')
e('v_mov_b32 v28, v27'); nop(2); e('v_permlane32_swap_b32 v27, v28'); nop(1); e('v_add_f32 v27, v27, v28')
e('ds_write_b32 v22, v27 offset:512')
barrier()
stamp(7)
for ks in range(8): e('ds_read_b128 a[%d:%d], v%d offset:%d' % (96+4*ks, 99+4*ks, QB, 8192+ks*1024))
for w in range(4): e('ds_read_b32 v%d, v20 offset:%d' % (28+w, 512+128*w))
e('s_waitcnt lgkmcnt(0)')
e('s_barrier')
e('v_add_f32 v27, v28, v29'); e('v_add_f32 v27, v27, v30'); e('v_add_f32 v27, v27, v31')
steps = [(ks, t) for ks in range(8) for t in range(4)]
def pv_read(q):
    ks, t = steps[q]
    if ks == 4 and t == 0:
        for k in range(8): e('v_add_u32 v%d, 0x10000, v%d' % (PV1+k, PV1+k))
    o = (ks & 3)*16384; r = 128 + 4*(q % R)
    e('ds_read_b64_tr_b16 a[%d:%d], v%d offset:%d' % (r, r+1, PV1+t, o))
    e('ds_read_b64_tr_b16 a[%d:%d], v%d offset:%d' % (r+2, r+3, PV2+t, o))
astamp(4)
for q in range(D): pv_read(q)
for q in range(32):
    if q+D < 32: pv_read(q+D)
    out = min(D, 31-q)
    e('s_waitcnt lgkmcnt(%d)' % (2*out))
    ks, t = steps[q]; r = 128 + 4*(q % R)
    e('v_mfma_f32_32x32x16_bf16 v[%d:%d], a[%d:%d], a[%d:%d], %s' % (128+16*t, 128+16*t+15, r, r+3, 96+4*ks, 99+4*ks, '0' if ks == 0 else 'v[%d:%d]' % (128+16*t, 128+16*t+15)))
astamp(5)
e('v_and_b32 v20, 31, v1'); e('v_lshrrev_b32 v22, 5, v1'); e('v_and_b32 v23, 15, v20'); e('v_xor_b32 v23, v23, v22'); e('v_lshlrev_b32 v23, 4, v23')
e('v_lshlrev_b32 v24, 8, v20'); e('s_lshl_b32 s8, s4, 13'); e('s_add_u32 s8, s8, %d' % SCR); e('v_add3_u32 v23, v23, v24, s8')
nop(4)
for s_ in range(8):
    b = 128 + 8*s_
    for k in range(4): e('v_cvt_pk_bf16_f32 v%d, v%d, v%d' % (208+4*(s_ & 1)+k, b+2*k, b+2*k+1))
    e('v_xor_b32 v24, %d, v23' % (s_ << 5))
    e('ds_write_b128 v24, v[%d:%d]' % (208+4*(s_ & 1), 211+4*(s_ & 1)))
stamp(8)
e('v_lshlrev_b32 v21, 4, v1'); e('v_add_u32 v20, s8, v21')
e('s_waitcnt lgkmcnt(0)')
for i in range(8): e('ds_read_b128 v[%d:%d], v20 offset:%d' % (208+4*i, 211+4*i, i*1024))
e('v_lshlrev_b32 v22, 18, v3'); e('v_xor_b32 v23, v2, v3'); e('v_lshlrev_b32 v23, 4, v23')
e('s_lshl_b32 s9, s3, 8'); e('s_add_u32 s9, s9, %d' % WS_PART); e('s_lshl_b32 s10, s4, 16'); e('s_add_u32 s9, s9, s10')
for i in range(8):
    e('v_xor_b32 v24, %d, v23' % ((4*(i & 3)) << 4)); e('v_add_u32 v24, v24, v22')
    e('s_waitcnt lgkmcnt(%d)' % (7-i))
    e('buffer_store_dwordx4 v[%d:%d], v24, %s, s9 offen sc1' % (208+4*i, 211+4*i, WS))
    e('s_add_u32 s9, s9, 0x100000')
astamp(6)
e('v_mov_b32 v128, v26'); e('v_mov_b32 v129, %s' % sN); e('v_mov_b32 v130, v27'); e('v_mov_b32 v131, %s' % sN)
e('v_lshlrev_b32 v20, 14, v1'); e('s_lshl_b32 s8, s3, 4'); e('s_lshl_b32 s9, s4, 12'); e('s_add_u32 s8, s8, s9'); e('s_add_u32 s8, s8, %d' % WS_STATS)
e('v_cmp_gt_u32 vcc, 32, v1')
e('s_waitcnt vmcnt(0)')
astamp(7)
e('s_and_saveexec_b64 s[14:15], vcc')
e('buffer_store_dwordx4 v[128:131], v20, %s, s8 offen sc1' % WS)
e('s_mov_b64 exec, s[14:15]')
e('s_barrier')
stamp(9)
e('s_cmp_lt_u32 s3, 128'); e('s_cbranch_scc1 L_LATE_E')

e('s_sub_u32 s5, s3, 128'); e('s_lshr_b32 s5, s5, 2')
e('s_and_b32 s6, s3, 3')
e('v_lshlrev_b32 v21, 4, v1')
e('s_lshl_b32 s8, s5, 2'); e('s_add_u32 s8, s8, s6'); e('s_lshl_b32 s7, s8, 12'); e('s_add_u32 s7, s7, %d' % WS_STATS)
e('s_lshl_b32 s8, s8, 16'); e('s_add_u32 s8, s8, %d' % WS_PART); e('s_lshl_b32 s9, s4, 14'); e('s_add_u32 s8, s8, s9')
e('v_lshlrev_b32 v20, 12, v3'); e('v_lshl_add_u32 v20, v2, 4, v20')
e('s_lshl_b32 s9, s4, 10'); e('s_add_u32 s9, s9, s7')
pollp(3, lambda k: ['buffer_load_dwordx4 v[%d:%d], v21, %s, s9 offen sc1' % (224+4*k, 227+4*k, WS)], lambda k: [225+4*k, 227+4*k], lambda k: [])
st4 = ['buffer_load_dwordx4 v[%d:%d], v21, %s, s7 offen offset:%d sc1' % (208+4*k, 211+4*k, WS, 1024*k) for k in range(4)]
for x_ in st4: e(x_)
for i in range(16):
    e('buffer_load_dwordx4 v[%d:%d], v20, %s, s8 offen offset:%d sc1' % (64+4*i, 67+4*i, WS, 256*i))
e('s_waitcnt vmcnt(16)')
tagchk([209+2*k for k in range(8)])
e('s_cbranch_vccz L_S4P2')
poll(st4, [209+2*k for k in range(8)], sleep=0)
e('L_S4P2:')
stamp(10)
lstamp(1)
e('v_max3_f32 v22, v208, v212, v216'); e('v_max_f32 v22, v22, v220')
wave_reduce(22, 'max'); e('v_readlane_b32 s9, v22, 63'); nop(2)
for k in range(4):
    e('v_subrev_f32 v%d, s9, v%d' % (208+4*k, 208+4*k)); e('v_exp_f32 v%d, v%d' % (208+4*k, 208+4*k))
nop(1)
e('v_mul_f32 v22, v208, v210')
for k in range(1, 4): e('v_fmac_f32 v22, v%d, v%d' % (208+4*k, 210+4*k))
wave_reduce(22); e('v_readlane_b32 s10, v22, 63')
e('v_mov_b32 v23, v208')
for k in range(1, 4):
    e('s_cmp_eq_u32 s4, %d' % k); e('s_cselect_b64 vcc, -1, 0'); e('v_cndmask_b32 v23, v23, v%d, vcc' % (208+4*k))
e('v_cvt_pk_bf16_f32 v24, v23, v23')
e('v_and_b32 v25, 0xffff0000, v24'); e('v_sub_f32 v25, v23, v25'); e('v_cvt_pk_bf16_f32 v25, v25, v25')
e('v_lshlrev_b32 v26, 2, v0'); e('v_add_u32 v26, %d, v26' % XX)
e('ds_write_b32 v26, v24'); e('ds_write_b32 v26, v25 offset:1024')
e('v_lshrrev_b32 v26, 3, v2'); e('v_lshlrev_b32 v26, 10, v26'); e('v_lshl_add_u32 v26, v3, 6, v26'); e('s_lshl_b32 s9, s4, 8'); e('s_add_u32 s9, s9, %d' % XX); e('v_add_u32 v26, s9, v26')
e('s_waitcnt lgkmcnt(0)')
for k in range(4): e('ds_read_b128 v[%d:%d], v26 offset:%d' % (XR+4*k, XR+4*k+3, 16*k))
e('s_waitcnt lgkmcnt(0)')
lstamp(2)
e('s_waitcnt vmcnt(0)')
gemv(16, 64, XR)
stamp(11)
e('v_lshrrev_b32 v20, 1, v3'); e('s_lshl_b32 s8, s4, 1'); e('v_add_u32 v20, s8, v20'); e('v_lshlrev_b32 v20, 9, v20')
e('v_and_b32 v22, 1, v3'); e('v_lshlrev_b32 v22, 4, v22'); e('v_lshl_add_u32 v22, v2, 5, v22'); e('v_add3_u32 v20, v20, v22, %s' % 's58')
L.insert(len(L)-1, '    s_mov_b32 s58, %d' % RED)
e('ds_write_b128 v20, v[%d:%d]' % (ACC, ACC+3))
barrier()
lstamp(3)
l = lab(); exec_lt(128, l)
e('v_lshlrev_b32 v20, 2, v0'); e('v_add_u32 v22, %d, v20' % RED)
for s in range(8): e('ds_read_b32 v%d, v22 offset:%d' % (XR+s, 512*s))
e('v_mov_b32 v23, s10'); e('v_rcp_f32 v23, v23')
e('s_waitcnt lgkmcnt(0)')
for s in range(1, 8): e('v_add_f32 v%d, v%d, v%d' % (XR, XR, XR+s))
e('v_mul_f32 v23, v23, v%d' % XR); e('v_cvt_pk_bf16_f32 v23, v23, v23')
e('v_add_u32 v20, %d, v20' % XX); e('ds_write_b32 v20, v23')
exec_restore(l)
barrier()
lstamp(4)
e('v_lshlrev_b32 v26, 5, v3'); e('s_lshl_b32 s9, s4, 7'); e('s_add_u32 s9, s9, %d' % XX); e('v_add_u32 v26, s9, v26')
for k in range(2): e('ds_read_b128 v[%d:%d], v26 offset:%d' % (XR+4*k, XR+4*k+3, 16*k))
e('s_waitcnt lgkmcnt(0)')
lstamp(5)
gemv(8, WR, XR)
lstamp(6)

def red_w16(nslot_bytes):
    e('v_and_b32 v22, 1, v3'); e('v_lshlrev_b32 v22, 4, v22'); e('v_lshl_add_u32 v22, v2, 5, v22')
    e('s_mul_i32 s8, s4, %d' % nslot_bytes); e('s_add_u32 s8, s8, %d' % RED); e('v_add_u32 v20, s8, v22')
    e('v_cmp_gt_u32 vcc, 2, v3'); e('s_and_saveexec_b64 s[14:15], vcc')
    e('ds_write_b128 v20, v[%d:%d]' % (ACC, ACC+3))
    e('s_mov_b64 exec, s[14:15]')
    barrier()
def pair_sum_publish(sbase):
    l = lab(); exec_lt(64, l)
    e('v_lshlrev_b32 v20, 3, v0'); e('v_add_u32 v22, %d, v20' % RED)
    for s in range(4): e('ds_read_b64 v[%d:%d], v22 offset:%d' % (XR+2*s, XR+2*s+1, 512*s))
    e('s_waitcnt lgkmcnt(0)')
    for s in range(1, 4):
        e('v_add_f32 v%d, v%d, v%d' % (XR, XR, XR+2*s)); e('v_add_f32 v%d, v%d, v%d' % (XR+1, XR+1, XR+2*s+1))
    e('v_cvt_pk_bf16_f32 v22, v%d, v%d' % (XR, XR+1)); e('v_mov_b32 v23, %s' % sN)
    e('buffer_store_dwordx2 v[22:23], v20, %s, %s offen sc1' % (WS, sbase))
    exec_restore(l)
red_w16(512)
lstamp(7)
e('s_lshl_b32 s9, s5, 2'); e('s_add_u32 s9, s9, s6'); e('s_lshl_b32 s9, s9, 9'); e('s_add_u32 s9, s9, %d' % WS_CTX)
pair_sum_publish('s9')
stamp(12)
e('s_branch L_FIN')

e('L_LATE_E:')
e('s_cmp_ge_u32 s3, 107'); e('s_cbranch_scc1 L_FIN')
e('s_cmp_lt_u32 s3, 67'); e('s_cbranch_scc1 L_LATE_E2')
e('s_sub_u32 s6, s3, 47')
srd(SA, 36, 640*7680); srd(SB, 34, 1280)
e('v_lshrrev_b32 v24, 3, v2'); e('v_lshl_add_u32 v24, v24, 2, v3'); e('v_mul_u32_u24 v24, 20, v24')
e('s_mul_i32 s8, s4, 160'); e('v_add_u32 v24, s8, v24')
e('s_movk_i32 s10, 7680'); e('v_mul_lo_u32 v20, v24, s10'); e('v_and_b32 v21, 7, v2'); e('v_lshlrev_b32 v21, 4, v21')
e('s_lshl_b32 s11, s6, 7'); e('v_add3_u32 v20, v20, v21, s11')
e('v_lshlrev_b32 v21, 3, v0'); e('buffer_load_dwordx2 v[112:113], v21, %s, 0 offen' % SB)
for i in range(20):
    e('s_mov_b32 s12, %d' % (i*7680)); e('buffer_load_dwordx4 v[%d:%d], v20, %s, s12 offen nt' % (WR+4*i, WR+4*i+3, SA))
e('s_waitcnt vmcnt(20)')
unpack(114, 115, 112); unpack(116, 117, 113)
for r in range(114, 118):
    e('v_mul_f32 v28, 0xbfb8aa3b, v%d' % r); e('v_exp_f32 v28, v28'); nop(1)
    e('v_add_f32 v28, 1.0, v28'); e('v_rcp_f32 v28, v28'); nop(1); e('v_mul_f32 v%d, v%d, v28' % (r, r))
e('v_cvt_pk_bf16_f32 v26, v114, v115'); e('v_cvt_pk_bf16_f32 v27, v116, v117')
e('v_perm_b32 v28, v26, v26, %s' % SEL_LO); e('v_perm_b32 v29, v26, v26, %s' % SEL_HI)
e('v_perm_b32 v30, v27, v27, %s' % SEL_LO); e('v_perm_b32 v31, v27, v27, %s' % SEL_HI)
e('v_lshlrev_b32 v21, 4, v0'); e('v_add_u32 v21, %d, v21' % XX)
l = lab(); exec_lt(160, l); e('ds_write_b128 v21, v[28:31]'); exec_restore(l)
barrier()
gemv_w8_tail(20, 0)
l = lab(); exec_lt(32, l)
e('v_lshlrev_b32 v20, 3, v0'); e('v_add_u32 v21, %d, v20' % RED)
for s_ in range(8): e('ds_read_b64 v[%d:%d], v21 offset:%d' % (XR+2*s_, XR+2*s_+1, 256*s_))
e('s_lshl_b32 s8, s6, 8'); e('s_add_u32 s8, s8, %d' % WS_MOD); e('v_mov_b32 v23, %s' % sN)
e('s_waitcnt lgkmcnt(0)')
for s_ in (4, 2, 1):
    for k in range(s_): e('v_pk_add_f32 v[%d:%d], v[%d:%d], v[%d:%d]' % (XR+2*k, XR+2*k+1, XR+2*k, XR+2*k+1, XR+2*(k+s_), XR+2*(k+s_)+1))
e('v_cvt_pk_bf16_f32 v22, v%d, v%d' % (XR, XR+1))
e('buffer_store_dwordx2 v[22:23], v20, %s, s8 offen sc1' % WS)
exec_restore(l)
e('s_branch L_FIN')
e('L_LATE_E2:')
e('s_cmp_ge_u32 s3, 40'); e('s_cbranch_scc1 L_MLP')
e('s_mul_i32 s5, s3, 52'); e('s_lshr_b32 s5, s5, 8')
e('s_mul_i32 s6, s5, 5'); e('s_sub_u32 s6, s3, s6')
srd(SA, 26, 4096*1280)
e('s_lshl_b32 s8, s5, 9'); e('s_lshl_b32 s9, s4, 7'); e('s_add_u32 s8, s8, s9'); e('v_lshl_add_u32 v20, v3, 5, s8')
e('s_movk_i32 s10, 1280'); e('v_mul_lo_u32 v20, v20, s10'); e('s_lshl_b32 s9, s6, 8'); e('v_lshlrev_b32 v22, 4, v2'); e('v_add3_u32 v20, v20, v22, s9')
for i in range(32):
    e('s_mov_b32 s12, %d' % ((i // 3)*3*1280)); e('buffer_load_dwordx4 v[%d:%d], v20, %s, s12 offen offset:%d nt' % (WR+4*i, WR+4*i+3, SA, (i % 3)*1280))
e('s_lshl_b32 s8, s5, 2'); e('s_add_u32 s8, s8, s4'); e('s_lshl_b32 s8, s8, 11'); e('s_add_u32 s8, s8, %d' % WS_CTX)
e('v_lshlrev_b32 v21, 3, v1')
e('s_lshl_b32 s9, s4, 9'); e('s_add_u32 s9, s9, %d' % XX); e('v_add_u32 v25, s9, v21')
e('v_lshlrev_b32 v26, 7, v3'); e('v_add_u32 v26, s9, v26')
e('v_and_b32 v22, 1, v3'); e('v_lshlrev_b32 v22, 4, v22'); e('v_lshl_add_u32 v22, v2, 5, v22')
e('s_lshl_b32 s9, s4, 9'); e('s_add_u32 s9, s9, %d' % RED); e('v_add_u32 v24, s9, v22')
e('v_cmp_gt_u32 s[12:13], 2, v3')
e('s_lshl_b32 s10, s5, 12'); e('s_lshl_b32 s11, s6, 9'); e('s_add_u32 s10, s10, s11'); e('s_add_u32 s10, s10, %d' % WS_X1P)
e('v_lshlrev_b32 v27, 3, v0'); e('v_add_u32 v23, %d, v27' % RED)
st = lambda k: 224 + 8*k
pollp(3, lambda k: ['buffer_load_dwordx2 v[%d:%d], v21, %s, s8 offen offset:%d sc1' % (st(k)+2*j, st(k)+2*j+1, WS, 512*j) for j in range(4)],
      lambda k: [st(k)+1+2*j for j in range(4)], lambda k: [st(k)+2*j for j in range(4)] if k < 3 else [248, 249, 250, 251])
stamp(10)
for k in range(4): unpack(8+2*k, 9+2*k, 248+k)
e('v_pk_add_f32 v[8:9], v[8:9], v[10:11]'); e('v_pk_add_f32 v[12:13], v[12:13], v[14:15]'); e('v_pk_add_f32 v[8:9], v[8:9], v[12:13]')
e('v_cvt_pk_bf16_f32 v28, v8, v9')
e('v_perm_b32 v30, v28, v28, %s' % SEL_LO); e('v_perm_b32 v31, v28, v28, %s' % SEL_HI)
e('ds_write_b64 v25, v[30:31]')
e('s_waitcnt lgkmcnt(0)')
for k in range(8): e('ds_read_b128 v[%d:%d], v26 offset:%d' % (XR+4*k, XR+4*k+3, 16*k))
e('s_waitcnt lgkmcnt(6)')
gemv(32, WR, XR, wait=lambda i: e('s_waitcnt lgkmcnt(%d)' % max(0, 6-(i+2)//4)) if (i % 4 == 2 and i < 28) else None)
e('s_mov_b64 s[14:15], exec'); e('s_mov_b64 exec, s[12:13]')
e('ds_write_b128 v24, v[%d:%d]' % (ACC, ACC+3))
e('s_mov_b64 exec, s[14:15]')
barrier()
l = lab(); exec_lt(64, l)
for s_ in range(4): e('ds_read_b64 v[%d:%d], v23 offset:%d' % (XR+2*s_, XR+2*s_+1, 512*s_))
e('v_mov_b32 v29, %s' % sN)
e('s_waitcnt lgkmcnt(0)')
e('v_pk_add_f32 v[%d:%d], v[%d:%d], v[%d:%d]' % (XR, XR+1, XR, XR+1, XR+2, XR+3)); e('v_pk_add_f32 v[%d:%d], v[%d:%d], v[%d:%d]' % (XR+4, XR+5, XR+4, XR+5, XR+6, XR+7))
e('v_pk_add_f32 v[%d:%d], v[%d:%d], v[%d:%d]' % (XR, XR+1, XR, XR+1, XR+4, XR+5))
e('v_cvt_pk_bf16_f32 v28, v%d, v%d' % (XR, XR+1))
e('buffer_store_dwordx2 v[28:29], v27, %s, s10 offen sc1' % WS)
exec_restore(l)
stamp(12)
e('s_branch L_FIN')

e('L_MLP:')
e('s_sub_u32 s5, s3, 40')
srd(SA, 30, 640*3456)
e('v_lshrrev_b32 v20, 3, v2'); e('v_lshl_add_u32 v20, v20, 2, v3'); e('v_mul_u32_u24 v20, 20, v20')
e('s_mul_i32 s8, s4, 160'); e('v_add_u32 v24, s8, v20')
e('s_movk_i32 s10, 3456'); e('v_mul_lo_u32 v20, v24, s10'); e('v_and_b32 v21, 7, v2'); e('v_lshlrev_b32 v21, 4, v21')
e('s_lshl_b32 s9, s5, 7'); e('v_add3_u32 v20, v20, v21, s9')
for i in range(20):
    e('s_mov_b32 s12, %d' % (i*3456)); e('buffer_load_dwordx4 v[%d:%d], v20, %s, s12 offen nt' % (WR+4*i, WR+4*i+3, SA))
srd(SA, 32, 1728*1280)
e('s_lshl_b32 s8, s5, 6'); e('s_lshl_b32 s9, s4, 4'); e('s_add_u32 s8, s8, s9'); e('v_lshl_add_u32 v20, v3, 2, s8')
e('s_movk_i32 s10, 1280'); e('v_mul_lo_u32 v20, v20, s10'); e('v_lshl_add_u32 v20, v2, 4, v20')
for i in range(4):
    e('s_mov_b32 s12, %d' % (i*1280))
    for cg in range(5):
        r = 112 + 4*(5*i + cg)
        e('buffer_load_dwordx4 v[%d:%d], v20, %s, s12 offen offset:%d nt' % (r, r+3, SA, cg*256))
srd(SB, 16, 1280)
lm = lab(); exec_lt(160, lm)
e('v_lshlrev_b32 v21, 3, v0'); e('buffer_load_dwordx2 v[224:225], v21, %s, 0 offen' % SB)
e('v_lshlrev_b32 v21, 4, v0')
lds_ = []
for q in range(4):
    lds_.append('s_mov_b32 s12, %d' % (WS_MOD + (2+q)*2560))
    lds_.append('buffer_load_dwordx4 v[%d:%d], v21, %s, s12 offen sc1' % (192+4*q, 195+4*q, WS))
poll(lds_, [193+2*k for k in range(8)], sleep=4)
for q in range(4):
    b = 192+4*q; d = 240+4*q
    unpack(d, d+1, b); unpack(d+2, d+3, b+2)
unpack(236, 237, 224); unpack(238, 239, 225)
for k in range(4): e('v_add_f32 v%d, 1.0, v%d' % (248+k, 248+k))
lds_ = []
for kg in range(8):
    lds_.append('s_mov_b32 s12, %d' % (WS_X1P + kg*4096))
    lds_.append('buffer_load_dwordx4 v[%d:%d], v21, %s, s12 offen sc1' % (192+4*kg, 195+4*kg, WS))
X1L = SCR + 16384; GBL = X1L + 4096
e('v_add_u32 v25, %d, v21' % X1L); e('ds_write_b128 v25, v[252:255] offset:4096')
poll(lds_, [193+2*k for k in range(16)], sleep=0)
stamp(10)
unpack(232, 233, 192); unpack(234, 235, 194)
for kg in range(1, 8):
    b = 192+4*kg
    unpack(224, 225, b); unpack(226, 227, b+2)
    e('v_pk_add_f32 v[232:233], v[232:233], v[224:225]'); e('v_pk_add_f32 v[234:235], v[234:235], v[226:227]')
e('v_pk_fma_f32 v[232:233], v[240:241], v[232:233], v[236:237]'); e('v_pk_fma_f32 v[234:235], v[242:243], v[234:235], v[238:239]')
e('v_pk_add_f32 v[22:23], v[232:233], v[234:235]'); e('v_pk_mul_f32 v[28:29], v[232:233], v[232:233]'); e('v_pk_fma_f32 v[28:29], v[234:235], v[234:235], v[28:29]')
e('ds_write_b128 v25, v[232:235]')
e('v_add_f32 v22, v22, v23'); e('v_add_f32 v23, v28, v29')
e('s_branch L_MS1')
e(lm + ':')
e('v_mov_b32 v22, 0'); e('v_mov_b32 v23, 0')
e('L_MS1:')
e('s_mov_b64 exec, s[14:15]')
e('v_cmp_gt_u32 vcc, 160, v0'); nop(2); e('v_cndmask_b32 v22, 0, v22, vcc'); e('v_cndmask_b32 v23, 0, v23, vcc')
for sh in (1, 2, 4, 8):
    nop(1)
    e('v_add_f32_dpp v22, v22, v22 row_shr:%d row_mask:0xf bank_mask:0xf bound_ctrl:0' % sh); e('v_add_f32_dpp v23, v23, v23 row_shr:%d row_mask:0xf bank_mask:0xf bound_ctrl:0' % sh)
nop(1); e('v_add_f32_dpp v22, v22, v22 row_bcast:15 row_mask:0xa bank_mask:0xf'); e('v_add_f32_dpp v23, v23, v23 row_bcast:15 row_mask:0xa bank_mask:0xf')
nop(1); e('v_add_f32_dpp v22, v22, v22 row_bcast:31 row_mask:0xc bank_mask:0xf'); e('v_add_f32_dpp v23, v23, v23 row_bcast:31 row_mask:0xc bank_mask:0xf')
ST = SCR + 3072
e('s_lshl_b32 s10, s4, 3'); e('s_add_u32 s10, s10, %d' % ST); e('v_mov_b32 v20, s10')
e('s_mov_b64 s[14:15], exec'); e('s_mov_b32 exec_lo, 0'); e('s_mov_b32 exec_hi, 0x80000000')
e('ds_write_b64 v20, v[22:23]')
e('s_mov_b64 exec, s[14:15]')
barrier()
e('v_mov_b32 v20, %d' % ST); e('ds_read_b128 v[24:27], v20'); e('ds_read_b128 v[28:31], v20 offset:16')
e('v_lshlrev_b32 v21, 4, v0'); e('v_add_u32 v21, %d, v21' % XX)
e('s_waitcnt lgkmcnt(0)')
e('v_pk_add_f32 v[24:25], v[24:25], v[26:27]'); e('v_pk_add_f32 v[28:29], v[28:29], v[30:31]'); e('v_pk_add_f32 v[22:23], v[24:25], v[28:29]')
e('v_mul_f32 v22, %s, v22' % hex(f2u(1/640.))); e('v_mul_f32 v23, %s, v23' % hex(f2u(1/640.)))
e('v_fma_f32 v23, -v22, v22, v23'); e('v_max_f32 v23, 0, v23'); e('v_add_f32 v23, %s, v23' % hex(f2u(1e-5))); e('v_rsq_f32 v24, v23'); e('v_mov_b32 v23, v22')
lm = lab(); exec_lt(160, lm)
e('v_mov_b32 v25, v24')
for k in (0, 2):
    e('v_pk_add_f32 v[%d:%d], v[%d:%d], v[22:23] neg_lo:[0,1] neg_hi:[0,1]' % (224+k, 225+k, 232+k, 233+k))
    e('v_pk_mul_f32 v[%d:%d], v[%d:%d], v[%d:%d]' % (228+k, 229+k, 248+k, 249+k, 24, 25))
    e('v_pk_fma_f32 v[%d:%d], v[%d:%d], v[%d:%d], v[%d:%d]' % (224+k, 225+k, 224+k, 225+k, 228+k, 229+k, 244+k, 245+k))
e('v_cvt_pk_bf16_f32 v26, v224, v225'); e('v_cvt_pk_bf16_f32 v27, v226, v227')
e('v_perm_b32 v28, v26, v26, %s' % SEL_LO); e('v_perm_b32 v29, v26, v26, %s' % SEL_HI)
e('v_perm_b32 v30, v27, v27, %s' % SEL_LO); e('v_perm_b32 v31, v27, v27, %s' % SEL_HI)
e('ds_write_b128 v21, v[28:31]')
exec_restore(lm)
e('v_lshrrev_b32 v20, 3, v2'); e('v_lshl_add_u32 v22, v20, 2, v3'); e('v_mul_u32_u24 v22, 80, v22')
e('s_mul_i32 s8, s4, 640'); e('s_add_u32 s8, s8, %d' % XX); e('v_add_u32 v21, s8, v22')
e('v_lshrrev_b32 v22, 1, v3'); e('v_cmp_eq_u32 s[12:13], v20, v22')
e('s_lshl_b32 s8, s4, 1'); e('v_add_u32 v20, s8, v20'); e('v_lshlrev_b32 v20, 8, v20')
e('v_and_b32 v22, 7, v2'); e('v_lshlrev_b32 v22, 5, v22'); e('v_and_b32 v23, 1, v3'); e('v_lshlrev_b32 v23, 4, v23')
e('v_add3_u32 v20, v20, v22, v23'); e('v_add_u32 v20, %d, v20' % RED)
barrier()
for i in range(0, 20, 4): e('ds_read_b128 v[%d:%d], v21 offset:%d' % (XR+i, XR+i+3, 4*i))
e('s_waitcnt vmcnt(0) lgkmcnt(3)')
gemv(20, WR, XR, wait=lambda i: e('s_waitcnt lgkmcnt(%d)' % max(0, 3-(i+2)//4)) if (i % 4 == 2 and i < 16) else None)
e('s_mov_b64 s[14:15], exec'); e('s_mov_b64 exec, s[12:13]')
e('ds_write_b128 v20, v[%d:%d]' % (ACC, ACC+3))
e('s_mov_b64 exec, s[14:15]')
XX3 = SCR + 3584
e('v_lshlrev_b32 v20, 2, v0'); e('v_add_u32 v21, %d, v20' % RED); e('v_add_u32 v20, %d, v20' % XX3)
barrier()
l = lab(); exec_lt(64, l)
for s_ in range(8): e('ds_read_b32 v%d, v21 offset:%d' % (XR+s_, 256*s_))
e('s_waitcnt lgkmcnt(0)')
e('v_pk_add_f32 v[%d:%d], v[%d:%d], v[%d:%d]' % (XR, XR+1, XR, XR+1, XR+4, XR+5)); e('v_pk_add_f32 v[%d:%d], v[%d:%d], v[%d:%d]' % (XR+2, XR+3, XR+2, XR+3, XR+6, XR+7))
e('v_pk_add_f32 v[%d:%d], v[%d:%d], v[%d:%d]' % (XR, XR+1, XR, XR+1, XR+2, XR+3)); e('v_add_f32 v22, v%d, v%d' % (XR, XR+1))
e('v_max_f32 v22, 0, v22'); e('v_cvt_pk_bf16_f32 v22, v22, v22')
e('ds_write_b32 v20, v22')
exec_restore(l)
barrier()
stamp(11)
e('v_lshlrev_b32 v20, 4, v3'); e('s_lshl_b32 s8, s4, 6'); e('s_add_u32 s8, s8, %d' % XX3); e('v_add_u32 v20, s8, v20')
e('ds_read_b128 v[%d:%d], v20' % (XR, XR+3))
e('s_waitcnt lgkmcnt(0)')
AF = 208
for i in range(4):
    for d in range(4): e('v_and_b32 v%d, v%d, v%d' % (AF+4*i+d, XR+i, MK[d]))
nop(2)
AC2 = 224
for i in range(4):
    for cg in range(5):
        r = 112 + 4*(5*i+cg); a = AC2+4*cg
        e('v_mfma_f32_16x16x32_bf16 v[%d:%d], v[%d:%d], v[%d:%d], %s' % (a, a+3, AF+4*i, AF+4*i+3, r, r+3, '0' if i == 0 else 'v[%d:%d]' % (a, a+3)))
nop(8)
e('v_and_b32 v22, 1, v3'); e('v_lshlrev_b32 v22, 4, v22'); e('v_lshl_add_u32 v22, v2, 5, v22')
e('s_mul_i32 s8, s4, 2560'); e('s_add_u32 s8, s8, %d' % RED); e('v_add_u32 v20, s8, v22')
e('v_cmp_gt_u32 vcc, 2, v3'); e('s_and_saveexec_b64 s[14:15], vcc')
for cg in range(5): e('ds_write_b128 v20, v[%d:%d] offset:%d' % (AC2+4*cg, AC2+4*cg+3, 512*cg))
e('s_mov_b64 exec, s[14:15]')
barrier()
l = lab(); exec_lt(160, l)
e('v_lshlrev_b32 v21, 4, v0'); e('v_add_u32 v20, %d, v21' % RED)
for s in range(4): e('ds_read_b128 v[%d:%d], v20 offset:%d' % (XR+4*s, XR+4*s+3, 2560*s))
e('s_waitcnt lgkmcnt(0)')
for s in range(1, 4):
    for k in range(4): e('v_add_f32 v%d, v%d, v%d' % (XR+k, XR+k, XR+4*s+k))
e('v_mov_b32 v208, v192'); e('v_mov_b32 v209, %s' % sN); e('v_mov_b32 v210, v193'); e('v_mov_b32 v211, %s' % sN)
e('v_mov_b32 v212, v194'); e('v_mov_b32 v213, %s' % sN); e('v_mov_b32 v214, v195'); e('v_mov_b32 v215, %s' % sN)
e('v_lshlrev_b32 v20, 5, v0'); e('s_lshl_b32 s8, s5, 13'); e('s_add_u32 s8, s8, %d' % WS_MLP)
e('buffer_store_dwordx4 v[208:211], v20, %s, s8 offen sc1' % WS); e('buffer_store_dwordx4 v[212:215], v20, %s, s8 offen offset:16 sc1' % WS)
exec_restore(l)
stamp(12)
e('s_cmp_ge_u32 s5, 20'); e('s_cbranch_scc1 L_FIN')
e('v_and_b32 v20, 31, v0'); e('v_lshrrev_b32 v21, 5, v0')
e('v_lshlrev_b32 v22, 13, v21'); e('v_lshl_add_u32 v22, v20, 3, v22')
e('s_lshl_b32 s8, s5, 8'); e('s_add_u32 s8, s8, %d' % WS_MLP)
e('v_cmp_gt_u32 vcc, 3, v21'); e('v_add_u32 v23, %d, v22' % (24*8192)); nop(1); e('v_cndmask_b32 v23, v22, v23, vcc')
e('s_add_u32 s9, s8, %d' % (8*8192)); e('s_add_u32 s10, s8, %d' % (16*8192))
e('s_mov_b64 s[12:13], vcc')
st = lambda k: 216 + 8*k
pollp(3, lambda k: ['buffer_load_dwordx2 v[%d:%d], v%d, %s, %s offen sc1' % (st(k)+2*j, st(k)+2*j+1, a_, WS, so) for j, (a_, so) in enumerate([(22, 's8'), (22, 's9'), (22, 's10'), (23, 's8')])],
      lambda k: [st(k)+1+2*j for j in range(4)], lambda k: [st(k)+2*j for j in range(4)] if k < 3 else [192, 194, 196, 198])
stamp(13)
e('v_cndmask_b32 v198, 0, v198, s[12:13]')
e('v_add_f32 v192, v192, v194'); e('v_add_f32 v196, v196, v198'); e('v_add_f32 v192, v192, v196')
FR = SCR + 24576
e('v_lshlrev_b32 v22, 2, v0'); e('v_add_u32 v22, %d, v22' % FR); e('ds_write_b32 v22, v192')
barrier()
l = lab(); exec_lt(16, l)
e('v_lshlrev_b32 v20, 3, v0'); e('v_add_u32 v22, %d, v20' % FR)
for p in range(8): e('ds_read_b64 v[%d:%d], v22 offset:%d' % (192+2*p, 193+2*p, 128*p))
e('s_lshl_b32 s8, s5, 7'); e('s_add_u32 s8, s8, %d' % X1L); e('v_add_u32 v23, s8, v20')
e('ds_read_b64 v[208:209], v23'); e('ds_read_b64 v[210:211], v23 offset:4096')
e('s_waitcnt lgkmcnt(0)')
for p in range(1, 8): e('v_add_f32 v192, v192, v%d' % (192+2*p)); e('v_add_f32 v193, v193, v%d' % (193+2*p))
e('v_fma_f32 v192, v210, v192, v208'); e('v_fma_f32 v193, v211, v193, v209')
e('v_cvt_pk_bf16_f32 v192, v192, v193')
srd(SA, 38, 1280)
e('v_lshlrev_b32 v20, 2, v0'); e('s_lshl_b32 s8, s5, 6')
e('buffer_store_dword v192, v20, %s, s8 offen' % SA)
exec_restore(l)
e('s_cmp_lg_u32 s3, 40'); e('s_cbranch_scc1 L_FIN')
l = lab(); exec_lt(1, l)
e('v_mov_b32 v20, 0'); e('v_mov_b32 v22, s97'); e('buffer_store_dword v22, v20, %s, 0 offen sc1' % WS)
exec_restore(l)
e('L_FIN:')
if STAMPS:
    stamp(14)
    e('s_waitcnt lgkmcnt(0)')
    l = lab(); exec_lt(1, l)
    e('s_lshl_b32 s8, s3, 6'); e('s_add_u32 s8, s8, %d' % WS_STAMP); e('v_mov_b32 v20, 0')
    for k in range(0, 16, 4):
        for j in range(4): e('v_mov_b32 v%d, s%d' % (24+j, 60+2*(k+j)))
        e('buffer_store_dwordx4 v[24:27], v20, %s, s8 offen offset:%d' % (WS, 4*k)); nop(2)
    exec_restore(l)
e('L_END:')
e('s_endpgm')
L.append('.section .rodata,"a"')
L.append('.p2align 6')
L.append('.amdhsa_kernel %s_kernel' % NAME)
for k, v in [('next_free_vgpr', 512), ('next_free_sgpr', 102), ('accum_offset', 256), ('group_segment_fixed_size', 0), ('kernarg_size', 112),
             ('user_sgpr_count', 2), ('user_sgpr_kernarg_segment_ptr', 1), ('system_sgpr_workgroup_id_x', 1)]:
    L.append('  .amdhsa_%s %d' % (k, v))
L.append('.end_amdhsa_kernel')
open(OUT, 'w').write('\n'.join(L) + '\n')
print('wrote', OUT, len(L), 'lines')
```

```python
import sys
def ARG(k,d):
    for a in sys.argv[1:]:
        if a.startswith('--%s='%k): return a.split('=')[1]
    return d
NAME = "adaLN_cond__compressed_kv_cla__dense_activation_relu__decode"
STAMPS = '--stamps' in sys.argv
OUT = [a for a in sys.argv[1:] if not a.startswith('--')]
OUT = OUT[0] if OUT else 'cdna_kernels/%s.s' % NAME

L = []
def e(s=''):
    for ln in s.split('\n'):
        L.append('    ' + ln.strip() if ln.strip() and not ln.strip().endswith(':') else ln.strip())
_lab = [0]
def lab(p='L'):
    _lab[0] += 1
    return '%s_%d' % (p, _lab[0])
def nop(n):
    while n > 0:
        k = min(n, 16); e('s_nop %d' % (k-1)); n -= k

WS_GEN=0; WS_MOD=0x1000; MOD_KH=0x4000; WS_Q=0x10000; WS_QAF=0x20000; WS_QA=0x28000
WS_STATS=0x900000; WS_CTX=0x60000; WS_X1P=0x70000; WS_MLP=0x80000; WS_STAMP=0xC0000; WS_PART=0x100000
WS_SIZE=0x980000
SCR=131072
XX=SCR; RED=SCR+4096
QSCALE = (128**-0.5)*1.4426950408889634
import struct
def f2u(f): return struct.unpack('<I', struct.pack('<f', f))[0]

sID='s3'; sW='s4'; sN='s42'; WS='s[44:47]'; SA='s[48:51]'; SB='s[52:55]'
SEL_LO='s56'; SEL_HI='s57'
vT='v0'; vL='v1'; vN='v2'; vG='v3'
MK=[4,5,6,7]; AB=[8,12]; ACC=16
WR=32; XR=192

nst=[0]
LATE = '--late' in sys.argv
ATT = '--att' in sys.argv
EARLY = '--early' in sys.argv
def estamp(k, wait=None):
    if STAMPS and EARLY:
        if wait is not None: e('s_waitcnt vmcnt(%d)' % wait)
        e('s_memrealtime s[%d:%d]' % (60+2*k, 61+2*k))
def stamp(k):
    if EARLY and 5 <= k <= 8: return
    if STAMPS and not ((LATE or ATT) and 1 <= k <= 8): e('s_memrealtime s[%d:%d]' % (60+2*k, 61+2*k))
def lstamp(k):
    if STAMPS and LATE: e('s_memrealtime s[%d:%d]' % (60+2*k, 61+2*k))
def astamp(k):
    if STAMPS and ATT: e('s_memrealtime s[%d:%d]' % (60+2*k, 61+2*k))

def srd(q, plo, size, add=None):
    b = int(q[2:q.index(':')])
    if add is None:
        e('s_mov_b32 s%d, s%d' % (b, plo)); e('s_mov_b32 s%d, s%d' % (b+1, plo+1))
    else:
        e('s_add_u32 s%d, s%d, %s' % (b, plo, add)); e('s_addc_u32 s%d, s%d, 0' % (b+1, plo+1))
    e('s_mov_b32 s%d, %d' % (b+2, size)); e('s_mov_b32 s%d, 0x20000' % (b+3))

def gemv(n, wbase, xbase, acc=ACC, wait=None):
    def ands(i):
        a = AB[i & 1]
        for d in range(4): e('v_and_b32 v%d, v%d, v%d' % (a+d, xbase+i, MK[d]))
    ands(0)
    for i in range(n):
        if i+1 < n: ands(i+1)
        else: nop(2)
        if wait: wait(i)
        a = AB[i & 1]
        c = '0' if i == 0 else 'v[%d:%d]' % (acc, acc+3)
        e('v_mfma_f32_16x16x32_bf16 v[%d:%d], v[%d:%d], v[%d:%d], %s' % (acc, acc+3, a, a+3, wbase+4*i, wbase+4*i+3, c))
    nop(8)

def wave_reduce(v, op='add', tmp=None):
    ins = 'v_add_f32_dpp' if op == 'add' else 'v_max_f32_dpp'
    for sh in (1,2,4,8):
        nop(2)
        if op == 'add': e('%s v%d, v%d, v%d row_shr:%d row_mask:0xf bank_mask:0xf bound_ctrl:0' % (ins, v, v, v, sh))
        else: e('%s v%d, v%d, v%d row_shr:%d row_mask:0xf bank_mask:0xf' % (ins, v, v, v, sh))
    nop(2); e('%s v%d, v%d, v%d row_bcast:15 row_mask:0xa bank_mask:0xf' % (ins, v, v, v))
    nop(2); e('%s v%d, v%d, v%d row_bcast:31 row_mask:0xc bank_mask:0xf' % (ins, v, v, v))
    nop(1)

def tagchk(tags):
    e('v_sad_u32 v30, v%d, %s, 0' % (tags[0], sN))
    for t in tags[1:]: e('v_sad_u32 v30, v%d, %s, v30' % (t, sN))
    e('v_cmp_ne_u32 vcc, 0, v30')
def poll(loads, tags, sleep=1, pre=None):
    l0 = lab('P'); l1 = lab('PD')
    e(l0 + ':')
    for s_ in loads: e(s_)
    e('s_waitcnt vmcnt(0)')
    tagchk(tags)
    e('s_cbranch_vccz %s' % l1)
    e('s_sub_u32 s59, s59, 1')
    e('s_cbranch_scc1 L_END')
    if sleep: e('s_sleep %d' % sleep)
    e('s_branch %s' % l0)
    e(l1 + ':')
def pollp(K, loads, tags, regs, sleep=0):
    P = sum(1 for x in loads(0) if x.startswith('buffer_'))
    l0 = lab('P'); ld = lab('PD'); dn = [lab('PK') for _ in range(K)]
    for k in range(K):
        for s_ in loads(k): e(s_)
    e(l0 + ':')
    for k in range(K):
        e('s_waitcnt vmcnt(%d)' % ((K-1)*P))
        tagchk(tags(k))
        e('s_cbranch_vccz %s' % dn[k])
        if k == 0:
            e('s_sub_u32 s59, s59, 1'); e('s_cbranch_scc1 L_END')
        if sleep: e('s_sleep %d' % sleep)
        for s_ in loads(k): e(s_)
    e('s_branch %s' % l0)
    for k in range(K-1, 0, -1):
        e(dn[k] + ':')
        e('s_waitcnt vmcnt(%d)' % ((K-1-k)*P if False else 0)) if False else None
        for d_, s_ in zip(regs(K), regs(k)): e('v_mov_b32 v%d, v%d' % (d_, s_))
        e('s_branch %s' % ld)
    e(dn[0] + ':')
    for d_, s_ in zip(regs(K), regs(0)): e('v_mov_b32 v%d, v%d' % (d_, s_))
    e(ld + ':')

def exec_lt(n, lbl):
    e('v_cmp_gt_u32 vcc, %d, %s' % (n, vT)); e('s_and_saveexec_b64 s[14:15], vcc'); e('s_cbranch_execz %s' % lbl)
def exec_restore(lbl):
    e(lbl + ':'); e('s_mov_b64 exec, s[14:15]')

def unpack(lo, hi, src):
    e('v_lshlrev_b32 v%d, 16, v%d' % (lo, src)); e('v_and_b32 v%d, 0xffff0000, v%d' % (hi, src))

def barrier(lds=True):
    if lds: e('s_waitcnt lgkmcnt(0)')
    e('s_barrier')

def hash_nonce():
    e('s_waitcnt lgkmcnt(0)')
    e('s_mul_i32 s8, %s, 0x9e3779b1' % sN); e('s_add_u32 s97, s8, 0x7f4a7c15')
    e('s_and_b32 %s, s97, 0xbfffbfff' % sN)

def swz(k): return ((k & 3) << 2) | ((k >> 2) & 3)
S1_A, S2_A = int(ARG('s1a',0)), int(ARG('s2a',8))
def dma_setup():
    e('s_lshl_b32 s8, s3, 17')
    srd('s[92:95]', 18, 131072, add='s8')
    e('v_lshlrev_b32 v19, 4, v1')
    e('s_lshl_b32 s96, s4, 15')
def dma_rows(r0, r1):
    e('v_lshlrev_b32 v31, 4, v1')
    for r in range(r0, r1):
        e('s_mov_b32 m0, s96')
        e('v_xor_b32 v30, %d, v31' % (swz(r) << 4))
        e('buffer_load_dwordx4 v30, s[92:95], s96 offen nt lds')
        e('s_add_u32 s96, s96, 1024')

L[-1] = L[-1].strip()
L.append('; @launch grid=(256,1,1) block=(256,1,1) lds=163840')
L.append('.amdgcn_target "amdgcn-amd-amdhsa--gfx950"')
L.append('.text')
L.append('.globl %s_kernel' % NAME)
L.append('.p2align 8')
L.append('.type %s_kernel,@function' % NAME)
L.append('%s_kernel:' % NAME)
e('s_cmp_ge_u32 s2, 256')
e('s_cbranch_scc1 L_END')
stamp(0)
if '--dbg' in sys.argv:
    for k in range(1, 16): e('s_mov_b32 s%d, 0' % (60+2*k))
e('s_load_dwordx16 s[16:31], s[0:1], 0')
e('s_load_dwordx8 s[32:39], s[0:1], 64')
e('s_load_dwordx2 s[40:41], s[0:1], 104')
e('s_sub_u32 s3, s2, 40'); e('s_add_u32 s5, s2, 192'); e('s_cmp_lt_u32 s2, 40'); e('s_cselect_b32 s3, s5, s3')
e('s_cmp_ge_u32 s2, 232'); e('s_cselect_b32 s3, s2, s3')
e('v_and_b32 v1, 63, v0')
e('v_and_b32 v2, 15, v0')
e('v_bfe_u32 v3, v0, 4, 2')
e('v_lshrrev_b32 v20, 6, v0')
e('s_mov_b32 s56, 0x01000100')
e('s_mov_b32 s57, 0x03020302')
e('s_mov_b32 s59, 0x10000')
e('v_readfirstlane_b32 s4, v20')
def masks():
    e('v_and_b32 v20, 1, v0'); e('v_lshlrev_b32 v20, 4, v20'); e('v_mov_b32 v21, 0xffff'); e('v_lshlrev_b32 v21, v20, v21')
    e('v_bfe_u32 v22, v0, 1, 2')
    for d in range(4):
        e('v_cmp_eq_u32 vcc, %d, v22' % d); nop(2); e('v_cndmask_b32 v%d, 0, v21, vcc' % MK[d])
e('v_lshrrev_b32 v24, 3, v2'); e('v_lshl_add_u32 v24, v24, 2, v3'); e('v_mul_u32_u24 v24, 10, v24')
e('s_mul_i32 s8, s4, 80'); e('v_add_u32 v24, s8, v24')
e('s_waitcnt lgkmcnt(0)')
e('s_load_dword s42, s[40:41], 0')
srd(WS, 40, WS_SIZE)
e('s_cmp_lt_u32 s3, 128'); e('s_cbranch_scc1 L_S1')
e('s_cmp_lt_u32 s3, 192'); e('s_cbranch_scc1 L_S2ONLY')
e('s_cmp_ge_u32 s3, 232'); e('s_cbranch_scc1 L_NOS0')

UK = 72
def s2_issue():
    e('s_sub_u32 s8, s3, 128'); e('s_lshr_b32 s8, s8, 1'); e('s_and_b32 s9, s3, 1')
    srd(SB, 22, 512*8192)
    e('s_lshl_b32 s9, s9, 8'); e('s_lshl_b32 s10, s4, 6'); e('s_add_u32 s9, s9, s10')
    e('v_add_u32 v20, s9, v2'); e('v_lshlrev_b32 v20, 13, v20'); e('v_lshlrev_b32 v21, 4, v3')
    e('s_lshl_b32 s10, s8, 8'); e('v_add3_u32 v20, v20, v21, s10')
    for tt in range(4):
        e('s_mov_b32 s12, %d' % (tt*16*8192))
        for ks in range(4):
            r = UK + 16*tt + 4*ks
            e('buffer_load_dwordx4 v[%d:%d], v20, %s, s12 offen offset:%d nt' % (r, r+3, SB, ks*64))
def s0_issue():
    e('s_lshr_b32 s6, s5, 1'); e('s_and_b32 s7, s5, 1')
    srd(SA, 36, 640*7680); srd(SB, 34, 1280)
    e('s_mul_i32 s9, s7, 320'); e('v_add_u32 v20, s9, v24')
    e('s_movk_i32 s10, 7680'); e('v_mul_lo_u32 v20, v20, s10')
    e('v_and_b32 v21, 7, v2'); e('v_lshlrev_b32 v21, 4, v21')
    e('s_lshl_b32 s11, s6, 7'); e('v_add3_u32 v20, v20, v21, s11')
    e('v_lshlrev_b32 v21, 2, v0'); e('s_mul_i32 s12, s7, 640')
    e('buffer_load_dword v25, v21, %s, s12 offen' % SB)
    for i in range(10):
        e('s_mov_b32 s12, %d' % (i*7680)); e('buffer_load_dwordx4 v[%d:%d], v20, %s, s12 offen nt' % (WR+4*i, WR+4*i+3, SA))
def gemv_w8_tail(nx, vm=0, rowreg=24):
    e('v_lshlrev_b32 v21, 2, v%d' % rowreg); e('v_add_u32 v21, %d, v21' % XX)
    for i in range(0, nx, 2): e('ds_read_b64 v[%d:%d], v21 offset:%d' % (XR+i, XR+i+1, 4*i))
    e('v_lshrrev_b32 v20, 3, v2'); e('v_lshrrev_b32 v21, 1, v3'); e('v_cmp_eq_u32 s[12:13], v20, v21')
    e('s_lshl_b32 s8, s4, 1'); e('v_add_u32 v20, s8, v20'); e('v_lshlrev_b32 v20, 8, v20')
    e('v_and_b32 v21, 7, v2'); e('v_lshlrev_b32 v21, 5, v21'); e('v_and_b32 v22, 1, v3'); e('v_lshlrev_b32 v22, 4, v22')
    e('v_add3_u32 v20, v20, v21, v22'); e('v_add_u32 v20, %d, v20' % RED)
    e('s_waitcnt vmcnt(%d) lgkmcnt(0)' % vm)
    gemv(nx, WR, XR)
    e('s_mov_b64 s[14:15], exec'); e('s_mov_b64 exec, s[12:13]')
    e('ds_write_b128 v20, v[%d:%d]' % (ACC, ACC+3))
    e('s_mov_b64 exec, s[14:15]')
    barrier()
def s0_finish(vm):
    e('s_waitcnt vmcnt(%d)' % (10+vm))
    unpack(26, 27, 25)
    for r in (26, 27):
        e('v_mul_f32 v28, 0xbfb8aa3b, v%d' % r); e('v_exp_f32 v28, v28'); nop(1)
        e('v_add_f32 v28, 1.0, v28'); e('v_rcp_f32 v28, v28'); nop(1); e('v_mul_f32 v%d, v%d, v28' % (r, r))
    e('v_cvt_pk_bf16_f32 v26, v26, v27')
    e('v_perm_b32 v28, v26, v26, %s' % SEL_LO); e('v_perm_b32 v29, v26, v26, %s' % SEL_HI)
    e('v_lshlrev_b32 v21, 3, v0'); e('v_add_u32 v21, %d, v21' % XX)
    l = lab(); exec_lt(160, l); e('ds_write_b64 v21, v[28:29]'); exec_restore(l)
    barrier()
    gemv_w8_tail(10, vm)
    l = lab(); exec_lt(32, l)
    e('v_lshlrev_b32 v20, 3, v0'); e('v_add_u32 v21, %d, v20' % RED)
    for s_ in range(8): e('ds_read_b64 v[%d:%d], v21 offset:%d' % (XR+2*s_, XR+2*s_+1, 256*s_))
    e('s_lshl_b32 s8, s7, 14'); e('s_lshl_b32 s9, s6, 8'); e('s_add_u32 s8, s8, s9'); e('s_add_u32 s8, s8, %d' % WS_MOD)
    e('v_mov_b32 v23, %s' % sN)
    e('s_waitcnt lgkmcnt(0)')
    for s_ in (4, 2, 1):
        for k in range(s_): e('v_pk_add_f32 v[%d:%d], v[%d:%d], v[%d:%d]' % (XR+2*k, XR+2*k+1, XR+2*k, XR+2*k+1, XR+2*(k+s_), XR+2*(k+s_)+1))
    e('v_cvt_pk_bf16_f32 v22, v%d, v%d' % (XR, XR+1))
    e('buffer_store_dwordx2 v[22:23], v20, %s, s8 offen sc1' % WS)
    exec_restore(l)

e('s_sub_u32 s5, s3, 192')
s0_issue()
masks()
hash_nonce()
s0_finish(0)
stamp(1)
dma_setup(); dma_rows(0, 32)
e('s_branch L_DMA_D')

e('L_S1:')
e('s_lshr_b32 s5, s3, 2'); e('s_bfe_u32 s6, s3, 0x10001'); e('s_and_b32 s7, s3, 1')
srd(SA, 20, 640*8192); srd(SB, 16, 1280)
e('s_mul_i32 s9, s7, 320'); e('v_add_u32 v20, s9, v24'); e('v_lshlrev_b32 v20, 13, v20')
e('v_and_b32 v21, 7, v2'); e('v_lshlrev_b32 v21, 4, v21')
e('s_lshl_b32 s10, s5, 8'); e('s_lshl_b32 s11, s6, 7'); e('s_add_u32 s10, s10, s11'); e('v_add3_u32 v20, v20, v21, s10')
e('v_mul_u32_u24 v21, 20, v1')
e('buffer_load_dwordx4 v[104:107], v21, %s, 0 offen' % SB); e('buffer_load_dword v108, v21, %s, 0 offen offset:16' % SB)
e('v_lshlrev_b32 v21, 2, v0'); e('s_mul_i32 s12, s7, 640'); e('buffer_load_dword v109, v21, %s, s12 offen' % SB)
e('v_mov_b32 v23, v20')
masks()
e('s_waitcnt vmcnt(0)')
for k in range(5): unpack(110+2*k, 111+2*k, 104+k)
e('v_add_f32 v20, v110, v111')
for k in range(2, 10): e('v_add_f32 v20, v20, v%d' % (110+k))
wave_reduce(20); e('v_readlane_b32 s8, v20, 63'); nop(2)
e('v_mov_b32 v21, s8'); e('v_mul_f32 v21, %s, v21' % hex(f2u(1/640.)))
e('v_mov_b32 v20, 0')
for k in range(10):
    e('v_sub_f32 v22, v%d, v21' % (110+k)); e('v_fmac_f32 v20, v22, v22')
wave_reduce(20); e('v_readlane_b32 s8, v20, 63'); nop(2)
e('v_mov_b32 v22, s8'); e('v_mul_f32 v22, %s, v22' % hex(f2u(1/640.))); e('v_add_f32 v22, %s, v22' % hex(f2u(1e-5)))
e('v_rsq_f32 v22, v22'); nop(1)
for i in range(10):
    e('s_mov_b32 s12, %d' % (i*8192)); e('buffer_load_dwordx4 v[%d:%d], v23, %s, s12 offen nt' % (WR+4*i, WR+4*i+3, SA))
dma_setup(); dma_rows(0, S1_A)
unpack(110, 111, 109)
for r in (110, 111):
    e('v_sub_f32 v%d, v%d, v21' % (r, r)); e('v_mul_f32 v%d, v%d, v22' % (r, r))
hash_nonce()
estamp(5, S1_A)
l = lab(); exec_lt(160, l)
e('v_lshlrev_b32 v20, 3, v0'); e('s_mul_i32 s8, s7, 1280'); e('s_add_u32 s8, s8, %d' % WS_MOD)
e('s_add_u32 s9, s8, 2560'); e('s_add_u32 s10, s8, %d' % MOD_KH); e('s_add_u32 s11, s9, %d' % MOD_KH)
st = lambda k: 112 + 8*k
pollp(3, lambda k: ['buffer_load_dwordx2 v[%d:%d], v20, %s, %s offen sc1' % (st(k)+2*j, st(k)+2*j+1, WS, so) for j, so in enumerate(['s8', 's10', 's9', 's11'])],
      lambda k: [st(k)+1, st(k)+3, st(k)+5, st(k)+7], lambda k: [st(k), st(k)+2, st(k)+4, st(k)+6] if k < 3 else [136, 137, 138, 139])
unpack(140, 141, 136); unpack(142, 143, 137); unpack(144, 145, 138); unpack(146, 147, 139)
e('v_pk_add_f32 v[140:141], v[140:141], v[142:143]'); e('v_pk_add_f32 v[144:145], v[144:145], v[146:147]')
e('v_fma_f32 v140, v110, v144, v140'); e('v_fma_f32 v141, v111, v145, v141')
e('v_add_f32 v140, v140, v110'); e('v_add_f32 v141, v141, v111')
e('v_cvt_pk_bf16_f32 v26, v140, v141')
e('v_perm_b32 v28, v26, v26, %s' % SEL_LO); e('v_perm_b32 v29, v26, v26, %s' % SEL_HI)
e('v_add_u32 v21, %d, v20' % XX); e('ds_write_b64 v21, v[28:29]')
exec_restore(l)
stamp(1)
barrier()
gemv_w8_tail(10, S1_A)
l = lab(); exec_lt(64, l)
e('v_lshlrev_b32 v20, 2, v0'); e('v_add_u32 v20, %d, v20' % RED)
for s_ in range(8): e('ds_read_b32 v%d, v20 offset:%d' % (XR+s_, 256*s_))
e('s_lshl_b32 s8, s5, 11'); e('s_lshl_b32 s9, s7, 10'); e('s_add_u32 s8, s8, s9'); e('s_lshl_b32 s9, s6, 9'); e('s_add_u32 s8, s8, s9'); e('s_add_u32 s8, s8, %d' % WS_Q)
e('v_mov_b32 v23, %s' % sN); e('v_lshlrev_b32 v20, 3, v0')
e('s_waitcnt lgkmcnt(0)')
for s_ in (2, 1):
    for k in range(s_): e('v_pk_add_f32 v[%d:%d], v[%d:%d], v[%d:%d]' % (XR+2*k, XR+2*k+1, XR+2*k, XR+2*k+1, XR+2*(k+s_), XR+2*(k+s_)+1)) if s_ == 2 else None
e('v_pk_add_f32 v[%d:%d], v[%d:%d], v[%d:%d]' % (XR, XR+1, XR, XR+1, XR+2, XR+3)); e('v_add_f32 v22, v%d, v%d' % (XR, XR+1))
e('buffer_store_dwordx2 v[22:23], v20, %s, s8 offen sc1' % WS)
exec_restore(l)
stamp(2)
dma_rows(S1_A, 32)
e('s_branch L_DMA_D')

def s2_finish():
    e('s_sub_u32 s5, s3, 128'); e('s_lshr_b32 s5, s5, 1'); e('s_and_b32 s6, s3, 1')
    l = lab(); exec_lt(128, l)
    e('v_lshlrev_b32 v20, 3, v0'); e('s_lshl_b32 s8, s5, 11'); e('s_add_u32 s8, s8, %d' % WS_Q); e('s_add_u32 s9, s8, 1024')
    st = lambda k: 140 + 4*k
    pollp(3, lambda k: ['buffer_load_dwordx2 v[%d:%d], v20, %s, %s offen sc1' % (st(k)+2*j, st(k)+2*j+1, WS, so) for j, so in enumerate(['s8', 's9'])],
          lambda k: [st(k)+1, st(k)+3], lambda k: [st(k), st(k)+2] if k < 3 else [136, 137], sleep=1)
    e('v_add_f32 v136, v136, v137'); e('v_cvt_pk_bf16_f32 v136, v136, v136')
    e('v_lshlrev_b32 v21, 1, v0'); e('v_add_u32 v21, %d, v21' % XX); e('ds_write_b16 v21, v136')
    exec_restore(l)
    stamp(2)
    barrier()
    e('v_lshlrev_b32 v21, 4, v3'); e('v_add_u32 v21, %d, v21' % XX)
    for ks in range(4): e('ds_read_b128 v[%d:%d], v21 offset:%d' % (XR+4*ks, XR+4*ks+3, 64*ks))
    e('s_lshl_b32 s8, s6, 4'); e('s_lshl_b32 s9, s4, 2'); e('s_add_u32 s8, s8, s9'); e('s_lshl_b32 s8, s8, 10')
    e('s_lshl_b32 s9, s5, 4'); e('s_add_u32 s8, s8, s9'); e('s_add_u32 s8, s8, %d' % WS_QA)
    e('v_lshlrev_b32 v20, 10, v2'); e('v_lshrrev_b32 v21, 1, v3'); e('v_lshlrev_b32 v21, 9, v21'); e('v_and_b32 v24, 1, v3'); e('v_lshlrev_b32 v24, 3, v24')
    e('v_add3_u32 v20, v20, v21, v24')
    e('v_cmp_eq_u32 s[10:11], 1, v2'); e('v_cmp_eq_u32 s[12:13], 2, v2'); e('v_cmp_eq_u32 s[14:15], 3, v2')
    e('s_mov_b32 s9, %s' % hex(f2u(QSCALE)))
    e('s_waitcnt vmcnt(%d) lgkmcnt(0)' % S2_A)
    for ks in range(4):
        for tt in range(4):
            r = UK + 16*tt + 4*ks; a = 208 + 4*tt
            e('v_mfma_f32_16x16x32_bf16 v[%d:%d], v[%d:%d], v[%d:%d], %s' % (a, a+3, r, r+3, XR+4*ks, XR+4*ks+3, '0' if ks == 0 else 'v[%d:%d]' % (a, a+3)))
    nop(8)
    for tt, m in ((1, 's[10:11]'), (2, 's[12:13]'), (3, 's[14:15]')):
        for r in range(4): e('v_cndmask_b32 v%d, v%d, v%d, %s' % (208+r, 208+r, 208+4*tt+r, m))
    for r in range(4): e('v_mul_f32 v%d, s9, v%d' % (208+r, 208+r))
    e('v_cvt_pk_bf16_f32 v22, v208, v209'); e('v_cvt_pk_bf16_f32 v23, v210, v211')
    e('v_cmp_gt_u32 vcc, 4, v2'); e('s_and_saveexec_b64 s[14:15], vcc')
    e('buffer_store_dwordx2 v[22:23], v20, %s, s8 offen sc1' % WS)
    e('s_mov_b64 exec, s[14:15]')
    estamp(6)
    e('s_waitcnt vmcnt(0)'); e('s_barrier')
    l = lab(); exec_lt(8, l)
    e('v_lshlrev_b32 v20, 10, v0'); e('s_sub_u32 s8, s3, 128'); e('s_lshl_b32 s8, s8, 4'); e('s_add_u32 s8, s8, %d' % WS_QAF); e('v_mov_b32 v22, %s' % sN)
    e('buffer_store_dword v22, v20, %s, s8 offen sc1' % WS)
    exec_restore(l)
    stamp(3)
e('L_S2ONLY:')
masks(); hash_nonce()
s2_issue(); dma_setup(); dma_rows(0, S2_A)
s2_finish()
dma_rows(S2_A, 32)
e('s_branch L_DMA_D')

e('L_NOS0:')
masks()
hash_nonce()
dma_setup(); dma_rows(0, 32)
e('L_DMA_D:')
e('v_lshlrev_b32 v21, 4, v1')
stamp(4)
QA_ADDR=224; S_ACC=208; QB=232
e('v_and_b32 v20, 31, v1'); e('v_lshrrev_b32 v22, 5, v1')
e('v_and_b32 v23, 3, v20'); e('v_lshlrev_b32 v23, 2, v23'); e('v_bfe_u32 v24, v20, 2, 2'); e('v_or_b32 v23, v23, v24')
e('v_xor_b32 v23, v23, v22'); e('v_lshlrev_b32 v23, 4, v23')
e('s_lshl_b32 s8, s4, 15'); e('v_lshlrev_b32 v24, 10, v20'); e('v_add3_u32 v23, v23, v24, s8')
for jj in range(8): e('v_xor_b32 v%d, %d, v23' % (QA_ADDR+jj, jj << 5))
e('v_lshlrev_b32 v%d, 4, v1' % QB); e('v_add_u32 v%d, %d, v%d' % (QB, SCR, QB))
e('s_waitcnt vmcnt(0)')
for j in range(32):
    e('ds_read_b128 a[%d:%d], v%d offset:%d' % (4*j, 4*j+3, QA_ADDR+(j & 7), (j >> 3)*256))
    if j >= 12: e('s_waitcnt lgkmcnt(12)')
e('s_cmp_lg_u32 s4, 0'); e('s_cbranch_scc1 L_E3D')
e('s_and_b32 s8, s3, 7'); e('s_lshl_b32 s8, s8, 10'); e('s_add_u32 s8, s8, %d' % WS_QAF)
pollp(2, lambda k: ['buffer_load_dword v%d, v21, %s, s8 offen sc1' % (26+k, WS)], lambda k: [26+k], lambda k: [], sleep=1)
e('L_E3D:')
e('s_barrier')
stamp(5)
e('s_mov_b32 s9, %d' % WS_QA)
e('buffer_load_dwordx4 a[224:227], v21, %s, s9 offen sc1' % WS)
e('s_lshl_b32 s8, s4, 13'); e('s_add_u32 s8, s8, %d' % WS_QA)
for i in range(8):
    if i == 4: e('s_add_u32 s8, s8, 4096')
    e('buffer_load_dwordx4 a[%d:%d], v21, %s, s8 offen offset:%d sc1' % (192+4*i, 195+4*i, WS, (i & 3)*1024))
e('s_cmp_lt_u32 s3, 128'); e('s_cbranch_scc1 L_NOUV')
srd(SA, 24, 512*8192)
e('s_and_b32 s8, s3, 3'); e('s_lshl_b32 s8, s8, 7'); e('s_lshl_b32 s9, s4, 5'); e('s_add_u32 s8, s8, s9')
e('v_lshrrev_b32 v20, 1, v3'); e('v_lshlrev_b32 v20, 4, v20'); e('v_and_b32 v22, 1, v3'); e('v_lshlrev_b32 v22, 2, v22'); e('v_add3_u32 v20, v20, v22, s8')
e('v_lshlrev_b32 v20, 13, v20'); e('v_lshlrev_b32 v22, 4, v2')
e('s_sub_u32 s9, s3, 128'); e('s_lshr_b32 s9, s9, 2'); e('s_lshl_b32 s9, s9, 8'); e('v_add3_u32 v20, v20, v22, s9')
for i in range(8):
    e('s_mov_b32 s12, %d' % ((8*(i >> 2) + (i & 3))*8192)); e('buffer_load_dwordx4 v[%d:%d], v20, %s, s12 offen nt' % (WR+4*i, WR+4*i+3, SA))
e('s_waitcnt vmcnt(8)'); e('s_branch L_UVD')
e('L_NOUV:'); e('s_waitcnt vmcnt(0)')
e('L_UVD:')
e('s_lshl_b32 s8, s4, 13'); e('v_add_u32 v20, s8, v%d' % QB)
for i in range(8): e('ds_write_b128 v20, a[%d:%d] offset:%d' % (192+4*i, 195+4*i, i*1024))
barrier()
stamp(6)
D = 6; R = 8
def qk_read(j):
    e('ds_read_b128 a[%d:%d], v%d offset:%d' % (160+4*(j % R), 163+4*(j % R), QB, j*1024))
for j in range(1, D): qk_read(j)
for j in range(32):
    if j+D < 32: qk_read(j+D)
    if j > 0: e('s_waitcnt lgkmcnt(%d)' % min(D, 31-j))
    b = 'a[224:227]' if j == 0 else 'a[%d:%d]' % (160+4*(j % R), 163+4*(j % R))
    e('v_mfma_f32_32x32x16_bf16 v[%d:%d], a[%d:%d], %s, %s' % (S_ACC, S_ACC+15, 4*j, 4*j+3, b, '0' if j == 0 else 'v[%d:%d]' % (S_ACC, S_ACC+15)))
D = 4
astamp(1)
PV1=224; PV2=228
e('v_bfe_u32 v20, v1, 2, 2')
e('v_lshrrev_b32 v22, 5, v1')
e('v_bfe_u32 v23, v1, 4, 1')
e('v_bfe_u32 v24, v1, 1, 1')
e('v_lshl_or_b32 v23, v23, 1, v24')
e('v_xor_b32 v23, v23, v22')
e('v_lshl_or_b32 v23, v20, 2, v23')
e('v_lshlrev_b32 v23, 4, v23')
e('v_and_b32 v24, 1, v1'); e('v_lshlrev_b32 v24, 3, v24')
e('v_lshlrev_b32 v25, 2, v22'); e('v_add_u32 v25, v25, v20'); e('v_lshlrev_b32 v25, 10, v25')
e('s_lshl_b32 s8, s4, 8'); e('v_add3_u32 v23, v23, v24, v25'); e('v_add_u32 v23, s8, v23')
for t in range(4):
    e('v_xor_b32 v%d, %d, v23' % (PV1+t, t << 6))
    e('v_xor_b32 v%d, %d, v23' % (PV2+t, (t << 6) ^ (2 << 4))); e('v_add_u32 v%d, 8192, v%d' % (PV2+t, PV2+t))
s0 = S_ACC
e('v_max3_f32 v26, v%d, v%d, v%d' % (s0, s0+1, s0+2))
for k in range(3, 15, 2): e('v_max3_f32 v26, v26, v%d, v%d' % (s0+k, s0+k+1))
e('v_max_f32 v26, v26, v%d' % (s0+15))
e('v_mov_b32 v27, v26'); nop(2); e('v_permlane32_swap_b32 v26, v27'); nop(1); e('v_max_f32 v26, v26, v27')
astamp(2)
MX = SCR
e('v_and_b32 v20, 31, v1'); e('v_lshlrev_b32 v20, 2, v20'); e('v_add_u32 v20, %d, v20' % MX)
e('s_lshl_b32 s8, s4, 7'); e('v_add_u32 v22, s8, v20')
e('ds_write_b32 v22, v26')
barrier()
for w in range(4): e('ds_read_b32 v%d, v20 offset:%d' % (28+w, 128*w))
e('s_lshl_b32 s8, s4, 11'); e('s_add_u32 s8, s8, 8192'); e('v_add_u32 v23, s8, v%d' % QB)
e('s_waitcnt lgkmcnt(0)')
e('v_max3_f32 v26, v28, v29, v30'); e('v_max_f32 v26, v26, v31')
astamp(3)
e('v_mov_b32 v27, v26'); nop(1)
for k in range(0, 16, 2): e('v_pk_add_f32 v[%d:%d], v[%d:%d], v[26:27] neg_lo:[0,1] neg_hi:[0,1]' % (s0+k, s0+k+1, s0+k, s0+k+1))
for k in range(16): e('v_exp_f32 v%d, v%d' % (s0+k, s0+k))
e('v_pk_add_f32 v[28:29], v[%d:%d], v[%d:%d]' % (s0, s0+1, s0+2, s0+3)); e('v_pk_add_f32 v[30:31], v[%d:%d], v[%d:%d]' % (s0+4, s0+5, s0+6, s0+7))
for k in (8, 12): e('v_pk_add_f32 v[28:29], v[28:29], v[%d:%d]' % (s0+k, s0+k+1)); e('v_pk_add_f32 v[30:31], v[30:31], v[%d:%d]' % (s0+k+2, s0+k+3))
for k in range(8): e('v_cvt_pk_bf16_f32 v%d, v%d, v%d' % (s0+k, s0+2*k, s0+2*k+1))
e('v_pk_add_f32 v[28:29], v[28:29], v[30:31]')
e('ds_write_b128 v23, v[%d:%d]' % (s0, s0+3)); e('ds_write_b128 v23, v[%d:%d] offset:1024' % (s0+4, s0+7))
e('v_add_f32 v27, v28, v29')
e('v_mov_b32 v28, v27'); nop(2); e('v_permlane32_swap_b32 v27, v28'); nop(1); e('v_add_f32 v27, v27, v28')
e('ds_write_b32 v22, v27 offset:512')
barrier()
stamp(7)
for ks in range(8): e('ds_read_b128 a[%d:%d], v%d offset:%d' % (96+4*ks, 99+4*ks, QB, 8192+ks*1024))
for w in range(4): e('ds_read_b32 v%d, v20 offset:%d' % (28+w, 512+128*w))
e('s_waitcnt lgkmcnt(0)')
e('s_barrier')
e('v_add_f32 v27, v28, v29'); e('v_add_f32 v27, v27, v30'); e('v_add_f32 v27, v27, v31')
steps = [(ks, t) for ks in range(8) for t in range(4)]
def pv_read(q):
    ks, t = steps[q]
    if ks == 4 and t == 0:
        for k in range(8): e('v_add_u32 v%d, 0x10000, v%d' % (PV1+k, PV1+k))
    o = (ks & 3)*16384; r = 128 + 4*(q % R)
    e('ds_read_b64_tr_b16 a[%d:%d], v%d offset:%d' % (r, r+1, PV1+t, o))
    e('ds_read_b64_tr_b16 a[%d:%d], v%d offset:%d' % (r+2, r+3, PV2+t, o))
astamp(4)
for q in range(D): pv_read(q)
for q in range(32):
    if q+D < 32: pv_read(q+D)
    out = min(D, 31-q)
    e('s_waitcnt lgkmcnt(%d)' % (2*out))
    ks, t = steps[q]; r = 128 + 4*(q % R)
    e('v_mfma_f32_32x32x16_bf16 v[%d:%d], a[%d:%d], a[%d:%d], %s' % (128+16*t, 128+16*t+15, r, r+3, 96+4*ks, 99+4*ks, '0' if ks == 0 else 'v[%d:%d]' % (128+16*t, 128+16*t+15)))
astamp(5)
e('v_and_b32 v20, 31, v1'); e('v_lshrrev_b32 v22, 5, v1'); e('v_and_b32 v23, 15, v20'); e('v_xor_b32 v23, v23, v22'); e('v_lshlrev_b32 v23, 4, v23')
e('v_lshlrev_b32 v24, 8, v20'); e('s_lshl_b32 s8, s4, 13'); e('s_add_u32 s8, s8, %d' % SCR); e('v_add3_u32 v23, v23, v24, s8')
nop(4)
for s_ in range(8):
    b = 128 + 8*s_
    for k in range(4): e('v_cvt_pk_bf16_f32 v%d, v%d, v%d' % (208+4*(s_ & 1)+k, b+2*k, b+2*k+1))
    e('v_xor_b32 v24, %d, v23' % (s_ << 5))
    e('ds_write_b128 v24, v[%d:%d]' % (208+4*(s_ & 1), 211+4*(s_ & 1)))
stamp(8)
e('v_lshlrev_b32 v21, 4, v1'); e('v_add_u32 v20, s8, v21')
e('s_waitcnt lgkmcnt(0)')
for i in range(8): e('ds_read_b128 v[%d:%d], v20 offset:%d' % (208+4*i, 211+4*i, i*1024))
e('v_lshlrev_b32 v22, 18, v3'); e('v_xor_b32 v23, v2, v3'); e('v_lshlrev_b32 v23, 4, v23')
e('s_lshl_b32 s9, s3, 8'); e('s_add_u32 s9, s9, %d' % WS_PART); e('s_lshl_b32 s10, s4, 16'); e('s_add_u32 s9, s9, s10')
for i in range(8):
    e('v_xor_b32 v24, %d, v23' % ((4*(i & 3)) << 4)); e('v_add_u32 v24, v24, v22')
    e('s_waitcnt lgkmcnt(%d)' % (7-i))
    e('buffer_store_dwordx4 v[%d:%d], v24, %s, s9 offen sc1' % (208+4*i, 211+4*i, WS))
    e('s_add_u32 s9, s9, 0x100000')
astamp(6)
e('v_mov_b32 v128, v26'); e('v_mov_b32 v129, %s' % sN); e('v_mov_b32 v130, v27'); e('v_mov_b32 v131, %s' % sN)
e('v_lshlrev_b32 v20, 14, v1'); e('s_lshl_b32 s8, s3, 4'); e('s_lshl_b32 s9, s4, 12'); e('s_add_u32 s8, s8, s9'); e('s_add_u32 s8, s8, %d' % WS_STATS)
e('v_cmp_gt_u32 vcc, 32, v1')
e('s_waitcnt vmcnt(0)')
astamp(7)
e('s_and_saveexec_b64 s[14:15], vcc')
e('buffer_store_dwordx4 v[128:131], v20, %s, s8 offen sc1' % WS)
e('s_mov_b64 exec, s[14:15]')
e('s_barrier')
stamp(9)
e('s_cmp_lt_u32 s3, 128'); e('s_cbranch_scc1 L_LATE_E')

e('s_sub_u32 s5, s3, 128'); e('s_lshr_b32 s5, s5, 2')
e('s_and_b32 s6, s3, 3')
e('v_lshlrev_b32 v21, 4, v1')
e('s_lshl_b32 s8, s5, 2'); e('s_add_u32 s8, s8, s6'); e('s_lshl_b32 s7, s8, 12'); e('s_add_u32 s7, s7, %d' % WS_STATS)
e('s_lshl_b32 s8, s8, 16'); e('s_add_u32 s8, s8, %d' % WS_PART); e('s_lshl_b32 s9, s4, 14'); e('s_add_u32 s8, s8, s9')
e('v_lshlrev_b32 v20, 12, v3'); e('v_lshl_add_u32 v20, v2, 4, v20')
e('s_lshl_b32 s9, s4, 10'); e('s_add_u32 s9, s9, s7')
pollp(3, lambda k: ['buffer_load_dwordx4 v[%d:%d], v21, %s, s9 offen sc1' % (224+4*k, 227+4*k, WS)], lambda k: [225+4*k, 227+4*k], lambda k: [])
st4 = ['buffer_load_dwordx4 v[%d:%d], v21, %s, s7 offen offset:%d sc1' % (208+4*k, 211+4*k, WS, 1024*k) for k in range(4)]
for x_ in st4: e(x_)
for i in range(16):
    e('buffer_load_dwordx4 v[%d:%d], v20, %s, s8 offen offset:%d sc1' % (64+4*i, 67+4*i, WS, 256*i))
e('s_waitcnt vmcnt(16)')
tagchk([209+2*k for k in range(8)])
e('s_cbranch_vccz L_S4P2')
poll(st4, [209+2*k for k in range(8)], sleep=0)
e('L_S4P2:')
stamp(10)
lstamp(1)
e('v_max3_f32 v22, v208, v212, v216'); e('v_max_f32 v22, v22, v220')
wave_reduce(22, 'max'); e('v_readlane_b32 s9, v22, 63'); nop(2)
for k in range(4):
    e('v_subrev_f32 v%d, s9, v%d' % (208+4*k, 208+4*k)); e('v_exp_f32 v%d, v%d' % (208+4*k, 208+4*k))
nop(1)
e('v_mul_f32 v22, v208, v210')
for k in range(1, 4): e('v_fmac_f32 v22, v%d, v%d' % (208+4*k, 210+4*k))
wave_reduce(22); e('v_readlane_b32 s10, v22, 63')
e('v_mov_b32 v23, v208')
for k in range(1, 4):
    e('s_cmp_eq_u32 s4, %d' % k); e('s_cselect_b64 vcc, -1, 0'); e('v_cndmask_b32 v23, v23, v%d, vcc' % (208+4*k))
e('v_cvt_pk_bf16_f32 v24, v23, v23')
e('v_and_b32 v25, 0xffff0000, v24'); e('v_sub_f32 v25, v23, v25'); e('v_cvt_pk_bf16_f32 v25, v25, v25')
e('v_lshlrev_b32 v26, 2, v0'); e('v_add_u32 v26, %d, v26' % XX)
e('ds_write_b32 v26, v24'); e('ds_write_b32 v26, v25 offset:1024')
e('v_lshrrev_b32 v26, 3, v2'); e('v_lshlrev_b32 v26, 10, v26'); e('v_lshl_add_u32 v26, v3, 6, v26'); e('s_lshl_b32 s9, s4, 8'); e('s_add_u32 s9, s9, %d' % XX); e('v_add_u32 v26, s9, v26')
e('s_waitcnt lgkmcnt(0)')
for k in range(4): e('ds_read_b128 v[%d:%d], v26 offset:%d' % (XR+4*k, XR+4*k+3, 16*k))
e('s_waitcnt lgkmcnt(0)')
lstamp(2)
e('s_waitcnt vmcnt(0)')
gemv(16, 64, XR)
stamp(11)
e('v_lshrrev_b32 v20, 1, v3'); e('s_lshl_b32 s8, s4, 1'); e('v_add_u32 v20, s8, v20'); e('v_lshlrev_b32 v20, 9, v20')
e('v_and_b32 v22, 1, v3'); e('v_lshlrev_b32 v22, 4, v22'); e('v_lshl_add_u32 v22, v2, 5, v22'); e('v_add3_u32 v20, v20, v22, %s' % 's58')
L.insert(len(L)-1, '    s_mov_b32 s58, %d' % RED)
e('ds_write_b128 v20, v[%d:%d]' % (ACC, ACC+3))
barrier()
lstamp(3)
l = lab(); exec_lt(128, l)
e('v_lshlrev_b32 v20, 2, v0'); e('v_add_u32 v22, %d, v20' % RED)
for s in range(8): e('ds_read_b32 v%d, v22 offset:%d' % (XR+s, 512*s))
e('v_mov_b32 v23, s10'); e('v_rcp_f32 v23, v23')
e('s_waitcnt lgkmcnt(0)')
for s in range(1, 8): e('v_add_f32 v%d, v%d, v%d' % (XR, XR, XR+s))
e('v_mul_f32 v23, v23, v%d' % XR); e('v_cvt_pk_bf16_f32 v23, v23, v23')
e('v_add_u32 v20, %d, v20' % XX); e('ds_write_b32 v20, v23')
exec_restore(l)
barrier()
lstamp(4)
e('v_lshlrev_b32 v26, 5, v3'); e('s_lshl_b32 s9, s4, 7'); e('s_add_u32 s9, s9, %d' % XX); e('v_add_u32 v26, s9, v26')
for k in range(2): e('ds_read_b128 v[%d:%d], v26 offset:%d' % (XR+4*k, XR+4*k+3, 16*k))
e('s_waitcnt lgkmcnt(0)')
lstamp(5)
gemv(8, WR, XR)
lstamp(6)

def red_w16(nslot_bytes):
    e('v_and_b32 v22, 1, v3'); e('v_lshlrev_b32 v22, 4, v22'); e('v_lshl_add_u32 v22, v2, 5, v22')
    e('s_mul_i32 s8, s4, %d' % nslot_bytes); e('s_add_u32 s8, s8, %d' % RED); e('v_add_u32 v20, s8, v22')
    e('v_cmp_gt_u32 vcc, 2, v3'); e('s_and_saveexec_b64 s[14:15], vcc')
    e('ds_write_b128 v20, v[%d:%d]' % (ACC, ACC+3))
    e('s_mov_b64 exec, s[14:15]')
    barrier()
def pair_sum_publish(sbase):
    l = lab(); exec_lt(64, l)
    e('v_lshlrev_b32 v20, 3, v0'); e('v_add_u32 v22, %d, v20' % RED)
    for s in range(4): e('ds_read_b64 v[%d:%d], v22 offset:%d' % (XR+2*s, XR+2*s+1, 512*s))
    e('s_waitcnt lgkmcnt(0)')
    for s in range(1, 4):
        e('v_add_f32 v%d, v%d, v%d' % (XR, XR, XR+2*s)); e('v_add_f32 v%d, v%d, v%d' % (XR+1, XR+1, XR+2*s+1))
    e('v_cvt_pk_bf16_f32 v22, v%d, v%d' % (XR, XR+1)); e('v_mov_b32 v23, %s' % sN)
    e('buffer_store_dwordx2 v[22:23], v20, %s, %s offen sc1' % (WS, sbase))
    exec_restore(l)
red_w16(512)
lstamp(7)
e('s_lshl_b32 s9, s5, 2'); e('s_add_u32 s9, s9, s6'); e('s_lshl_b32 s9, s9, 9'); e('s_add_u32 s9, s9, %d' % WS_CTX)
pair_sum_publish('s9')
stamp(12)
e('s_branch L_FIN')

e('L_LATE_E:')
e('s_cmp_ge_u32 s3, 107'); e('s_cbranch_scc1 L_FIN')
e('s_cmp_lt_u32 s3, 67'); e('s_cbranch_scc1 L_LATE_E2')
e('s_sub_u32 s6, s3, 47')
srd(SA, 36, 640*7680); srd(SB, 34, 1280)
e('v_lshrrev_b32 v24, 3, v2'); e('v_lshl_add_u32 v24, v24, 2, v3'); e('v_mul_u32_u24 v24, 20, v24')
e('s_mul_i32 s8, s4, 160'); e('v_add_u32 v24, s8, v24')
e('s_movk_i32 s10, 7680'); e('v_mul_lo_u32 v20, v24, s10'); e('v_and_b32 v21, 7, v2'); e('v_lshlrev_b32 v21, 4, v21')
e('s_lshl_b32 s11, s6, 7'); e('v_add3_u32 v20, v20, v21, s11')
e('v_lshlrev_b32 v21, 3, v0'); e('buffer_load_dwordx2 v[112:113], v21, %s, 0 offen' % SB)
for i in range(20):
    e('s_mov_b32 s12, %d' % (i*7680)); e('buffer_load_dwordx4 v[%d:%d], v20, %s, s12 offen nt' % (WR+4*i, WR+4*i+3, SA))
e('s_waitcnt vmcnt(20)')
unpack(114, 115, 112); unpack(116, 117, 113)
for r in range(114, 118):
    e('v_mul_f32 v28, 0xbfb8aa3b, v%d' % r); e('v_exp_f32 v28, v28'); nop(1)
    e('v_add_f32 v28, 1.0, v28'); e('v_rcp_f32 v28, v28'); nop(1); e('v_mul_f32 v%d, v%d, v28' % (r, r))
e('v_cvt_pk_bf16_f32 v26, v114, v115'); e('v_cvt_pk_bf16_f32 v27, v116, v117')
e('v_perm_b32 v28, v26, v26, %s' % SEL_LO); e('v_perm_b32 v29, v26, v26, %s' % SEL_HI)
e('v_perm_b32 v30, v27, v27, %s' % SEL_LO); e('v_perm_b32 v31, v27, v27, %s' % SEL_HI)
e('v_lshlrev_b32 v21, 4, v0'); e('v_add_u32 v21, %d, v21' % XX)
l = lab(); exec_lt(160, l); e('ds_write_b128 v21, v[28:31]'); exec_restore(l)
barrier()
gemv_w8_tail(20, 0)
l = lab(); exec_lt(32, l)
e('v_lshlrev_b32 v20, 3, v0'); e('v_add_u32 v21, %d, v20' % RED)
for s_ in range(8): e('ds_read_b64 v[%d:%d], v21 offset:%d' % (XR+2*s_, XR+2*s_+1, 256*s_))
e('s_lshl_b32 s8, s6, 8'); e('s_add_u32 s8, s8, %d' % WS_MOD); e('v_mov_b32 v23, %s' % sN)
e('s_waitcnt lgkmcnt(0)')
for s_ in (4, 2, 1):
    for k in range(s_): e('v_pk_add_f32 v[%d:%d], v[%d:%d], v[%d:%d]' % (XR+2*k, XR+2*k+1, XR+2*k, XR+2*k+1, XR+2*(k+s_), XR+2*(k+s_)+1))
e('v_cvt_pk_bf16_f32 v22, v%d, v%d' % (XR, XR+1))
e('buffer_store_dwordx2 v[22:23], v20, %s, s8 offen sc1' % WS)
exec_restore(l)
e('s_branch L_FIN')
e('L_LATE_E2:')
e('s_cmp_ge_u32 s3, 40'); e('s_cbranch_scc1 L_MLP')
e('s_mul_i32 s5, s3, 52'); e('s_lshr_b32 s5, s5, 8')
e('s_mul_i32 s6, s5, 5'); e('s_sub_u32 s6, s3, s6')
srd(SA, 26, 4096*1280)
e('s_lshl_b32 s8, s5, 9'); e('s_lshl_b32 s9, s4, 7'); e('s_add_u32 s8, s8, s9'); e('v_lshl_add_u32 v20, v3, 5, s8')
e('s_movk_i32 s10, 1280'); e('v_mul_lo_u32 v20, v20, s10'); e('s_lshl_b32 s9, s6, 8'); e('v_lshlrev_b32 v22, 4, v2'); e('v_add3_u32 v20, v20, v22, s9')
for i in range(32):
    e('s_mov_b32 s12, %d' % ((i // 3)*3*1280)); e('buffer_load_dwordx4 v[%d:%d], v20, %s, s12 offen offset:%d nt' % (WR+4*i, WR+4*i+3, SA, (i % 3)*1280))
e('s_lshl_b32 s8, s5, 2'); e('s_add_u32 s8, s8, s4'); e('s_lshl_b32 s8, s8, 11'); e('s_add_u32 s8, s8, %d' % WS_CTX)
e('v_lshlrev_b32 v21, 3, v1')
e('s_lshl_b32 s9, s4, 9'); e('s_add_u32 s9, s9, %d' % XX); e('v_add_u32 v25, s9, v21')
e('v_lshlrev_b32 v26, 7, v3'); e('v_add_u32 v26, s9, v26')
e('v_and_b32 v22, 1, v3'); e('v_lshlrev_b32 v22, 4, v22'); e('v_lshl_add_u32 v22, v2, 5, v22')
e('s_lshl_b32 s9, s4, 9'); e('s_add_u32 s9, s9, %d' % RED); e('v_add_u32 v24, s9, v22')
e('v_cmp_gt_u32 s[12:13], 2, v3')
e('s_lshl_b32 s10, s5, 12'); e('s_lshl_b32 s11, s6, 9'); e('s_add_u32 s10, s10, s11'); e('s_add_u32 s10, s10, %d' % WS_X1P)
e('v_lshlrev_b32 v27, 3, v0'); e('v_add_u32 v23, %d, v27' % RED)
st = lambda k: 224 + 8*k
pollp(3, lambda k: ['buffer_load_dwordx2 v[%d:%d], v21, %s, s8 offen offset:%d sc1' % (st(k)+2*j, st(k)+2*j+1, WS, 512*j) for j in range(4)],
      lambda k: [st(k)+1+2*j for j in range(4)], lambda k: [st(k)+2*j for j in range(4)] if k < 3 else [248, 249, 250, 251])
stamp(10)
for k in range(4): unpack(8+2*k, 9+2*k, 248+k)
e('v_pk_add_f32 v[8:9], v[8:9], v[10:11]'); e('v_pk_add_f32 v[12:13], v[12:13], v[14:15]'); e('v_pk_add_f32 v[8:9], v[8:9], v[12:13]')
e('v_cvt_pk_bf16_f32 v28, v8, v9')
e('v_perm_b32 v30, v28, v28, %s' % SEL_LO); e('v_perm_b32 v31, v28, v28, %s' % SEL_HI)
e('ds_write_b64 v25, v[30:31]')
e('s_waitcnt lgkmcnt(0)')
for k in range(8): e('ds_read_b128 v[%d:%d], v26 offset:%d' % (XR+4*k, XR+4*k+3, 16*k))
e('s_waitcnt lgkmcnt(6)')
gemv(32, WR, XR, wait=lambda i: e('s_waitcnt lgkmcnt(%d)' % max(0, 6-(i+2)//4)) if (i % 4 == 2 and i < 28) else None)
e('s_mov_b64 s[14:15], exec'); e('s_mov_b64 exec, s[12:13]')
e('ds_write_b128 v24, v[%d:%d]' % (ACC, ACC+3))
e('s_mov_b64 exec, s[14:15]')
barrier()
l = lab(); exec_lt(64, l)
for s_ in range(4): e('ds_read_b64 v[%d:%d], v23 offset:%d' % (XR+2*s_, XR+2*s_+1, 512*s_))
e('v_mov_b32 v29, %s' % sN)
e('s_waitcnt lgkmcnt(0)')
e('v_pk_add_f32 v[%d:%d], v[%d:%d], v[%d:%d]' % (XR, XR+1, XR, XR+1, XR+2, XR+3)); e('v_pk_add_f32 v[%d:%d], v[%d:%d], v[%d:%d]' % (XR+4, XR+5, XR+4, XR+5, XR+6, XR+7))
e('v_pk_add_f32 v[%d:%d], v[%d:%d], v[%d:%d]' % (XR, XR+1, XR, XR+1, XR+4, XR+5))
e('v_cvt_pk_bf16_f32 v28, v%d, v%d' % (XR, XR+1))
e('buffer_store_dwordx2 v[28:29], v27, %s, s10 offen sc1' % WS)
exec_restore(l)
stamp(12)
e('s_branch L_FIN')

e('L_MLP:')
e('s_sub_u32 s5, s3, 40')
srd(SA, 30, 640*3456)
e('v_lshrrev_b32 v20, 3, v2'); e('v_lshl_add_u32 v20, v20, 2, v3'); e('v_mul_u32_u24 v20, 20, v20')
e('s_mul_i32 s8, s4, 160'); e('v_add_u32 v24, s8, v20')
e('s_movk_i32 s10, 3456'); e('v_mul_lo_u32 v20, v24, s10'); e('v_and_b32 v21, 7, v2'); e('v_lshlrev_b32 v21, 4, v21')
e('s_lshl_b32 s9, s5, 7'); e('v_add3_u32 v20, v20, v21, s9')
for i in range(20):
    e('s_mov_b32 s12, %d' % (i*3456)); e('buffer_load_dwordx4 v[%d:%d], v20, %s, s12 offen nt' % (WR+4*i, WR+4*i+3, SA))
srd(SA, 32, 1728*1280)
e('s_lshl_b32 s8, s5, 6'); e('s_lshl_b32 s9, s4, 4'); e('s_add_u32 s8, s8, s9'); e('v_lshl_add_u32 v20, v3, 2, s8')
e('s_movk_i32 s10, 1280'); e('v_mul_lo_u32 v20, v20, s10'); e('v_lshl_add_u32 v20, v2, 4, v20')
for i in range(4):
    e('s_mov_b32 s12, %d' % (i*1280))
    for cg in range(5):
        r = 112 + 4*(5*i + cg)
        e('buffer_load_dwordx4 v[%d:%d], v20, %s, s12 offen offset:%d nt' % (r, r+3, SA, cg*256))
srd(SB, 16, 1280)
lm = lab(); exec_lt(160, lm)
e('v_lshlrev_b32 v21, 3, v0'); e('buffer_load_dwordx2 v[224:225], v21, %s, 0 offen' % SB)
e('v_lshlrev_b32 v21, 4, v0')
lds_ = []
for q in range(4):
    lds_.append('s_mov_b32 s12, %d' % (WS_MOD + (2+q)*2560))
    lds_.append('buffer_load_dwordx4 v[%d:%d], v21, %s, s12 offen sc1' % (192+4*q, 195+4*q, WS))
poll(lds_, [193+2*k for k in range(8)], sleep=4)
for q in range(4):
    b = 192+4*q; d = 240+4*q
    unpack(d, d+1, b); unpack(d+2, d+3, b+2)
unpack(236, 237, 224); unpack(238, 239, 225)
for k in range(4): e('v_add_f32 v%d, 1.0, v%d' % (248+k, 248+k))
lds_ = []
for kg in range(8):
    lds_.append('s_mov_b32 s12, %d' % (WS_X1P + kg*4096))
    lds_.append('buffer_load_dwordx4 v[%d:%d], v21, %s, s12 offen sc1' % (192+4*kg, 195+4*kg, WS))
X1L = SCR + 16384; GBL = X1L + 4096
e('v_add_u32 v25, %d, v21' % X1L); e('ds_write_b128 v25, v[252:255] offset:4096')
poll(lds_, [193+2*k for k in range(16)], sleep=0)
stamp(10)
unpack(232, 233, 192); unpack(234, 235, 194)
for kg in range(1, 8):
    b = 192+4*kg
    unpack(224, 225, b); unpack(226, 227, b+2)
    e('v_pk_add_f32 v[232:233], v[232:233], v[224:225]'); e('v_pk_add_f32 v[234:235], v[234:235], v[226:227]')
e('v_pk_fma_f32 v[232:233], v[240:241], v[232:233], v[236:237]'); e('v_pk_fma_f32 v[234:235], v[242:243], v[234:235], v[238:239]')
e('v_pk_add_f32 v[22:23], v[232:233], v[234:235]'); e('v_pk_mul_f32 v[28:29], v[232:233], v[232:233]'); e('v_pk_fma_f32 v[28:29], v[234:235], v[234:235], v[28:29]')
e('ds_write_b128 v25, v[232:235]')
e('v_add_f32 v22, v22, v23'); e('v_add_f32 v23, v28, v29')
e('s_branch L_MS1')
e(lm + ':')
e('v_mov_b32 v22, 0'); e('v_mov_b32 v23, 0')
e('L_MS1:')
e('s_mov_b64 exec, s[14:15]')
e('v_cmp_gt_u32 vcc, 160, v0'); nop(2); e('v_cndmask_b32 v22, 0, v22, vcc'); e('v_cndmask_b32 v23, 0, v23, vcc')
for sh in (1, 2, 4, 8):
    nop(1)
    e('v_add_f32_dpp v22, v22, v22 row_shr:%d row_mask:0xf bank_mask:0xf bound_ctrl:0' % sh); e('v_add_f32_dpp v23, v23, v23 row_shr:%d row_mask:0xf bank_mask:0xf bound_ctrl:0' % sh)
nop(1); e('v_add_f32_dpp v22, v22, v22 row_bcast:15 row_mask:0xa bank_mask:0xf'); e('v_add_f32_dpp v23, v23, v23 row_bcast:15 row_mask:0xa bank_mask:0xf')
nop(1); e('v_add_f32_dpp v22, v22, v22 row_bcast:31 row_mask:0xc bank_mask:0xf'); e('v_add_f32_dpp v23, v23, v23 row_bcast:31 row_mask:0xc bank_mask:0xf')
ST = SCR + 3072
e('s_lshl_b32 s10, s4, 3'); e('s_add_u32 s10, s10, %d' % ST); e('v_mov_b32 v20, s10')
e('s_mov_b64 s[14:15], exec'); e('s_mov_b32 exec_lo, 0'); e('s_mov_b32 exec_hi, 0x80000000')
e('ds_write_b64 v20, v[22:23]')
e('s_mov_b64 exec, s[14:15]')
barrier()
e('v_mov_b32 v20, %d' % ST); e('ds_read_b128 v[24:27], v20'); e('ds_read_b128 v[28:31], v20 offset:16')
e('v_lshlrev_b32 v21, 4, v0'); e('v_add_u32 v21, %d, v21' % XX)
e('s_waitcnt lgkmcnt(0)')
e('v_pk_add_f32 v[24:25], v[24:25], v[26:27]'); e('v_pk_add_f32 v[28:29], v[28:29], v[30:31]'); e('v_pk_add_f32 v[22:23], v[24:25], v[28:29]')
e('v_mul_f32 v22, %s, v22' % hex(f2u(1/640.))); e('v_mul_f32 v23, %s, v23' % hex(f2u(1/640.)))
e('v_fma_f32 v23, -v22, v22, v23'); e('v_max_f32 v23, 0, v23'); e('v_add_f32 v23, %s, v23' % hex(f2u(1e-5))); e('v_rsq_f32 v24, v23'); e('v_mov_b32 v23, v22')
lm = lab(); exec_lt(160, lm)
e('v_mov_b32 v25, v24')
for k in (0, 2):
    e('v_pk_add_f32 v[%d:%d], v[%d:%d], v[22:23] neg_lo:[0,1] neg_hi:[0,1]' % (224+k, 225+k, 232+k, 233+k))
    e('v_pk_mul_f32 v[%d:%d], v[%d:%d], v[%d:%d]' % (228+k, 229+k, 248+k, 249+k, 24, 25))
    e('v_pk_fma_f32 v[%d:%d], v[%d:%d], v[%d:%d], v[%d:%d]' % (224+k, 225+k, 224+k, 225+k, 228+k, 229+k, 244+k, 245+k))
e('v_cvt_pk_bf16_f32 v26, v224, v225'); e('v_cvt_pk_bf16_f32 v27, v226, v227')
e('v_perm_b32 v28, v26, v26, %s' % SEL_LO); e('v_perm_b32 v29, v26, v26, %s' % SEL_HI)
e('v_perm_b32 v30, v27, v27, %s' % SEL_LO); e('v_perm_b32 v31, v27, v27, %s' % SEL_HI)
e('ds_write_b128 v21, v[28:31]')
exec_restore(lm)
e('v_lshrrev_b32 v20, 3, v2'); e('v_lshl_add_u32 v22, v20, 2, v3'); e('v_mul_u32_u24 v22, 80, v22')
e('s_mul_i32 s8, s4, 640'); e('s_add_u32 s8, s8, %d' % XX); e('v_add_u32 v21, s8, v22')
e('v_lshrrev_b32 v22, 1, v3'); e('v_cmp_eq_u32 s[12:13], v20, v22')
e('s_lshl_b32 s8, s4, 1'); e('v_add_u32 v20, s8, v20'); e('v_lshlrev_b32 v20, 8, v20')
e('v_and_b32 v22, 7, v2'); e('v_lshlrev_b32 v22, 5, v22'); e('v_and_b32 v23, 1, v3'); e('v_lshlrev_b32 v23, 4, v23')
e('v_add3_u32 v20, v20, v22, v23'); e('v_add_u32 v20, %d, v20' % RED)
barrier()
for i in range(0, 20, 4): e('ds_read_b128 v[%d:%d], v21 offset:%d' % (XR+i, XR+i+3, 4*i))
e('s_waitcnt vmcnt(0) lgkmcnt(3)')
gemv(20, WR, XR, wait=lambda i: e('s_waitcnt lgkmcnt(%d)' % max(0, 3-(i+2)//4)) if (i % 4 == 2 and i < 16) else None)
e('s_mov_b64 s[14:15], exec'); e('s_mov_b64 exec, s[12:13]')
e('ds_write_b128 v20, v[%d:%d]' % (ACC, ACC+3))
e('s_mov_b64 exec, s[14:15]')
XX3 = SCR + 3584
e('v_lshlrev_b32 v20, 2, v0'); e('v_add_u32 v21, %d, v20' % RED); e('v_add_u32 v20, %d, v20' % XX3)
barrier()
l = lab(); exec_lt(64, l)
for s_ in range(8): e('ds_read_b32 v%d, v21 offset:%d' % (XR+s_, 256*s_))
e('s_waitcnt lgkmcnt(0)')
e('v_pk_add_f32 v[%d:%d], v[%d:%d], v[%d:%d]' % (XR, XR+1, XR, XR+1, XR+4, XR+5)); e('v_pk_add_f32 v[%d:%d], v[%d:%d], v[%d:%d]' % (XR+2, XR+3, XR+2, XR+3, XR+6, XR+7))
e('v_pk_add_f32 v[%d:%d], v[%d:%d], v[%d:%d]' % (XR, XR+1, XR, XR+1, XR+2, XR+3)); e('v_add_f32 v22, v%d, v%d' % (XR, XR+1))
e('v_max_f32 v22, 0, v22'); e('v_cvt_pk_bf16_f32 v22, v22, v22')
e('ds_write_b32 v20, v22')
exec_restore(l)
barrier()
stamp(11)
e('v_lshlrev_b32 v20, 4, v3'); e('s_lshl_b32 s8, s4, 6'); e('s_add_u32 s8, s8, %d' % XX3); e('v_add_u32 v20, s8, v20')
e('ds_read_b128 v[%d:%d], v20' % (XR, XR+3))
e('s_waitcnt lgkmcnt(0)')
AF = 208
for i in range(4):
    for d in range(4): e('v_and_b32 v%d, v%d, v%d' % (AF+4*i+d, XR+i, MK[d]))
nop(2)
AC2 = 224
for i in range(4):
    for cg in range(5):
        r = 112 + 4*(5*i+cg); a = AC2+4*cg
        e('v_mfma_f32_16x16x32_bf16 v[%d:%d], v[%d:%d], v[%d:%d], %s' % (a, a+3, AF+4*i, AF+4*i+3, r, r+3, '0' if i == 0 else 'v[%d:%d]' % (a, a+3)))
nop(8)
e('v_and_b32 v22, 1, v3'); e('v_lshlrev_b32 v22, 4, v22'); e('v_lshl_add_u32 v22, v2, 5, v22')
e('s_mul_i32 s8, s4, 2560'); e('s_add_u32 s8, s8, %d' % RED); e('v_add_u32 v20, s8, v22')
e('v_cmp_gt_u32 vcc, 2, v3'); e('s_and_saveexec_b64 s[14:15], vcc')
for cg in range(5): e('ds_write_b128 v20, v[%d:%d] offset:%d' % (AC2+4*cg, AC2+4*cg+3, 512*cg))
e('s_mov_b64 exec, s[14:15]')
barrier()
l = lab(); exec_lt(160, l)
e('v_lshlrev_b32 v21, 4, v0'); e('v_add_u32 v20, %d, v21' % RED)
for s in range(4): e('ds_read_b128 v[%d:%d], v20 offset:%d' % (XR+4*s, XR+4*s+3, 2560*s))
e('s_waitcnt lgkmcnt(0)')
for s in range(1, 4):
    for k in range(4): e('v_add_f32 v%d, v%d, v%d' % (XR+k, XR+k, XR+4*s+k))
e('v_mov_b32 v208, v192'); e('v_mov_b32 v209, %s' % sN); e('v_mov_b32 v210, v193'); e('v_mov_b32 v211, %s' % sN)
e('v_mov_b32 v212, v194'); e('v_mov_b32 v213, %s' % sN); e('v_mov_b32 v214, v195'); e('v_mov_b32 v215, %s' % sN)
e('v_lshlrev_b32 v20, 5, v0'); e('s_lshl_b32 s8, s5, 13'); e('s_add_u32 s8, s8, %d' % WS_MLP)
e('buffer_store_dwordx4 v[208:211], v20, %s, s8 offen sc1' % WS); e('buffer_store_dwordx4 v[212:215], v20, %s, s8 offen offset:16 sc1' % WS)
exec_restore(l)
stamp(12)
e('s_cmp_ge_u32 s5, 20'); e('s_cbranch_scc1 L_FIN')
e('v_and_b32 v20, 31, v0'); e('v_lshrrev_b32 v21, 5, v0')
e('v_lshlrev_b32 v22, 13, v21'); e('v_lshl_add_u32 v22, v20, 3, v22')
e('s_lshl_b32 s8, s5, 8'); e('s_add_u32 s8, s8, %d' % WS_MLP)
e('v_cmp_gt_u32 vcc, 3, v21'); e('v_add_u32 v23, %d, v22' % (24*8192)); nop(1); e('v_cndmask_b32 v23, v22, v23, vcc')
e('s_add_u32 s9, s8, %d' % (8*8192)); e('s_add_u32 s10, s8, %d' % (16*8192))
e('s_mov_b64 s[12:13], vcc')
st = lambda k: 216 + 8*k
pollp(3, lambda k: ['buffer_load_dwordx2 v[%d:%d], v%d, %s, %s offen sc1' % (st(k)+2*j, st(k)+2*j+1, a_, WS, so) for j, (a_, so) in enumerate([(22, 's8'), (22, 's9'), (22, 's10'), (23, 's8')])],
      lambda k: [st(k)+1+2*j for j in range(4)], lambda k: [st(k)+2*j for j in range(4)] if k < 3 else [192, 194, 196, 198])
stamp(13)
e('v_cndmask_b32 v198, 0, v198, s[12:13]')
e('v_add_f32 v192, v192, v194'); e('v_add_f32 v196, v196, v198'); e('v_add_f32 v192, v192, v196')
FR = SCR + 24576
e('v_lshlrev_b32 v22, 2, v0'); e('v_add_u32 v22, %d, v22' % FR); e('ds_write_b32 v22, v192')
barrier()
l = lab(); exec_lt(16, l)
e('v_lshlrev_b32 v20, 3, v0'); e('v_add_u32 v22, %d, v20' % FR)
for p in range(8): e('ds_read_b64 v[%d:%d], v22 offset:%d' % (192+2*p, 193+2*p, 128*p))
e('s_lshl_b32 s8, s5, 7'); e('s_add_u32 s8, s8, %d' % X1L); e('v_add_u32 v23, s8, v20')
e('ds_read_b64 v[208:209], v23'); e('ds_read_b64 v[210:211], v23 offset:4096')
e('s_waitcnt lgkmcnt(0)')
for p in range(1, 8): e('v_add_f32 v192, v192, v%d' % (192+2*p)); e('v_add_f32 v193, v193, v%d' % (193+2*p))
e('v_fma_f32 v192, v210, v192, v208'); e('v_fma_f32 v193, v211, v193, v209')
e('v_cvt_pk_bf16_f32 v192, v192, v193')
srd(SA, 38, 1280)
e('v_lshlrev_b32 v20, 2, v0'); e('s_lshl_b32 s8, s5, 6')
e('buffer_store_dword v192, v20, %s, s8 offen' % SA)
exec_restore(l)
e('s_cmp_lg_u32 s3, 40'); e('s_cbranch_scc1 L_FIN')
l = lab(); exec_lt(1, l)
e('v_mov_b32 v20, 0'); e('v_mov_b32 v22, s97'); e('buffer_store_dword v22, v20, %s, 0 offen sc1' % WS)
exec_restore(l)
e('L_FIN:')
if STAMPS and '--dbg' in sys.argv:
    stamp(14)
    e('s_load_dwordx2 s[8:9], s[0:1], 96')
    e('s_waitcnt lgkmcnt(0)')
    e('s_mov_b32 s10, 256'); e('s_mov_b32 s11, 0x20000')
    l = lab(); exec_lt(1, l)
    e('s_not_b32 s60, s60')
    for k in range(15):
        e('v_mov_b32 v24, s%d' % (60+2*k)); e('v_mov_b32 v20, %d' % (4*k)); e('buffer_atomic_umax v24, v20, s[8:11], 0 offen'); nop(2)
    exec_restore(l)
elif STAMPS:
    stamp(14)
    e('s_waitcnt lgkmcnt(0)')
    l = lab(); exec_lt(1, l)
    e('s_lshl_b32 s8, s3, 6'); e('s_add_u32 s8, s8, %d' % WS_STAMP); e('v_mov_b32 v20, 0')
    for k in range(0, 16, 4):
        for j in range(4): e('v_mov_b32 v%d, s%d' % (24+j, 60+2*(k+j)))
        e('buffer_store_dwordx4 v[24:27], v20, %s, s8 offen offset:%d' % (WS, 4*k)); nop(2)
    exec_restore(l)
e('L_END:')
e('s_endpgm')
L.append('.section .rodata,"a"')
L.append('.p2align 6')
L.append('.amdhsa_kernel %s_kernel' % NAME)
for k, v in [('next_free_vgpr', 512), ('next_free_sgpr', 102), ('accum_offset', 256), ('group_segment_fixed_size', 0), ('kernarg_size', 112),
             ('user_sgpr_count', 2), ('user_sgpr_kernarg_segment_ptr', 1), ('system_sgpr_workgroup_id_x', 1)]:
    L.append('  .amdhsa_%s %d' % (k, v))
L.append('.end_amdhsa_kernel')
open(OUT, 'w').write('\n'.join(L) + '\n')
print('wrote', OUT, len(L), 'lines')
```

```python
import sys
def ARG(k,d):
    for a in sys.argv[1:]:
        if a.startswith('--%s='%k): return a.split('=')[1]
    return d
NAME = "adaLN_cond__compressed_kv_cla__dense_activation_relu__decode"
STAMPS = '--stamps' in sys.argv
OUT = [a for a in sys.argv[1:] if not a.startswith('--')]
OUT = OUT[0] if OUT else 'cdna_kernels/%s.s' % NAME

L = []
def e(s=''):
    for ln in s.split('\n'):
        L.append('    ' + ln.strip() if ln.strip() and not ln.strip().endswith(':') else ln.strip())
_lab = [0]
def lab(p='L'):
    _lab[0] += 1
    return '%s_%d' % (p, _lab[0])
def nop(n):
    while n > 0:
        k = min(n, 16); e('s_nop %d' % (k-1)); n -= k

WS_GEN=0; WS_MOD=0x1000; MOD_KH=0x4000; WS_Q=0x10000; WS_QAF=0x20000; WS_QA=0x28000
WS_STATS=0x900000; WS_CTX=0x60000; WS_X1P=0x70000; WS_MLP=0x80000; WS_STAMP=0xC0000; WS_PART=0x100000
WS_SIZE=0x980000
SCR=131072
XX=SCR; RED=SCR+4096
QSCALE = (128**-0.5)*1.4426950408889634
import struct
def f2u(f): return struct.unpack('<I', struct.pack('<f', f))[0]

sID='s3'; sW='s4'; sN='s42'; WS='s[44:47]'; SA='s[48:51]'; SB='s[52:55]'
SEL_LO='s56'; SEL_HI='s57'
vT='v0'; vL='v1'; vN='v2'; vG='v3'
MK=[4,5,6,7]; AB=[8,12]; ACC=16
WR=32; XR=192

nst=[0]
LATE = '--late' in sys.argv
ATT = '--att' in sys.argv
EARLY = '--early' in sys.argv
def estamp(k, wait=None):
    if STAMPS and EARLY:
        if wait is not None: e('s_waitcnt vmcnt(%d)' % wait)
        e('s_memrealtime s[%d:%d]' % (60+2*k, 61+2*k))
def stamp(k):
    if EARLY and 5 <= k <= 8: return
    if STAMPS and not ((LATE or ATT) and 1 <= k <= 8): e('s_memrealtime s[%d:%d]' % (60+2*k, 61+2*k))
def lstamp(k):
    if STAMPS and LATE: e('s_memrealtime s[%d:%d]' % (60+2*k, 61+2*k))
def astamp(k):
    if STAMPS and ATT: e('s_memrealtime s[%d:%d]' % (60+2*k, 61+2*k))

def srd(q, plo, size, add=None):
    b = int(q[2:q.index(':')])
    if add is None:
        e('s_mov_b32 s%d, s%d' % (b, plo)); e('s_mov_b32 s%d, s%d' % (b+1, plo+1))
    else:
        e('s_add_u32 s%d, s%d, %s' % (b, plo, add)); e('s_addc_u32 s%d, s%d, 0' % (b+1, plo+1))
    e('s_mov_b32 s%d, %d' % (b+2, size)); e('s_mov_b32 s%d, 0x20000' % (b+3))

def gemv(n, wbase, xbase, acc=ACC, wait=None):
    def ands(i):
        a = AB[i & 1]
        for d in range(4): e('v_and_b32 v%d, v%d, v%d' % (a+d, xbase+i, MK[d]))
    ands(0)
    for i in range(n):
        if i+1 < n: ands(i+1)
        else: nop(2)
        if wait: wait(i)
        a = AB[i & 1]
        c = '0' if i == 0 else 'v[%d:%d]' % (acc, acc+3)
        e('v_mfma_f32_16x16x32_bf16 v[%d:%d], v[%d:%d], v[%d:%d], %s' % (acc, acc+3, a, a+3, wbase+4*i, wbase+4*i+3, c))
    nop(8)

def wave_reduce(v, op='add', tmp=None):
    ins = 'v_add_f32_dpp' if op == 'add' else 'v_max_f32_dpp'
    for sh in (1,2,4,8):
        nop(2)
        if op == 'add': e('%s v%d, v%d, v%d row_shr:%d row_mask:0xf bank_mask:0xf bound_ctrl:0' % (ins, v, v, v, sh))
        else: e('%s v%d, v%d, v%d row_shr:%d row_mask:0xf bank_mask:0xf' % (ins, v, v, v, sh))
    nop(2); e('%s v%d, v%d, v%d row_bcast:15 row_mask:0xa bank_mask:0xf' % (ins, v, v, v))
    nop(2); e('%s v%d, v%d, v%d row_bcast:31 row_mask:0xc bank_mask:0xf' % (ins, v, v, v))
    nop(1)

def tagchk(tags):
    e('v_sad_u32 v30, v%d, %s, 0' % (tags[0], sN))
    for t in tags[1:]: e('v_sad_u32 v30, v%d, %s, v30' % (t, sN))
    e('v_cmp_ne_u32 vcc, 0, v30')
def poll(loads, tags, sleep=1, pre=None):
    l0 = lab('P'); l1 = lab('PD')
    e(l0 + ':')
    for s_ in loads: e(s_)
    e('s_waitcnt vmcnt(0)')
    tagchk(tags)
    e('s_cbranch_vccz %s' % l1)
    e('s_sub_u32 s59, s59, 1')
    e('s_cbranch_scc1 L_END')
    if sleep: e('s_sleep %d' % sleep)
    e('s_branch %s' % l0)
    e(l1 + ':')
def pollp(K, loads, tags, regs, sleep=0):
    P = sum(1 for x in loads(0) if x.startswith('buffer_'))
    l0 = lab('P'); ld = lab('PD'); dn = [lab('PK') for _ in range(K)]
    for k in range(K):
        for s_ in loads(k): e(s_)
    e(l0 + ':')
    for k in range(K):
        e('s_waitcnt vmcnt(%d)' % ((K-1)*P))
        tagchk(tags(k))
        e('s_cbranch_vccz %s' % dn[k])
        if k == 0:
            e('s_sub_u32 s59, s59, 1'); e('s_cbranch_scc1 L_END')
        if sleep: e('s_sleep %d' % sleep)
        for s_ in loads(k): e(s_)
    e('s_branch %s' % l0)
    for k in range(K-1, 0, -1):
        e(dn[k] + ':')
        e('s_waitcnt vmcnt(%d)' % ((K-1-k)*P if False else 0)) if False else None
        for d_, s_ in zip(regs(K), regs(k)): e('v_mov_b32 v%d, v%d' % (d_, s_))
        e('s_branch %s' % ld)
    e(dn[0] + ':')
    for d_, s_ in zip(regs(K), regs(0)): e('v_mov_b32 v%d, v%d' % (d_, s_))
    e(ld + ':')

def exec_lt(n, lbl):
    e('v_cmp_gt_u32 vcc, %d, %s' % (n, vT)); e('s_and_saveexec_b64 s[14:15], vcc'); e('s_cbranch_execz %s' % lbl)
def exec_restore(lbl):
    e(lbl + ':'); e('s_mov_b64 exec, s[14:15]')

def unpack(lo, hi, src):
    e('v_lshlrev_b32 v%d, 16, v%d' % (lo, src)); e('v_and_b32 v%d, 0xffff0000, v%d' % (hi, src))

def barrier(lds=True):
    if lds: e('s_waitcnt lgkmcnt(0)')
    e('s_barrier')

def hash_nonce():
    e('s_waitcnt lgkmcnt(0)')
    e('s_mul_i32 s8, %s, 0x9e3779b1' % sN); e('s_add_u32 s97, s8, 0x7f4a7c15')
    e('s_and_b32 %s, s97, 0xbfffbfff' % sN)

def swz(k): return ((k & 3) << 2) | ((k >> 2) & 3)
S1_A, S2_A = int(ARG('s1a',0)), int(ARG('s2a',8))
def dma_setup():
    e('s_lshl_b32 s8, s3, 17')
    srd('s[92:95]', 18, 131072, add='s8')
    e('v_lshlrev_b32 v19, 4, v1')
    e('s_lshl_b32 s96, s4, 15')
def dma_rows(r0, r1):
    e('v_lshlrev_b32 v31, 4, v1')
    for r in range(r0, r1):
        e('s_mov_b32 m0, s96')
        e('v_xor_b32 v30, %d, v31' % (swz(r) << 4))
        e('buffer_load_dwordx4 v30, s[92:95], s96 offen nt lds')
        e('s_add_u32 s96, s96, 1024')

L[-1] = L[-1].strip()
L.append('; @launch grid=(256,1,1) block=(256,1,1) lds=163840')
L.append('.amdgcn_target "amdgcn-amd-amdhsa--gfx950"')
L.append('.text')
L.append('.globl %s_kernel' % NAME)
L.append('.p2align 8')
L.append('.type %s_kernel,@function' % NAME)
L.append('%s_kernel:' % NAME)
e('s_cmp_ge_u32 s2, 256')
e('s_cbranch_scc1 L_END')
stamp(0)
if '--dbg' in sys.argv:
    for k in range(1, 16): e('s_mov_b32 s%d, 0' % (60+2*k))
e('s_load_dwordx16 s[16:31], s[0:1], 0')
e('s_load_dwordx8 s[32:39], s[0:1], 64')
e('s_load_dwordx2 s[40:41], s[0:1], 104')
e('s_sub_u32 s3, s2, 40'); e('s_add_u32 s5, s2, 192'); e('s_cmp_lt_u32 s2, 40'); e('s_cselect_b32 s3, s5, s3')
e('s_cmp_ge_u32 s2, 232'); e('s_cselect_b32 s3, s2, s3')
e('v_and_b32 v1, 63, v0')
e('v_and_b32 v2, 15, v0')
e('v_bfe_u32 v3, v0, 4, 2')
e('v_lshrrev_b32 v20, 6, v0')
e('s_mov_b32 s56, 0x01000100')
e('s_mov_b32 s57, 0x03020302')
e('s_mov_b32 s59, 0x10000')
e('v_readfirstlane_b32 s4, v20')
def masks():
    e('v_and_b32 v20, 1, v0'); e('v_lshlrev_b32 v20, 4, v20'); e('v_mov_b32 v21, 0xffff'); e('v_lshlrev_b32 v21, v20, v21')
    e('v_bfe_u32 v22, v0, 1, 2')
    for d in range(4):
        e('v_cmp_eq_u32 vcc, %d, v22' % d); nop(2); e('v_cndmask_b32 v%d, 0, v21, vcc' % MK[d])
e('v_lshrrev_b32 v24, 3, v2'); e('v_lshl_add_u32 v24, v24, 2, v3'); e('v_mul_u32_u24 v24, 10, v24')
e('s_mul_i32 s8, s4, 80'); e('v_add_u32 v24, s8, v24')
e('s_waitcnt lgkmcnt(0)')
e('s_load_dword s42, s[40:41], 0')
srd(WS, 40, WS_SIZE)
e('s_cmp_lt_u32 s3, 128'); e('s_cbranch_scc1 L_S1')
e('s_cmp_lt_u32 s3, 192'); e('s_cbranch_scc1 L_S2ONLY')
e('s_cmp_ge_u32 s3, 232'); e('s_cbranch_scc1 L_NOS0')

UK = 72
def s2_issue():
    e('s_sub_u32 s8, s3, 128'); e('s_lshr_b32 s8, s8, 1'); e('s_and_b32 s9, s3, 1')
    srd(SB, 22, 512*8192)
    e('s_lshl_b32 s9, s9, 8'); e('s_lshl_b32 s10, s4, 6'); e('s_add_u32 s9, s9, s10')
    e('v_add_u32 v20, s9, v2'); e('v_lshlrev_b32 v20, 13, v20'); e('v_lshlrev_b32 v21, 4, v3')
    e('s_lshl_b32 s10, s8, 8'); e('v_add3_u32 v20, v20, v21, s10')
    for tt in range(4):
        e('s_mov_b32 s12, %d' % (tt*16*8192))
        for ks in range(4):
            r = UK + 16*tt + 4*ks
            e('buffer_load_dwordx4 v[%d:%d], v20, %s, s12 offen offset:%d nt' % (r, r+3, SB, ks*64))
def s0_issue():
    e('s_lshr_b32 s6, s5, 1'); e('s_and_b32 s7, s5, 1')
    srd(SA, 36, 640*7680); srd(SB, 34, 1280)
    e('s_mul_i32 s9, s7, 320'); e('v_add_u32 v20, s9, v24')
    e('s_movk_i32 s10, 7680'); e('v_mul_lo_u32 v20, v20, s10')
    e('v_and_b32 v21, 7, v2'); e('v_lshlrev_b32 v21, 4, v21')
    e('s_lshl_b32 s11, s6, 7'); e('v_add3_u32 v20, v20, v21, s11')
    e('v_lshlrev_b32 v21, 2, v0'); e('s_mul_i32 s12, s7, 640')
    e('buffer_load_dword v25, v21, %s, s12 offen' % SB)
    for i in range(10):
        e('s_mov_b32 s12, %d' % (i*7680)); e('buffer_load_dwordx4 v[%d:%d], v20, %s, s12 offen nt' % (WR+4*i, WR+4*i+3, SA))
def gemv_w8_tail(nx, vm=0, rowreg=24):
    e('v_lshlrev_b32 v21, 2, v%d' % rowreg); e('v_add_u32 v21, %d, v21' % XX)
    for i in range(0, nx, 2): e('ds_read_b64 v[%d:%d], v21 offset:%d' % (XR+i, XR+i+1, 4*i))
    e('v_lshrrev_b32 v20, 3, v2'); e('v_lshrrev_b32 v21, 1, v3'); e('v_cmp_eq_u32 s[12:13], v20, v21')
    e('s_lshl_b32 s8, s4, 1'); e('v_add_u32 v20, s8, v20'); e('v_lshlrev_b32 v20, 8, v20')
    e('v_and_b32 v21, 7, v2'); e('v_lshlrev_b32 v21, 5, v21'); e('v_and_b32 v22, 1, v3'); e('v_lshlrev_b32 v22, 4, v22')
    e('v_add3_u32 v20, v20, v21, v22'); e('v_add_u32 v20, %d, v20' % RED)
    e('s_waitcnt vmcnt(%d) lgkmcnt(0)' % vm)
    gemv(nx, WR, XR)
    e('s_mov_b64 s[14:15], exec'); e('s_mov_b64 exec, s[12:13]')
    e('ds_write_b128 v20, v[%d:%d]' % (ACC, ACC+3))
    e('s_mov_b64 exec, s[14:15]')
    barrier()
def s0_finish(vm):
    e('s_waitcnt vmcnt(%d)' % (10+vm))
    unpack(26, 27, 25)
    for r in (26, 27):
        e('v_mul_f32 v28, 0xbfb8aa3b, v%d' % r); e('v_exp_f32 v28, v28'); nop(1)
        e('v_add_f32 v28, 1.0, v28'); e('v_rcp_f32 v28, v28'); nop(1); e('v_mul_f32 v%d, v%d, v28' % (r, r))
    e('v_cvt_pk_bf16_f32 v26, v26, v27')
    e('v_perm_b32 v28, v26, v26, %s' % SEL_LO); e('v_perm_b32 v29, v26, v26, %s' % SEL_HI)
    e('v_lshlrev_b32 v21, 3, v0'); e('v_add_u32 v21, %d, v21' % XX)
    l = lab(); exec_lt(160, l); e('ds_write_b64 v21, v[28:29]'); exec_restore(l)
    barrier()
    gemv_w8_tail(10, vm)
    l = lab(); exec_lt(32, l)
    e('v_lshlrev_b32 v20, 3, v0'); e('v_add_u32 v21, %d, v20' % RED)
    for s_ in range(8): e('ds_read_b64 v[%d:%d], v21 offset:%d' % (XR+2*s_, XR+2*s_+1, 256*s_))
    e('s_lshl_b32 s8, s7, 14'); e('s_lshl_b32 s9, s6, 8'); e('s_add_u32 s8, s8, s9'); e('s_add_u32 s8, s8, %d' % WS_MOD)
    e('v_mov_b32 v23, %s' % sN)
    e('s_waitcnt lgkmcnt(0)')
    for s_ in (4, 2, 1):
        for k in range(s_): e('v_pk_add_f32 v[%d:%d], v[%d:%d], v[%d:%d]' % (XR+2*k, XR+2*k+1, XR+2*k, XR+2*k+1, XR+2*(k+s_), XR+2*(k+s_)+1))
    e('v_cvt_pk_bf16_f32 v22, v%d, v%d' % (XR, XR+1))
    e('buffer_store_dwordx2 v[22:23], v20, %s, s8 offen sc1' % WS)
    exec_restore(l)

e('s_sub_u32 s5, s3, 192')
s0_issue()
masks()
hash_nonce()
s0_finish(0)
stamp(1)
dma_setup(); dma_rows(0, 32)
e('s_branch L_DMA_D')

e('L_S1:')
e('s_lshr_b32 s5, s3, 2'); e('s_bfe_u32 s6, s3, 0x10001'); e('s_and_b32 s7, s3, 1')
srd(SA, 20, 640*8192); srd(SB, 16, 1280)
e('s_mul_i32 s9, s7, 320'); e('v_add_u32 v20, s9, v24'); e('v_lshlrev_b32 v20, 13, v20')
e('v_and_b32 v21, 7, v2'); e('v_lshlrev_b32 v21, 4, v21')
e('s_lshl_b32 s10, s5, 8'); e('s_lshl_b32 s11, s6, 7'); e('s_add_u32 s10, s10, s11'); e('v_add3_u32 v20, v20, v21, s10')
e('v_mul_u32_u24 v21, 20, v1')
e('buffer_load_dwordx4 v[104:107], v21, %s, 0 offen' % SB); e('buffer_load_dword v108, v21, %s, 0 offen offset:16' % SB)
e('v_lshlrev_b32 v21, 2, v0'); e('s_mul_i32 s12, s7, 640'); e('buffer_load_dword v109, v21, %s, s12 offen' % SB)
e('v_mov_b32 v23, v20')
masks()
e('s_waitcnt vmcnt(0)')
for k in range(5): unpack(110+2*k, 111+2*k, 104+k)
e('v_add_f32 v20, v110, v111')
for k in range(2, 10): e('v_add_f32 v20, v20, v%d' % (110+k))
wave_reduce(20); e('v_readlane_b32 s8, v20, 63'); nop(2)
e('v_mov_b32 v21, s8'); e('v_mul_f32 v21, %s, v21' % hex(f2u(1/640.)))
e('v_mov_b32 v20, 0')
for k in range(10):
    e('v_sub_f32 v22, v%d, v21' % (110+k)); e('v_fmac_f32 v20, v22, v22')
wave_reduce(20); e('v_readlane_b32 s8, v20, 63'); nop(2)
e('v_mov_b32 v22, s8'); e('v_mul_f32 v22, %s, v22' % hex(f2u(1/640.))); e('v_add_f32 v22, %s, v22' % hex(f2u(1e-5)))
e('v_rsq_f32 v22, v22'); nop(1)
for i in range(10):
    e('s_mov_b32 s12, %d' % (i*8192)); e('buffer_load_dwordx4 v[%d:%d], v23, %s, s12 offen nt' % (WR+4*i, WR+4*i+3, SA))
dma_setup(); dma_rows(0, S1_A)
unpack(110, 111, 109)
for r in (110, 111):
    e('v_sub_f32 v%d, v%d, v21' % (r, r)); e('v_mul_f32 v%d, v%d, v22' % (r, r))
hash_nonce()
estamp(5, S1_A)
l = lab(); exec_lt(160, l)
e('v_lshlrev_b32 v20, 3, v0'); e('s_mul_i32 s8, s7, 1280'); e('s_add_u32 s8, s8, %d' % WS_MOD)
e('s_add_u32 s9, s8, 2560'); e('s_add_u32 s10, s8, %d' % MOD_KH); e('s_add_u32 s11, s9, %d' % MOD_KH)
st = lambda k: 112 + 8*k
pollp(3, lambda k: ['buffer_load_dwordx2 v[%d:%d], v20, %s, %s offen sc1' % (st(k)+2*j, st(k)+2*j+1, WS, so) for j, so in enumerate(['s8', 's10', 's9', 's11'])],
      lambda k: [st(k)+1, st(k)+3, st(k)+5, st(k)+7], lambda k: [st(k), st(k)+2, st(k)+4, st(k)+6] if k < 3 else [136, 137, 138, 139])
unpack(140, 141, 136); unpack(142, 143, 137); unpack(144, 145, 138); unpack(146, 147, 139)
e('v_pk_add_f32 v[140:141], v[140:141], v[142:143]'); e('v_pk_add_f32 v[144:145], v[144:145], v[146:147]')
e('v_fma_f32 v140, v110, v144, v140'); e('v_fma_f32 v141, v111, v145, v141')
e('v_add_f32 v140, v140, v110'); e('v_add_f32 v141, v141, v111')
e('v_cvt_pk_bf16_f32 v26, v140, v141')
e('v_perm_b32 v28, v26, v26, %s' % SEL_LO); e('v_perm_b32 v29, v26, v26, %s' % SEL_HI)
e('v_add_u32 v21, %d, v20' % XX); e('ds_write_b64 v21, v[28:29]')
exec_restore(l)
stamp(1)
barrier()
gemv_w8_tail(10, S1_A)
l = lab(); exec_lt(64, l)
e('v_lshlrev_b32 v20, 2, v0'); e('v_add_u32 v20, %d, v20' % RED)
for s_ in range(8): e('ds_read_b32 v%d, v20 offset:%d' % (XR+s_, 256*s_))
e('s_lshl_b32 s8, s5, 11'); e('s_lshl_b32 s9, s7, 10'); e('s_add_u32 s8, s8, s9'); e('s_lshl_b32 s9, s6, 9'); e('s_add_u32 s8, s8, s9'); e('s_add_u32 s8, s8, %d' % WS_Q)
e('v_mov_b32 v23, %s' % sN); e('v_lshlrev_b32 v20, 3, v0')
e('s_waitcnt lgkmcnt(0)')
for s_ in (2, 1):
    for k in range(s_): e('v_pk_add_f32 v[%d:%d], v[%d:%d], v[%d:%d]' % (XR+2*k, XR+2*k+1, XR+2*k, XR+2*k+1, XR+2*(k+s_), XR+2*(k+s_)+1)) if s_ == 2 else None
e('v_pk_add_f32 v[%d:%d], v[%d:%d], v[%d:%d]' % (XR, XR+1, XR, XR+1, XR+2, XR+3)); e('v_add_f32 v22, v%d, v%d' % (XR, XR+1))
e('buffer_store_dwordx2 v[22:23], v20, %s, s8 offen sc1' % WS)
exec_restore(l)
stamp(2)
dma_rows(S1_A, 32)
e('s_branch L_DMA_D')

def s2_finish():
    e('s_sub_u32 s5, s3, 128'); e('s_lshr_b32 s5, s5, 1'); e('s_and_b32 s6, s3, 1')
    l = lab(); exec_lt(128, l)
    e('v_lshlrev_b32 v20, 3, v0'); e('s_lshl_b32 s8, s5, 11'); e('s_add_u32 s8, s8, %d' % WS_Q); e('s_add_u32 s9, s8, 1024')
    st = lambda k: 140 + 4*k
    pollp(3, lambda k: ['buffer_load_dwordx2 v[%d:%d], v20, %s, %s offen sc1' % (st(k)+2*j, st(k)+2*j+1, WS, so) for j, so in enumerate(['s8', 's9'])],
          lambda k: [st(k)+1, st(k)+3], lambda k: [st(k), st(k)+2] if k < 3 else [136, 137], sleep=1)
    e('v_add_f32 v136, v136, v137'); e('v_cvt_pk_bf16_f32 v136, v136, v136')
    e('v_lshlrev_b32 v21, 1, v0'); e('v_add_u32 v21, %d, v21' % XX); e('ds_write_b16 v21, v136')
    exec_restore(l)
    stamp(2)
    barrier()
    e('v_lshlrev_b32 v21, 4, v3'); e('v_add_u32 v21, %d, v21' % XX)
    for ks in range(4): e('ds_read_b128 v[%d:%d], v21 offset:%d' % (XR+4*ks, XR+4*ks+3, 64*ks))
    e('s_lshl_b32 s8, s6, 4'); e('s_lshl_b32 s9, s4, 2'); e('s_add_u32 s8, s8, s9'); e('s_lshl_b32 s8, s8, 10')
    e('s_lshl_b32 s9, s5, 4'); e('s_add_u32 s8, s8, s9'); e('s_add_u32 s8, s8, %d' % WS_QA)
    e('v_lshlrev_b32 v20, 10, v2'); e('v_lshrrev_b32 v21, 1, v3'); e('v_lshlrev_b32 v21, 9, v21'); e('v_and_b32 v24, 1, v3'); e('v_lshlrev_b32 v24, 3, v24')
    e('v_add3_u32 v20, v20, v21, v24')
    e('v_cmp_eq_u32 s[10:11], 1, v2'); e('v_cmp_eq_u32 s[12:13], 2, v2'); e('v_cmp_eq_u32 s[14:15], 3, v2')
    e('s_mov_b32 s9, %s' % hex(f2u(QSCALE)))
    e('s_waitcnt vmcnt(%d) lgkmcnt(0)' % S2_A)
    for ks in range(4):
        for tt in range(4):
            r = UK + 16*tt + 4*ks; a = 208 + 4*tt
            e('v_mfma_f32_16x16x32_bf16 v[%d:%d], v[%d:%d], v[%d:%d], %s' % (a, a+3, r, r+3, XR+4*ks, XR+4*ks+3, '0' if ks == 0 else 'v[%d:%d]' % (a, a+3)))
    nop(8)
    for tt, m in ((1, 's[10:11]'), (2, 's[12:13]'), (3, 's[14:15]')):
        for r in range(4): e('v_cndmask_b32 v%d, v%d, v%d, %s' % (208+r, 208+r, 208+4*tt+r, m))
    for r in range(4): e('v_mul_f32 v%d, s9, v%d' % (208+r, 208+r))
    e('v_cvt_pk_bf16_f32 v22, v208, v209'); e('v_cvt_pk_bf16_f32 v23, v210, v211')
    e('v_cmp_gt_u32 vcc, 4, v2'); e('s_and_saveexec_b64 s[14:15], vcc')
    e('buffer_store_dwordx2 v[22:23], v20, %s, s8 offen sc1' % WS)
    e('s_mov_b64 exec, s[14:15]')
    estamp(6)
    e('s_waitcnt vmcnt(0)'); e('s_barrier')
    l = lab(); exec_lt(8, l)
    e('v_lshlrev_b32 v20, 10, v0'); e('s_sub_u32 s8, s3, 128'); e('s_lshl_b32 s8, s8, 4'); e('s_add_u32 s8, s8, %d' % WS_QAF); e('v_mov_b32 v22, %s' % sN)
    e('buffer_store_dword v22, v20, %s, s8 offen sc1' % WS)
    exec_restore(l)
    stamp(3)
e('L_S2ONLY:')
masks(); hash_nonce()
s2_issue(); dma_setup(); dma_rows(0, S2_A)
s2_finish()
dma_rows(S2_A, 32)
e('s_branch L_DMA_D')

e('L_NOS0:')
masks()
hash_nonce()
dma_setup(); dma_rows(0, 32)
e('L_DMA_D:')
e('v_lshlrev_b32 v21, 4, v1')
stamp(4)
QA_ADDR=224; S_ACC=208; QB=232
e('v_and_b32 v20, 31, v1'); e('v_lshrrev_b32 v22, 5, v1')
e('v_and_b32 v23, 3, v20'); e('v_lshlrev_b32 v23, 2, v23'); e('v_bfe_u32 v24, v20, 2, 2'); e('v_or_b32 v23, v23, v24')
e('v_xor_b32 v23, v23, v22'); e('v_lshlrev_b32 v23, 4, v23')
e('s_lshl_b32 s8, s4, 15'); e('v_lshlrev_b32 v24, 10, v20'); e('v_add3_u32 v23, v23, v24, s8')
for jj in range(8): e('v_xor_b32 v%d, %d, v23' % (QA_ADDR+jj, jj << 5))
e('v_lshlrev_b32 v%d, 4, v1' % QB); e('v_add_u32 v%d, %d, v%d' % (QB, SCR, QB))
e('s_waitcnt vmcnt(0)')
for j in range(32):
    e('ds_read_b128 a[%d:%d], v%d offset:%d' % (4*j, 4*j+3, QA_ADDR+(j & 7), (j >> 3)*256))
    if j >= 12: e('s_waitcnt lgkmcnt(12)')
e('s_cmp_lg_u32 s4, 0'); e('s_cbranch_scc1 L_E3D')
e('s_and_b32 s8, s3, 7'); e('s_lshl_b32 s8, s8, 10'); e('s_add_u32 s8, s8, %d' % WS_QAF)
pollp(2, lambda k: ['buffer_load_dword v%d, v21, %s, s8 offen sc1' % (26+k, WS)], lambda k: [26+k], lambda k: [], sleep=1)
e('L_E3D:')
e('s_barrier')
stamp(5)
e('s_mov_b32 s9, %d' % WS_QA)
e('buffer_load_dwordx4 a[224:227], v21, %s, s9 offen sc1' % WS)
e('s_lshl_b32 s8, s4, 13'); e('s_add_u32 s8, s8, %d' % WS_QA)
for i in range(8):
    if i == 4: e('s_add_u32 s8, s8, 4096')
    e('buffer_load_dwordx4 a[%d:%d], v21, %s, s8 offen offset:%d sc1' % (192+4*i, 195+4*i, WS, (i & 3)*1024))
e('s_cmp_lt_u32 s3, 128'); e('s_cbranch_scc1 L_NOUV')
srd(SA, 24, 512*8192)
e('s_and_b32 s8, s3, 3'); e('s_lshl_b32 s8, s8, 7'); e('s_lshl_b32 s9, s4, 5'); e('s_add_u32 s8, s8, s9')
e('v_lshrrev_b32 v20, 1, v3'); e('v_lshlrev_b32 v20, 4, v20'); e('v_and_b32 v22, 1, v3'); e('v_lshlrev_b32 v22, 2, v22'); e('v_add3_u32 v20, v20, v22, s8')
e('v_lshlrev_b32 v20, 13, v20'); e('v_lshlrev_b32 v22, 4, v2')
e('s_sub_u32 s9, s3, 128'); e('s_lshr_b32 s9, s9, 2'); e('s_lshl_b32 s9, s9, 8'); e('v_add3_u32 v20, v20, v22, s9')
for i in range(8):
    e('s_mov_b32 s12, %d' % ((8*(i >> 2) + (i & 3))*8192)); e('buffer_load_dwordx4 v[%d:%d], v20, %s, s12 offen nt' % (WR+4*i, WR+4*i+3, SA))
e('s_waitcnt vmcnt(8)'); e('s_branch L_UVD')
e('L_NOUV:'); e('s_waitcnt vmcnt(0)')
e('L_UVD:')
e('s_lshl_b32 s8, s4, 13'); e('v_add_u32 v20, s8, v%d' % QB)
for i in range(8): e('ds_write_b128 v20, a[%d:%d] offset:%d' % (192+4*i, 195+4*i, i*1024))
barrier()
stamp(6)
D = 6; R = 8
def qk_read(j):
    e('ds_read_b128 a[%d:%d], v%d offset:%d' % (160+4*(j % R), 163+4*(j % R), QB, j*1024))
for j in range(1, D): qk_read(j)
for j in range(32):
    if j+D < 32: qk_read(j+D)
    if j > 0: e('s_waitcnt lgkmcnt(%d)' % min(D, 31-j))
    b = 'a[224:227]' if j == 0 else 'a[%d:%d]' % (160+4*(j % R), 163+4*(j % R))
    e('v_mfma_f32_32x32x16_bf16 v[%d:%d], a[%d:%d], %s, %s' % (S_ACC, S_ACC+15, 4*j, 4*j+3, b, '0' if j == 0 else 'v[%d:%d]' % (S_ACC, S_ACC+15)))
D = 4
astamp(1)
PV1=224; PV2=228
e('v_bfe_u32 v20, v1, 2, 2')
e('v_lshrrev_b32 v22, 5, v1')
e('v_bfe_u32 v23, v1, 4, 1')
e('v_bfe_u32 v24, v1, 1, 1')
e('v_lshl_or_b32 v23, v23, 1, v24')
e('v_xor_b32 v23, v23, v22')
e('v_lshl_or_b32 v23, v20, 2, v23')
e('v_lshlrev_b32 v23, 4, v23')
e('v_and_b32 v24, 1, v1'); e('v_lshlrev_b32 v24, 3, v24')
e('v_lshlrev_b32 v25, 2, v22'); e('v_add_u32 v25, v25, v20'); e('v_lshlrev_b32 v25, 10, v25')
e('s_lshl_b32 s8, s4, 8'); e('v_add3_u32 v23, v23, v24, v25'); e('v_add_u32 v23, s8, v23')
for t in range(4):
    e('v_xor_b32 v%d, %d, v23' % (PV1+t, t << 6))
    e('v_xor_b32 v%d, %d, v23' % (PV2+t, (t << 6) ^ (2 << 4))); e('v_add_u32 v%d, 8192, v%d' % (PV2+t, PV2+t))
s0 = S_ACC
e('v_max3_f32 v26, v%d, v%d, v%d' % (s0, s0+1, s0+2))
for k in range(3, 15, 2): e('v_max3_f32 v26, v26, v%d, v%d' % (s0+k, s0+k+1))
e('v_max_f32 v26, v26, v%d' % (s0+15))
e('v_mov_b32 v27, v26'); nop(2); e('v_permlane32_swap_b32 v26, v27'); nop(1); e('v_max_f32 v26, v26, v27')
astamp(2)
MX = SCR
e('v_and_b32 v20, 31, v1'); e('v_lshlrev_b32 v20, 2, v20'); e('v_add_u32 v20, %d, v20' % MX)
e('s_lshl_b32 s8, s4, 7'); e('v_add_u32 v22, s8, v20')
e('ds_write_b32 v22, v26')
barrier()
for w in range(4): e('ds_read_b32 v%d, v20 offset:%d' % (28+w, 128*w))
e('s_lshl_b32 s8, s4, 11'); e('s_add_u32 s8, s8, 8192'); e('v_add_u32 v23, s8, v%d' % QB)
e('s_waitcnt lgkmcnt(0)')
e('v_max3_f32 v26, v28, v29, v30'); e('v_max_f32 v26, v26, v31')
astamp(3)
e('v_mov_b32 v27, v26'); nop(1)
for k in range(0, 16, 2): e('v_pk_add_f32 v[%d:%d], v[%d:%d], v[26:27] neg_lo:[0,1] neg_hi:[0,1]' % (s0+k, s0+k+1, s0+k, s0+k+1))
for k in range(16): e('v_exp_f32 v%d, v%d' % (s0+k, s0+k))
e('v_pk_add_f32 v[28:29], v[%d:%d], v[%d:%d]' % (s0, s0+1, s0+2, s0+3)); e('v_pk_add_f32 v[30:31], v[%d:%d], v[%d:%d]' % (s0+4, s0+5, s0+6, s0+7))
for k in (8, 12): e('v_pk_add_f32 v[28:29], v[28:29], v[%d:%d]' % (s0+k, s0+k+1)); e('v_pk_add_f32 v[30:31], v[30:31], v[%d:%d]' % (s0+k+2, s0+k+3))
for k in range(8): e('v_cvt_pk_bf16_f32 v%d, v%d, v%d' % (s0+k, s0+2*k, s0+2*k+1))
e('v_pk_add_f32 v[28:29], v[28:29], v[30:31]')
e('ds_write_b128 v23, v[%d:%d]' % (s0, s0+3)); e('ds_write_b128 v23, v[%d:%d] offset:1024' % (s0+4, s0+7))
e('v_add_f32 v27, v28, v29')
e('v_mov_b32 v28, v27'); nop(2); e('v_permlane32_swap_b32 v27, v28'); nop(1); e('v_add_f32 v27, v27, v28')
e('ds_write_b32 v22, v27 offset:512')
barrier()
stamp(7)
for ks in range(8): e('ds_read_b128 a[%d:%d], v%d offset:%d' % (96+4*ks, 99+4*ks, QB, 8192+ks*1024))
for w in range(4): e('ds_read_b32 v%d, v20 offset:%d' % (28+w, 512+128*w))
e('s_waitcnt lgkmcnt(0)')
e('s_barrier')
e('v_add_f32 v27, v28, v29'); e('v_add_f32 v27, v27, v30'); e('v_add_f32 v27, v27, v31')
steps = [(ks, t) for ks in range(8) for t in range(4)]
def pv_read(q):
    ks, t = steps[q]
    if ks == 4 and t == 0:
        for k in range(8): e('v_add_u32 v%d, 0x10000, v%d' % (PV1+k, PV1+k))
    o = (ks & 3)*16384; r = 128 + 4*(q % R)
    e('ds_read_b64_tr_b16 a[%d:%d], v%d offset:%d' % (r, r+1, PV1+t, o))
    e('ds_read_b64_tr_b16 a[%d:%d], v%d offset:%d' % (r+2, r+3, PV2+t, o))
astamp(4)
for q in range(D): pv_read(q)
for q in range(32):
    if q+D < 32: pv_read(q+D)
    out = min(D, 31-q)
    e('s_waitcnt lgkmcnt(%d)' % (2*out))
    ks, t = steps[q]; r = 128 + 4*(q % R)
    e('v_mfma_f32_32x32x16_bf16 v[%d:%d], a[%d:%d], a[%d:%d], %s' % (128+16*t, 128+16*t+15, r, r+3, 96+4*ks, 99+4*ks, '0' if ks == 0 else 'v[%d:%d]' % (128+16*t, 128+16*t+15)))
astamp(5)
e('v_and_b32 v20, 31, v1'); e('v_lshrrev_b32 v22, 5, v1'); e('v_and_b32 v23, 15, v20'); e('v_xor_b32 v23, v23, v22'); e('v_lshlrev_b32 v23, 4, v23')
e('v_lshlrev_b32 v24, 8, v20'); e('s_lshl_b32 s8, s4, 13'); e('s_add_u32 s8, s8, %d' % SCR); e('v_add3_u32 v23, v23, v24, s8')
nop(4)
for s_ in range(8):
    b = 128 + 8*s_
    for k in range(4): e('v_cvt_pk_bf16_f32 v%d, v%d, v%d' % (208+4*(s_ & 1)+k, b+2*k, b+2*k+1))
    e('v_xor_b32 v24, %d, v23' % (s_ << 5))
    e('ds_write_b128 v24, v[%d:%d]' % (208+4*(s_ & 1), 211+4*(s_ & 1)))
stamp(8)
e('v_lshlrev_b32 v21, 4, v1'); e('v_add_u32 v20, s8, v21')
e('s_waitcnt lgkmcnt(0)')
for i in range(8): e('ds_read_b128 v[%d:%d], v20 offset:%d' % (208+4*i, 211+4*i, i*1024))
e('v_lshlrev_b32 v22, 18, v3'); e('v_xor_b32 v23, v2, v3'); e('v_lshlrev_b32 v23, 4, v23')
e('s_lshl_b32 s9, s3, 8'); e('s_add_u32 s9, s9, %d' % WS_PART); e('s_lshl_b32 s10, s4, 16'); e('s_add_u32 s9, s9, s10')
for i in range(8):
    e('v_xor_b32 v24, %d, v23' % ((4*(i & 3)) << 4)); e('v_add_u32 v24, v24, v22')
    e('s_waitcnt lgkmcnt(%d)' % (7-i))
    e('buffer_store_dwordx4 v[%d:%d], v24, %s, s9 offen sc1' % (208+4*i, 211+4*i, WS))
    e('s_add_u32 s9, s9, 0x100000')
astamp(6)
e('v_mov_b32 v128, v26'); e('v_mov_b32 v129, %s' % sN); e('v_mov_b32 v130, v27'); e('v_mov_b32 v131, %s' % sN)
e('v_lshlrev_b32 v20, 14, v1'); e('s_lshl_b32 s8, s3, 4'); e('s_lshl_b32 s9, s4, 12'); e('s_add_u32 s8, s8, s9'); e('s_add_u32 s8, s8, %d' % WS_STATS)
e('v_cmp_gt_u32 vcc, 32, v1')
e('s_waitcnt vmcnt(0)')
astamp(7)
e('s_and_saveexec_b64 s[14:15], vcc')
e('buffer_store_dwordx4 v[128:131], v20, %s, s8 offen sc1' % WS)
e('s_mov_b64 exec, s[14:15]')
e('s_barrier')
stamp(9)
e('s_cmp_lt_u32 s3, 128'); e('s_cbranch_scc1 L_LATE_E')

e('s_sub_u32 s5, s3, 128'); e('s_lshr_b32 s5, s5, 2')
e('s_and_b32 s6, s3, 3')
e('v_lshlrev_b32 v21, 4, v1')
e('s_lshl_b32 s8, s5, 2'); e('s_add_u32 s8, s8, s6'); e('s_lshl_b32 s7, s8, 12'); e('s_add_u32 s7, s7, %d' % WS_STATS)
e('s_lshl_b32 s8, s8, 16'); e('s_add_u32 s8, s8, %d' % WS_PART); e('s_lshl_b32 s9, s4, 14'); e('s_add_u32 s8, s8, s9')
e('v_lshlrev_b32 v20, 12, v3'); e('v_lshl_add_u32 v20, v2, 4, v20')
e('s_lshl_b32 s9, s4, 10'); e('s_add_u32 s9, s9, s7')
pollp(3, lambda k: ['buffer_load_dwordx4 v[%d:%d], v21, %s, s9 offen sc1' % (224+4*k, 227+4*k, WS)], lambda k: [225+4*k, 227+4*k], lambda k: [])
st4 = ['buffer_load_dwordx4 v[%d:%d], v21, %s, s7 offen offset:%d sc1' % (208+4*k, 211+4*k, WS, 1024*k) for k in range(4)]
for x_ in st4: e(x_)
for i in range(16):
    e('buffer_load_dwordx4 v[%d:%d], v20, %s, s8 offen offset:%d sc1' % (64+4*i, 67+4*i, WS, 256*i))
e('s_waitcnt vmcnt(16)')
tagchk([209+2*k for k in range(8)])
e('s_cbranch_vccz L_S4P2')
poll(st4, [209+2*k for k in range(8)], sleep=0)
e('L_S4P2:')
stamp(10)
lstamp(1)
e('v_max3_f32 v22, v208, v212, v216'); e('v_max_f32 v22, v22, v220')
wave_reduce(22, 'max'); e('v_readlane_b32 s9, v22, 63'); nop(2)
for k in range(4):
    e('v_subrev_f32 v%d, s9, v%d' % (208+4*k, 208+4*k)); e('v_exp_f32 v%d, v%d' % (208+4*k, 208+4*k))
nop(1)
e('v_mul_f32 v22, v208, v210')
for k in range(1, 4): e('v_fmac_f32 v22, v%d, v%d' % (208+4*k, 210+4*k))
wave_reduce(22); e('v_readlane_b32 s10, v22, 63')
e('v_mov_b32 v23, v208')
for k in range(1, 4):
    e('s_cmp_eq_u32 s4, %d' % k); e('s_cselect_b64 vcc, -1, 0'); e('v_cndmask_b32 v23, v23, v%d, vcc' % (208+4*k))
e('v_cvt_pk_bf16_f32 v24, v23, v23')
e('v_and_b32 v25, 0xffff0000, v24'); e('v_sub_f32 v25, v23, v25'); e('v_cvt_pk_bf16_f32 v25, v25, v25')
e('v_lshlrev_b32 v26, 2, v0'); e('v_add_u32 v26, %d, v26' % XX)
e('ds_write_b32 v26, v24'); e('ds_write_b32 v26, v25 offset:1024')
e('v_lshrrev_b32 v26, 3, v2'); e('v_lshlrev_b32 v26, 10, v26'); e('v_lshl_add_u32 v26, v3, 6, v26'); e('s_lshl_b32 s9, s4, 8'); e('s_add_u32 s9, s9, %d' % XX); e('v_add_u32 v26, s9, v26')
e('s_waitcnt lgkmcnt(0)')
for k in range(4): e('ds_read_b128 v[%d:%d], v26 offset:%d' % (XR+4*k, XR+4*k+3, 16*k))
e('s_waitcnt lgkmcnt(0)')
lstamp(2)
e('s_waitcnt vmcnt(0)')
gemv(16, 64, XR)
stamp(11)
e('v_lshrrev_b32 v20, 1, v3'); e('s_lshl_b32 s8, s4, 1'); e('v_add_u32 v20, s8, v20'); e('v_lshlrev_b32 v20, 9, v20')
e('v_and_b32 v22, 1, v3'); e('v_lshlrev_b32 v22, 4, v22'); e('v_lshl_add_u32 v22, v2, 5, v22'); e('v_add3_u32 v20, v20, v22, %s' % 's58')
L.insert(len(L)-1, '    s_mov_b32 s58, %d' % RED)
e('ds_write_b128 v20, v[%d:%d]' % (ACC, ACC+3))
barrier()
lstamp(3)
l = lab(); exec_lt(128, l)
e('v_lshlrev_b32 v20, 2, v0'); e('v_add_u32 v22, %d, v20' % RED)
for s in range(8): e('ds_read_b32 v%d, v22 offset:%d' % (XR+s, 512*s))
e('v_mov_b32 v23, s10'); e('v_rcp_f32 v23, v23')
e('s_waitcnt lgkmcnt(0)')
for s in range(1, 8): e('v_add_f32 v%d, v%d, v%d' % (XR, XR, XR+s))
e('v_mul_f32 v23, v23, v%d' % XR); e('v_cvt_pk_bf16_f32 v23, v23, v23')
e('v_add_u32 v20, %d, v20' % XX); e('ds_write_b32 v20, v23')
exec_restore(l)
barrier()
lstamp(4)
e('v_lshlrev_b32 v26, 5, v3'); e('s_lshl_b32 s9, s4, 7'); e('s_add_u32 s9, s9, %d' % XX); e('v_add_u32 v26, s9, v26')
for k in range(2): e('ds_read_b128 v[%d:%d], v26 offset:%d' % (XR+4*k, XR+4*k+3, 16*k))
e('s_waitcnt lgkmcnt(0)')
lstamp(5)
gemv(8, WR, XR)
lstamp(6)

def red_w16(nslot_bytes):
    e('v_and_b32 v22, 1, v3'); e('v_lshlrev_b32 v22, 4, v22'); e('v_lshl_add_u32 v22, v2, 5, v22')
    e('s_mul_i32 s8, s4, %d' % nslot_bytes); e('s_add_u32 s8, s8, %d' % RED); e('v_add_u32 v20, s8, v22')
    e('v_cmp_gt_u32 vcc, 2, v3'); e('s_and_saveexec_b64 s[14:15], vcc')
    e('ds_write_b128 v20, v[%d:%d]' % (ACC, ACC+3))
    e('s_mov_b64 exec, s[14:15]')
    barrier()
def pair_sum_publish(sbase):
    l = lab(); exec_lt(64, l)
    e('v_lshlrev_b32 v20, 3, v0'); e('v_add_u32 v22, %d, v20' % RED)
    for s in range(4): e('ds_read_b64 v[%d:%d], v22 offset:%d' % (XR+2*s, XR+2*s+1, 512*s))
    e('s_waitcnt lgkmcnt(0)')
    for s in range(1, 4):
        e('v_add_f32 v%d, v%d, v%d' % (XR, XR, XR+2*s)); e('v_add_f32 v%d, v%d, v%d' % (XR+1, XR+1, XR+2*s+1))
    e('v_cvt_pk_bf16_f32 v22, v%d, v%d' % (XR, XR+1)); e('v_mov_b32 v23, %s' % sN)
    e('buffer_store_dwordx2 v[22:23], v20, %s, %s offen sc1' % (WS, sbase))
    exec_restore(l)
red_w16(512)
lstamp(7)
e('s_lshl_b32 s9, s5, 2'); e('s_add_u32 s9, s9, s6'); e('s_lshl_b32 s9, s9, 9'); e('s_add_u32 s9, s9, %d' % WS_CTX)
pair_sum_publish('s9')
stamp(12)
e('s_branch L_FIN')

e('L_LATE_E:')
e('s_cmp_ge_u32 s3, 107'); e('s_cbranch_scc1 L_FIN')
e('s_cmp_lt_u32 s3, 67'); e('s_cbranch_scc1 L_LATE_E2')
e('s_sub_u32 s6, s3, 47')
srd(SA, 36, 640*7680); srd(SB, 34, 1280)
e('v_lshrrev_b32 v24, 3, v2'); e('v_lshl_add_u32 v24, v24, 2, v3'); e('v_mul_u32_u24 v24, 20, v24')
e('s_mul_i32 s8, s4, 160'); e('v_add_u32 v24, s8, v24')
e('s_movk_i32 s10, 7680'); e('v_mul_lo_u32 v20, v24, s10'); e('v_and_b32 v21, 7, v2'); e('v_lshlrev_b32 v21, 4, v21')
e('s_lshl_b32 s11, s6, 7'); e('v_add3_u32 v20, v20, v21, s11')
e('v_lshlrev_b32 v21, 3, v0'); e('buffer_load_dwordx2 v[112:113], v21, %s, 0 offen' % SB)
for i in range(20):
    e('s_mov_b32 s12, %d' % (i*7680)); e('buffer_load_dwordx4 v[%d:%d], v20, %s, s12 offen nt' % (WR+4*i, WR+4*i+3, SA))
e('s_waitcnt vmcnt(20)')
unpack(114, 115, 112); unpack(116, 117, 113)
for r in range(114, 118):
    e('v_mul_f32 v28, 0xbfb8aa3b, v%d' % r); e('v_exp_f32 v28, v28'); nop(1)
    e('v_add_f32 v28, 1.0, v28'); e('v_rcp_f32 v28, v28'); nop(1); e('v_mul_f32 v%d, v%d, v28' % (r, r))
e('v_cvt_pk_bf16_f32 v26, v114, v115'); e('v_cvt_pk_bf16_f32 v27, v116, v117')
e('v_perm_b32 v28, v26, v26, %s' % SEL_LO); e('v_perm_b32 v29, v26, v26, %s' % SEL_HI)
e('v_perm_b32 v30, v27, v27, %s' % SEL_LO); e('v_perm_b32 v31, v27, v27, %s' % SEL_HI)
e('v_lshlrev_b32 v21, 4, v0'); e('v_add_u32 v21, %d, v21' % XX)
l = lab(); exec_lt(160, l); e('ds_write_b128 v21, v[28:31]'); exec_restore(l)
barrier()
gemv_w8_tail(20, 0)
l = lab(); exec_lt(32, l)
e('v_lshlrev_b32 v20, 3, v0'); e('v_add_u32 v21, %d, v20' % RED)
for s_ in range(8): e('ds_read_b64 v[%d:%d], v21 offset:%d' % (XR+2*s_, XR+2*s_+1, 256*s_))
e('s_lshl_b32 s8, s6, 8'); e('s_add_u32 s8, s8, %d' % WS_MOD); e('v_mov_b32 v23, %s' % sN)
e('s_waitcnt lgkmcnt(0)')
for s_ in (4, 2, 1):
    for k in range(s_): e('v_pk_add_f32 v[%d:%d], v[%d:%d], v[%d:%d]' % (XR+2*k, XR+2*k+1, XR+2*k, XR+2*k+1, XR+2*(k+s_), XR+2*(k+s_)+1))
e('v_cvt_pk_bf16_f32 v22, v%d, v%d' % (XR, XR+1))
e('buffer_store_dwordx2 v[22:23], v20, %s, s8 offen sc1' % WS)
exec_restore(l)
e('s_branch L_FIN')
e('L_LATE_E2:')
e('s_cmp_ge_u32 s3, 40'); e('s_cbranch_scc1 L_MLP')
e('s_mul_i32 s5, s3, 52'); e('s_lshr_b32 s5, s5, 8')
e('s_mul_i32 s6, s5, 5'); e('s_sub_u32 s6, s3, s6')
srd(SA, 26, 4096*1280)
e('s_lshl_b32 s8, s5, 9'); e('s_lshl_b32 s9, s4, 7'); e('s_add_u32 s8, s8, s9'); e('v_lshl_add_u32 v20, v3, 5, s8')
e('s_movk_i32 s10, 1280'); e('v_mul_lo_u32 v20, v20, s10'); e('s_lshl_b32 s9, s6, 8'); e('v_lshlrev_b32 v22, 4, v2'); e('v_add3_u32 v20, v20, v22, s9')
for i in range(32):
    e('s_mov_b32 s12, %d' % ((i // 3)*3*1280)); e('buffer_load_dwordx4 v[%d:%d], v20, %s, s12 offen offset:%d nt' % (WR+4*i, WR+4*i+3, SA, (i % 3)*1280))
e('s_lshl_b32 s8, s5, 2'); e('s_add_u32 s8, s8, s4'); e('s_lshl_b32 s8, s8, 11'); e('s_add_u32 s8, s8, %d' % WS_CTX)
e('v_lshlrev_b32 v21, 3, v1')
e('s_lshl_b32 s9, s4, 9'); e('s_add_u32 s9, s9, %d' % XX); e('v_add_u32 v25, s9, v21')
e('v_lshlrev_b32 v26, 7, v3'); e('v_add_u32 v26, s9, v26')
e('v_and_b32 v22, 1, v3'); e('v_lshlrev_b32 v22, 4, v22'); e('v_lshl_add_u32 v22, v2, 5, v22')
e('s_lshl_b32 s9, s4, 9'); e('s_add_u32 s9, s9, %d' % RED); e('v_add_u32 v24, s9, v22')
e('v_cmp_gt_u32 s[12:13], 2, v3')
e('s_lshl_b32 s10, s5, 12'); e('s_lshl_b32 s11, s6, 9'); e('s_add_u32 s10, s10, s11'); e('s_add_u32 s10, s10, %d' % WS_X1P)
e('v_lshlrev_b32 v27, 3, v0'); e('v_add_u32 v23, %d, v27' % RED)
st = lambda k: 224 + 8*k
pollp(3, lambda k: ['buffer_load_dwordx2 v[%d:%d], v21, %s, s8 offen offset:%d sc1' % (st(k)+2*j, st(k)+2*j+1, WS, 512*j) for j in range(4)],
      lambda k: [st(k)+1+2*j for j in range(4)], lambda k: [st(k)+2*j for j in range(4)] if k < 3 else [248, 249, 250, 251])
stamp(10)
for k in range(4): unpack(8+2*k, 9+2*k, 248+k)
e('v_pk_add_f32 v[8:9], v[8:9], v[10:11]'); e('v_pk_add_f32 v[12:13], v[12:13], v[14:15]'); e('v_pk_add_f32 v[8:9], v[8:9], v[12:13]')
e('v_cvt_pk_bf16_f32 v28, v8, v9')
e('v_perm_b32 v30, v28, v28, %s' % SEL_LO); e('v_perm_b32 v31, v28, v28, %s' % SEL_HI)
e('ds_write_b64 v25, v[30:31]')
e('s_waitcnt lgkmcnt(0)')
for k in range(8): e('ds_read_b128 v[%d:%d], v26 offset:%d' % (XR+4*k, XR+4*k+3, 16*k))
e('s_waitcnt lgkmcnt(6)')
gemv(32, WR, XR, wait=lambda i: e('s_waitcnt lgkmcnt(%d)' % max(0, 6-(i+2)//4)) if (i % 4 == 2 and i < 28) else None)
e('s_mov_b64 s[14:15], exec'); e('s_mov_b64 exec, s[12:13]')
e('ds_write_b128 v24, v[%d:%d]' % (ACC, ACC+3))
e('s_mov_b64 exec, s[14:15]')
barrier()
l = lab(); exec_lt(64, l)
for s_ in range(4): e('ds_read_b64 v[%d:%d], v23 offset:%d' % (XR+2*s_, XR+2*s_+1, 512*s_))
e('v_mov_b32 v29, %s' % sN)
e('s_waitcnt lgkmcnt(0)')
e('v_pk_add_f32 v[%d:%d], v[%d:%d], v[%d:%d]' % (XR, XR+1, XR, XR+1, XR+2, XR+3)); e('v_pk_add_f32 v[%d:%d], v[%d:%d], v[%d:%d]' % (XR+4, XR+5, XR+4, XR+5, XR+6, XR+7))
e('v_pk_add_f32 v[%d:%d], v[%d:%d], v[%d:%d]' % (XR, XR+1, XR, XR+1, XR+4, XR+5))
e('v_cvt_pk_bf16_f32 v28, v%d, v%d' % (XR, XR+1))
e('buffer_store_dwordx2 v[28:29], v27, %s, s10 offen sc1' % WS)
exec_restore(l)
stamp(12)
e('s_branch L_FIN')

e('L_MLP:')
e('s_sub_u32 s5, s3, 40')
srd(SA, 30, 640*3456)
e('v_lshrrev_b32 v20, 3, v2'); e('v_lshl_add_u32 v20, v20, 2, v3'); e('v_mul_u32_u24 v20, 20, v20')
e('s_mul_i32 s8, s4, 160'); e('v_add_u32 v24, s8, v20')
e('s_movk_i32 s10, 3456'); e('v_mul_lo_u32 v20, v24, s10'); e('v_and_b32 v21, 7, v2'); e('v_lshlrev_b32 v21, 4, v21')
e('s_lshl_b32 s9, s5, 7'); e('v_add3_u32 v20, v20, v21, s9')
for i in range(20):
    e('s_mov_b32 s12, %d' % (i*3456)); e('buffer_load_dwordx4 v[%d:%d], v20, %s, s12 offen nt' % (WR+4*i, WR+4*i+3, SA))
srd(SA, 32, 1728*1280)
e('s_lshl_b32 s8, s5, 6'); e('s_lshl_b32 s9, s4, 4'); e('s_add_u32 s8, s8, s9'); e('v_lshl_add_u32 v20, v3, 2, s8')
e('s_movk_i32 s10, 1280'); e('v_mul_lo_u32 v20, v20, s10'); e('v_lshl_add_u32 v20, v2, 4, v20')
for i in range(4):
    e('s_mov_b32 s12, %d' % (i*1280))
    for cg in range(5):
        r = 112 + 4*(5*i + cg)
        e('buffer_load_dwordx4 v[%d:%d], v20, %s, s12 offen offset:%d nt' % (r, r+3, SA, cg*256))
srd(SB, 16, 1280)
lm = lab(); exec_lt(160, lm)
e('v_lshlrev_b32 v21, 3, v0'); e('buffer_load_dwordx2 v[224:225], v21, %s, 0 offen' % SB)
e('v_lshlrev_b32 v21, 4, v0')
lds_ = []
for q in range(4):
    lds_.append('s_mov_b32 s12, %d' % (WS_MOD + (2+q)*2560))
    lds_.append('buffer_load_dwordx4 v[%d:%d], v21, %s, s12 offen sc1' % (192+4*q, 195+4*q, WS))
poll(lds_, [193+2*k for k in range(8)], sleep=4)
for q in range(4):
    b = 192+4*q; d = 240+4*q
    unpack(d, d+1, b); unpack(d+2, d+3, b+2)
unpack(236, 237, 224); unpack(238, 239, 225)
for k in range(4): e('v_add_f32 v%d, 1.0, v%d' % (248+k, 248+k))
lds_ = []
for kg in range(8):
    lds_.append('s_mov_b32 s12, %d' % (WS_X1P + kg*4096))
    lds_.append('buffer_load_dwordx4 v[%d:%d], v21, %s, s12 offen sc1' % (192+4*kg, 195+4*kg, WS))
X1L = SCR + 16384; GBL = X1L + 4096
e('v_add_u32 v25, %d, v21' % X1L); e('ds_write_b128 v25, v[252:255] offset:4096')
poll(lds_, [193+2*k for k in range(16)], sleep=0)
stamp(10)
unpack(232, 233, 192); unpack(234, 235, 194)
for kg in range(1, 8):
    b = 192+4*kg
    unpack(224, 225, b); unpack(226, 227, b+2)
    e('v_pk_add_f32 v[232:233], v[232:233], v[224:225]'); e('v_pk_add_f32 v[234:235], v[234:235], v[226:227]')
e('v_pk_fma_f32 v[232:233], v[240:241], v[232:233], v[236:237]'); e('v_pk_fma_f32 v[234:235], v[242:243], v[234:235], v[238:239]')
e('v_pk_add_f32 v[22:23], v[232:233], v[234:235]'); e('v_pk_mul_f32 v[28:29], v[232:233], v[232:233]'); e('v_pk_fma_f32 v[28:29], v[234:235], v[234:235], v[28:29]')
e('ds_write_b128 v25, v[232:235]')
e('v_add_f32 v22, v22, v23'); e('v_add_f32 v23, v28, v29')
e('s_branch L_MS1')
e(lm + ':')
e('v_mov_b32 v22, 0'); e('v_mov_b32 v23, 0')
e('L_MS1:')
e('s_mov_b64 exec, s[14:15]')
e('v_cmp_gt_u32 vcc, 160, v0'); nop(2); e('v_cndmask_b32 v22, 0, v22, vcc'); e('v_cndmask_b32 v23, 0, v23, vcc')
for sh in (1, 2, 4, 8):
    nop(1)
    e('v_add_f32_dpp v22, v22, v22 row_shr:%d row_mask:0xf bank_mask:0xf bound_ctrl:0' % sh); e('v_add_f32_dpp v23, v23, v23 row_shr:%d row_mask:0xf bank_mask:0xf bound_ctrl:0' % sh)
nop(1); e('v_add_f32_dpp v22, v22, v22 row_bcast:15 row_mask:0xa bank_mask:0xf'); e('v_add_f32_dpp v23, v23, v23 row_bcast:15 row_mask:0xa bank_mask:0xf')
nop(1); e('v_add_f32_dpp v22, v22, v22 row_bcast:31 row_mask:0xc bank_mask:0xf'); e('v_add_f32_dpp v23, v23, v23 row_bcast:31 row_mask:0xc bank_mask:0xf')
ST = SCR + 3072
e('s_lshl_b32 s10, s4, 3'); e('s_add_u32 s10, s10, %d' % ST); e('v_mov_b32 v20, s10')
e('s_mov_b64 s[14:15], exec'); e('s_mov_b32 exec_lo, 0'); e('s_mov_b32 exec_hi, 0x80000000')
e('ds_write_b64 v20, v[22:23]')
e('s_mov_b64 exec, s[14:15]')
barrier()
e('v_mov_b32 v20, %d' % ST); e('ds_read_b128 v[24:27], v20'); e('ds_read_b128 v[28:31], v20 offset:16')
e('v_lshlrev_b32 v21, 4, v0'); e('v_add_u32 v21, %d, v21' % XX)
e('s_waitcnt lgkmcnt(0)')
e('v_pk_add_f32 v[24:25], v[24:25], v[26:27]'); e('v_pk_add_f32 v[28:29], v[28:29], v[30:31]'); e('v_pk_add_f32 v[22:23], v[24:25], v[28:29]')
e('v_mul_f32 v22, %s, v22' % hex(f2u(1/640.))); e('v_mul_f32 v23, %s, v23' % hex(f2u(1/640.)))
e('v_fma_f32 v23, -v22, v22, v23'); e('v_max_f32 v23, 0, v23'); e('v_add_f32 v23, %s, v23' % hex(f2u(1e-5))); e('v_rsq_f32 v24, v23'); e('v_mov_b32 v23, v22')
lm = lab(); exec_lt(160, lm)
e('v_mov_b32 v25, v24')
for k in (0, 2):
    e('v_pk_add_f32 v[%d:%d], v[%d:%d], v[22:23] neg_lo:[0,1] neg_hi:[0,1]' % (224+k, 225+k, 232+k, 233+k))
    e('v_pk_mul_f32 v[%d:%d], v[%d:%d], v[%d:%d]' % (228+k, 229+k, 248+k, 249+k, 24, 25))
    e('v_pk_fma_f32 v[%d:%d], v[%d:%d], v[%d:%d], v[%d:%d]' % (224+k, 225+k, 224+k, 225+k, 228+k, 229+k, 244+k, 245+k))
e('v_cvt_pk_bf16_f32 v26, v224, v225'); e('v_cvt_pk_bf16_f32 v27, v226, v227')
e('v_perm_b32 v28, v26, v26, %s' % SEL_LO); e('v_perm_b32 v29, v26, v26, %s' % SEL_HI)
e('v_perm_b32 v30, v27, v27, %s' % SEL_LO); e('v_perm_b32 v31, v27, v27, %s' % SEL_HI)
e('ds_write_b128 v21, v[28:31]')
exec_restore(lm)
e('v_lshrrev_b32 v20, 3, v2'); e('v_lshl_add_u32 v22, v20, 2, v3'); e('v_mul_u32_u24 v22, 80, v22')
e('s_mul_i32 s8, s4, 640'); e('s_add_u32 s8, s8, %d' % XX); e('v_add_u32 v21, s8, v22')
e('v_lshrrev_b32 v22, 1, v3'); e('v_cmp_eq_u32 s[12:13], v20, v22')
e('s_lshl_b32 s8, s4, 1'); e('v_add_u32 v20, s8, v20'); e('v_lshlrev_b32 v20, 8, v20')
e('v_and_b32 v22, 7, v2'); e('v_lshlrev_b32 v22, 5, v22'); e('v_and_b32 v23, 1, v3'); e('v_lshlrev_b32 v23, 4, v23')
e('v_add3_u32 v20, v20, v22, v23'); e('v_add_u32 v20, %d, v20' % RED)
barrier()
for i in range(0, 20, 4): e('ds_read_b128 v[%d:%d], v21 offset:%d' % (XR+i, XR+i+3, 4*i))
e('s_waitcnt vmcnt(0) lgkmcnt(3)')
gemv(20, WR, XR, wait=lambda i: e('s_waitcnt lgkmcnt(%d)' % max(0, 3-(i+2)//4)) if (i % 4 == 2 and i < 16) else None)
e('s_mov_b64 s[14:15], exec'); e('s_mov_b64 exec, s[12:13]')
e('ds_write_b128 v20, v[%d:%d]' % (ACC, ACC+3))
e('s_mov_b64 exec, s[14:15]')
XX3 = SCR + 3584
e('v_lshlrev_b32 v20, 2, v0'); e('v_add_u32 v21, %d, v20' % RED); e('v_add_u32 v20, %d, v20' % XX3)
barrier()
l = lab(); exec_lt(64, l)
for s_ in range(8): e('ds_read_b32 v%d, v21 offset:%d' % (XR+s_, 256*s_))
e('s_waitcnt lgkmcnt(0)')
e('v_pk_add_f32 v[%d:%d], v[%d:%d], v[%d:%d]' % (XR, XR+1, XR, XR+1, XR+4, XR+5)); e('v_pk_add_f32 v[%d:%d], v[%d:%d], v[%d:%d]' % (XR+2, XR+3, XR+2, XR+3, XR+6, XR+7))
e('v_pk_add_f32 v[%d:%d], v[%d:%d], v[%d:%d]' % (XR, XR+1, XR, XR+1, XR+2, XR+3)); e('v_add_f32 v22, v%d, v%d' % (XR, XR+1))
e('v_max_f32 v22, 0, v22'); e('v_cvt_pk_bf16_f32 v22, v22, v22')
e('ds_write_b32 v20, v22')
exec_restore(l)
barrier()
stamp(11)
e('v_lshlrev_b32 v20, 4, v3'); e('s_lshl_b32 s8, s4, 6'); e('s_add_u32 s8, s8, %d' % XX3); e('v_add_u32 v20, s8, v20')
e('ds_read_b128 v[%d:%d], v20' % (XR, XR+3))
e('s_waitcnt lgkmcnt(0)')
AF = 208
for i in range(4):
    for d in range(4): e('v_and_b32 v%d, v%d, v%d' % (AF+4*i+d, XR+i, MK[d]))
nop(2)
AC2 = 224
for i in range(4):
    for cg in range(5):
        r = 112 + 4*(5*i+cg); a = AC2+4*cg
        e('v_mfma_f32_16x16x32_bf16 v[%d:%d], v[%d:%d], v[%d:%d], %s' % (a, a+3, AF+4*i, AF+4*i+3, r, r+3, '0' if i == 0 else 'v[%d:%d]' % (a, a+3)))
nop(8)
e('v_and_b32 v22, 1, v3'); e('v_lshlrev_b32 v22, 4, v22'); e('v_lshl_add_u32 v22, v2, 5, v22')
e('s_mul_i32 s8, s4, 2560'); e('s_add_u32 s8, s8, %d' % RED); e('v_add_u32 v20, s8, v22')
e('v_cmp_gt_u32 vcc, 2, v3'); e('s_and_saveexec_b64 s[14:15], vcc')
for cg in range(5): e('ds_write_b128 v20, v[%d:%d] offset:%d' % (AC2+4*cg, AC2+4*cg+3, 512*cg))
e('s_mov_b64 exec, s[14:15]')
barrier()
l = lab(); exec_lt(160, l)
e('v_lshlrev_b32 v21, 4, v0'); e('v_add_u32 v20, %d, v21' % RED)
for s in range(4): e('ds_read_b128 v[%d:%d], v20 offset:%d' % (XR+4*s, XR+4*s+3, 2560*s))
e('s_waitcnt lgkmcnt(0)')
for s in range(1, 4):
    for k in range(4): e('v_add_f32 v%d, v%d, v%d' % (XR+k, XR+k, XR+4*s+k))
e('v_mov_b32 v208, v192'); e('v_mov_b32 v209, %s' % sN); e('v_mov_b32 v210, v193'); e('v_mov_b32 v211, %s' % sN)
e('v_mov_b32 v212, v194'); e('v_mov_b32 v213, %s' % sN); e('v_mov_b32 v214, v195'); e('v_mov_b32 v215, %s' % sN)
e('v_lshlrev_b32 v20, 5, v0'); e('s_lshl_b32 s8, s5, 13'); e('s_add_u32 s8, s8, %d' % WS_MLP)
e('buffer_store_dwordx4 v[208:211], v20, %s, s8 offen sc1' % WS); e('buffer_store_dwordx4 v[212:215], v20, %s, s8 offen offset:16 sc1' % WS)
exec_restore(l)
stamp(12)
e('s_cmp_ge_u32 s5, 20'); e('s_cbranch_scc1 L_FIN')
e('v_and_b32 v20, 31, v0'); e('v_lshrrev_b32 v21, 5, v0')
e('v_lshlrev_b32 v22, 13, v21'); e('v_lshl_add_u32 v22, v20, 3, v22')
e('s_lshl_b32 s8, s5, 8'); e('s_add_u32 s8, s8, %d' % WS_MLP)
e('v_cmp_gt_u32 vcc, 3, v21'); e('v_add_u32 v23, %d, v22' % (24*8192)); nop(1); e('v_cndmask_b32 v23, v22, v23, vcc')
e('s_add_u32 s9, s8, %d' % (8*8192)); e('s_add_u32 s10, s8, %d' % (16*8192))
e('s_mov_b64 s[12:13], vcc')
st = lambda k: 216 + 8*k
pollp(3, lambda k: ['buffer_load_dwordx2 v[%d:%d], v%d, %s, %s offen sc1' % (st(k)+2*j, st(k)+2*j+1, a_, WS, so) for j, (a_, so) in enumerate([(22, 's8'), (22, 's9'), (22, 's10'), (23, 's8')])],
      lambda k: [st(k)+1+2*j for j in range(4)], lambda k: [st(k)+2*j for j in range(4)] if k < 3 else [192, 194, 196, 198])
stamp(13)
e('v_cndmask_b32 v198, 0, v198, s[12:13]')
e('v_add_f32 v192, v192, v194'); e('v_add_f32 v196, v196, v198'); e('v_add_f32 v192, v192, v196')
FR = SCR + 24576
e('v_lshlrev_b32 v22, 2, v0'); e('v_add_u32 v22, %d, v22' % FR); e('ds_write_b32 v22, v192')
barrier()
l = lab(); exec_lt(16, l)
e('v_lshlrev_b32 v20, 3, v0'); e('v_add_u32 v22, %d, v20' % FR)
for p in range(8): e('ds_read_b64 v[%d:%d], v22 offset:%d' % (192+2*p, 193+2*p, 128*p))
e('s_lshl_b32 s8, s5, 7'); e('s_add_u32 s8, s8, %d' % X1L); e('v_add_u32 v23, s8, v20')
e('ds_read_b64 v[208:209], v23'); e('ds_read_b64 v[210:211], v23 offset:4096')
e('s_waitcnt lgkmcnt(0)')
for p in range(1, 8): e('v_add_f32 v192, v192, v%d' % (192+2*p)); e('v_add_f32 v193, v193, v%d' % (193+2*p))
e('v_fma_f32 v192, v210, v192, v208'); e('v_fma_f32 v193, v211, v193, v209')
e('v_cvt_pk_bf16_f32 v192, v192, v193')
srd(SA, 38, 1280)
e('v_lshlrev_b32 v20, 2, v0'); e('s_lshl_b32 s8, s5, 6')
e('buffer_store_dword v192, v20, %s, s8 offen' % SA)
exec_restore(l)
e('s_cmp_lg_u32 s3, 40'); e('s_cbranch_scc1 L_FIN')
l = lab(); exec_lt(1, l)
e('v_mov_b32 v20, 0'); e('v_mov_b32 v22, s97'); e('buffer_store_dword v22, v20, %s, 0 offen sc1' % WS)
exec_restore(l)
e('L_FIN:')
if STAMPS and '--dbg' in sys.argv:
    stamp(14)
    e('s_load_dwordx2 s[8:9], s[0:1], 96')
    e('s_waitcnt lgkmcnt(0)')
    e('s_mov_b32 s10, 256'); e('s_mov_b32 s11, 0x20000')
    e('s_cmp_lg_u32 s3, 40'); e('s_cbranch_scc1 L_END')
    l = lab(); exec_lt(1, l)
    for k in range(15):
        e('v_mov_b32 v24, s%d' % (60+2*k)); e('v_mov_b32 v20, %d' % (4*k)); e('buffer_store_dword v24, v20, s[8:11], 0 offen'); nop(2)
    exec_restore(l)
elif STAMPS:
    stamp(14)
    e('s_waitcnt lgkmcnt(0)')
    l = lab(); exec_lt(1, l)
    e('s_lshl_b32 s8, s3, 6'); e('s_add_u32 s8, s8, %d' % WS_STAMP); e('v_mov_b32 v20, 0')
    for k in range(0, 16, 4):
        for j in range(4): e('v_mov_b32 v%d, s%d' % (24+j, 60+2*(k+j)))
        e('buffer_store_dwordx4 v[24:27], v20, %s, s8 offen offset:%d' % (WS, 4*k)); nop(2)
    exec_restore(l)
e('L_END:')
e('s_endpgm')
L.append('.section .rodata,"a"')
L.append('.p2align 6')
L.append('.amdhsa_kernel %s_kernel' % NAME)
for k, v in [('next_free_vgpr', 512), ('next_free_sgpr', 102), ('accum_offset', 256), ('group_segment_fixed_size', 0), ('kernarg_size', 112),
             ('user_sgpr_count', 2), ('user_sgpr_kernarg_segment_ptr', 1), ('system_sgpr_workgroup_id_x', 1)]:
    L.append('  .amdhsa_%s %d' % (k, v))
L.append('.end_amdhsa_kernel')
open(OUT, 'w').write('\n'.join(L) + '\n')
print('wrote', OUT, len(L), 'lines')
```

```python
import sys
def ARG(k,d):
    for a in sys.argv[1:]:
        if a.startswith('--%s='%k): return a.split('=')[1]
    return d
NAME = "adaLN_cond__compressed_kv_cla__dense_activation_relu__decode"
STAMPS = '--stamps' in sys.argv
OUT = [a for a in sys.argv[1:] if not a.startswith('--')]
OUT = OUT[0] if OUT else 'cdna_kernels/%s.s' % NAME

L = []
def e(s=''):
    for ln in s.split('\n'):
        L.append('    ' + ln.strip() if ln.strip() and not ln.strip().endswith(':') else ln.strip())
_lab = [0]
def lab(p='L'):
    _lab[0] += 1
    return '%s_%d' % (p, _lab[0])
def nop(n):
    while n > 0:
        k = min(n, 16); e('s_nop %d' % (k-1)); n -= k

WS_GEN=0; WS_MOD=0x1000; MOD_KH=0x4000; WS_Q=0x10000; WS_QAF=0x20000; WS_QA=0x28000
WS_STATS=0x900000; WS_CTX=0x60000; WS_X1P=0x70000; WS_MLP=0x80000; WS_STAMP=0xC0000; WS_PART=0x100000
WS_SIZE=0x980000
SCR=131072
XX=SCR; RED=SCR+4096
QSCALE = (128**-0.5)*1.4426950408889634
import struct
def f2u(f): return struct.unpack('<I', struct.pack('<f', f))[0]

sID='s3'; sW='s4'; sN='s42'; WS='s[44:47]'; SA='s[48:51]'; SB='s[52:55]'
SEL_LO='s56'; SEL_HI='s57'
vT='v0'; vL='v1'; vN='v2'; vG='v3'
MK=[4,5,6,7]; AB=[8,12]; ACC=16
WR=32; XR=192

nst=[0]
LATE = '--late' in sys.argv
ATT = '--att' in sys.argv
EARLY = '--early' in sys.argv
def estamp(k, wait=None):
    if STAMPS and EARLY:
        if wait is not None: e('s_waitcnt vmcnt(%d)' % wait)
        e('s_memrealtime s[%d:%d]' % (60+2*k, 61+2*k))
def stamp(k):
    if EARLY and 5 <= k <= 8: return
    if STAMPS and not ((LATE or ATT) and 1 <= k <= 8): e('s_memrealtime s[%d:%d]' % (60+2*k, 61+2*k))
def lstamp(k):
    if STAMPS and LATE: e('s_memrealtime s[%d:%d]' % (60+2*k, 61+2*k))
def astamp(k):
    if STAMPS and ATT: e('s_memrealtime s[%d:%d]' % (60+2*k, 61+2*k))

def srd(q, plo, size, add=None):
    b = int(q[2:q.index(':')])
    if add is None:
        e('s_mov_b32 s%d, s%d' % (b, plo)); e('s_mov_b32 s%d, s%d' % (b+1, plo+1))
    else:
        e('s_add_u32 s%d, s%d, %s' % (b, plo, add)); e('s_addc_u32 s%d, s%d, 0' % (b+1, plo+1))
    e('s_mov_b32 s%d, %d' % (b+2, size)); e('s_mov_b32 s%d, 0x20000' % (b+3))

def gemv(n, wbase, xbase, acc=ACC, wait=None):
    def ands(i):
        a = AB[i & 1]
        for d in range(4): e('v_and_b32 v%d, v%d, v%d' % (a+d, xbase+i, MK[d]))
    ands(0)
    for i in range(n):
        if i+1 < n: ands(i+1)
        else: nop(2)
        if wait: wait(i)
        a = AB[i & 1]
        c = '0' if i == 0 else 'v[%d:%d]' % (acc, acc+3)
        e('v_mfma_f32_16x16x32_bf16 v[%d:%d], v[%d:%d], v[%d:%d], %s' % (acc, acc+3, a, a+3, wbase+4*i, wbase+4*i+3, c))
    nop(8)

def wave_reduce(v, op='add', tmp=None):
    ins = 'v_add_f32_dpp' if op == 'add' else 'v_max_f32_dpp'
    for sh in (1,2,4,8):
        nop(2)
        if op == 'add': e('%s v%d, v%d, v%d row_shr:%d row_mask:0xf bank_mask:0xf bound_ctrl:0' % (ins, v, v, v, sh))
        else: e('%s v%d, v%d, v%d row_shr:%d row_mask:0xf bank_mask:0xf' % (ins, v, v, v, sh))
    nop(2); e('%s v%d, v%d, v%d row_bcast:15 row_mask:0xa bank_mask:0xf' % (ins, v, v, v))
    nop(2); e('%s v%d, v%d, v%d row_bcast:31 row_mask:0xc bank_mask:0xf' % (ins, v, v, v))
    nop(1)

def tagchk(tags):
    e('v_sad_u32 v30, v%d, %s, 0' % (tags[0], sN))
    for t in tags[1:]: e('v_sad_u32 v30, v%d, %s, v30' % (t, sN))
    e('v_cmp_ne_u32 vcc, 0, v30')
def poll(loads, tags, sleep=1, pre=None):
    l0 = lab('P'); l1 = lab('PD')
    e(l0 + ':')
    for s_ in loads: e(s_)
    e('s_waitcnt vmcnt(0)')
    tagchk(tags)
    e('s_cbranch_vccz %s' % l1)
    e('s_sub_u32 s59, s59, 1')
    e('s_cbranch_scc1 L_END')
    if sleep: e('s_sleep %d' % sleep)
    e('s_branch %s' % l0)
    e(l1 + ':')
def pollp(K, loads, tags, regs, sleep=0):
    P = sum(1 for x in loads(0) if x.startswith('buffer_'))
    l0 = lab('P'); ld = lab('PD'); dn = [lab('PK') for _ in range(K)]
    for k in range(K):
        for s_ in loads(k): e(s_)
    e(l0 + ':')
    for k in range(K):
        e('s_waitcnt vmcnt(%d)' % ((K-1)*P))
        tagchk(tags(k))
        e('s_cbranch_vccz %s' % dn[k])
        if k == 0:
            e('s_sub_u32 s59, s59, 1'); e('s_cbranch_scc1 L_END')
        if sleep: e('s_sleep %d' % sleep)
        for s_ in loads(k): e(s_)
    e('s_branch %s' % l0)
    for k in range(K-1, 0, -1):
        e(dn[k] + ':')
        e('s_waitcnt vmcnt(%d)' % ((K-1-k)*P if False else 0)) if False else None
        for d_, s_ in zip(regs(K), regs(k)): e('v_mov_b32 v%d, v%d' % (d_, s_))
        e('s_branch %s' % ld)
    e(dn[0] + ':')
    for d_, s_ in zip(regs(K), regs(0)): e('v_mov_b32 v%d, v%d' % (d_, s_))
    e(ld + ':')

def exec_lt(n, lbl):
    e('v_cmp_gt_u32 vcc, %d, %s' % (n, vT)); e('s_and_saveexec_b64 s[14:15], vcc'); e('s_cbranch_execz %s' % lbl)
def exec_restore(lbl):
    e(lbl + ':'); e('s_mov_b64 exec, s[14:15]')

def unpack(lo, hi, src):
    e('v_lshlrev_b32 v%d, 16, v%d' % (lo, src)); e('v_and_b32 v%d, 0xffff0000, v%d' % (hi, src))

def barrier(lds=True):
    if lds: e('s_waitcnt lgkmcnt(0)')
    e('s_barrier')

def hash_nonce():
    e('s_waitcnt lgkmcnt(0)')
    e('s_mul_i32 s8, %s, 0x9e3779b1' % sN); e('s_add_u32 s97, s8, 0x7f4a7c15')
    e('s_and_b32 %s, s97, 0xbfffbfff' % sN)

def swz(k): return ((k & 3) << 2) | ((k >> 2) & 3)
S1_A, S2_A = int(ARG('s1a',0)), int(ARG('s2a',8))
def dma_setup():
    e('s_lshl_b32 s8, s3, 17')
    srd('s[92:95]', 18, 131072, add='s8')
    e('v_lshlrev_b32 v19, 4, v1')
    e('s_lshl_b32 s96, s4, 15')
def dma_rows(r0, r1):
    e('v_lshlrev_b32 v31, 4, v1')
    for r in range(r0, r1):
        e('s_mov_b32 m0, s96')
        e('v_xor_b32 v30, %d, v31' % (swz(r) << 4))
        e('buffer_load_dwordx4 v30, s[92:95], s96 offen nt lds')
        e('s_add_u32 s96, s96, 1024')

L[-1] = L[-1].strip()
L.append('; @launch grid=(256,1,1) block=(256,1,1) lds=163840')
L.append('.amdgcn_target "amdgcn-amd-amdhsa--gfx950"')
L.append('.text')
L.append('.globl %s_kernel' % NAME)
L.append('.p2align 8')
L.append('.type %s_kernel,@function' % NAME)
L.append('%s_kernel:' % NAME)
e('s_cmp_ge_u32 s2, 256')
e('s_cbranch_scc1 L_END')
stamp(0)
if '--dbg' in sys.argv:
    for k in range(1, 16): e('s_mov_b32 s%d, 0' % (60+2*k))
e('s_load_dwordx16 s[16:31], s[0:1], 0')
e('s_load_dwordx8 s[32:39], s[0:1], 64')
e('s_load_dwordx2 s[40:41], s[0:1], 104')
e('s_sub_u32 s3, s2, 40'); e('s_add_u32 s5, s2, 192'); e('s_cmp_lt_u32 s2, 40'); e('s_cselect_b32 s3, s5, s3')
e('s_cmp_ge_u32 s2, 232'); e('s_cselect_b32 s3, s2, s3')
e('v_and_b32 v1, 63, v0')
e('v_and_b32 v2, 15, v0')
e('v_bfe_u32 v3, v0, 4, 2')
e('v_lshrrev_b32 v20, 6, v0')
e('s_mov_b32 s56, 0x01000100')
e('s_mov_b32 s57, 0x03020302')
e('s_mov_b32 s59, 0x10000')
e('v_readfirstlane_b32 s4, v20')
def masks():
    e('v_and_b32 v20, 1, v0'); e('v_lshlrev_b32 v20, 4, v20'); e('v_mov_b32 v21, 0xffff'); e('v_lshlrev_b32 v21, v20, v21')
    e('v_bfe_u32 v22, v0, 1, 2')
    for d in range(4):
        e('v_cmp_eq_u32 vcc, %d, v22' % d); nop(2); e('v_cndmask_b32 v%d, 0, v21, vcc' % MK[d])
e('v_lshrrev_b32 v24, 3, v2'); e('v_lshl_add_u32 v24, v24, 2, v3'); e('v_mul_u32_u24 v24, 10, v24')
e('s_mul_i32 s8, s4, 80'); e('v_add_u32 v24, s8, v24')
if ARG('pf','1') == '1':
    e('s_getpc_b64 s[10:11]')
    e('L_PC:')
    e('s_lshr_b32 s5, s2, 3'); e('s_mul_i32 s6, s4, 8'); e('s_add_u32 s5, s5, s6'); e('s_and_b32 s5, s5, 31')
    e('s_min_u32 s5, s5, NSLICE'); e('s_lshl_b32 s5, s5, 10')
    e('v_lshlrev_b32 v20, 4, v1'); e('v_add_u32 v20, s5, v20')
    e('global_load_dwordx4 v[248:251], v20, s[10:11]')
e('s_waitcnt lgkmcnt(0)')
e('s_load_dword s42, s[40:41], 0')
srd(WS, 40, WS_SIZE)
e('s_cmp_lt_u32 s3, 128'); e('s_cbranch_scc1 L_S1')
e('s_cmp_lt_u32 s3, 192'); e('s_cbranch_scc1 L_S2ONLY')
e('s_cmp_ge_u32 s3, 232'); e('s_cbranch_scc1 L_NOS0')

UK = 72
def s2_issue():
    e('s_sub_u32 s8, s3, 128'); e('s_lshr_b32 s8, s8, 1'); e('s_and_b32 s9, s3, 1')
    srd(SB, 22, 512*8192)
    e('s_lshl_b32 s9, s9, 8'); e('s_lshl_b32 s10, s4, 6'); e('s_add_u32 s9, s9, s10')
    e('v_add_u32 v20, s9, v2'); e('v_lshlrev_b32 v20, 13, v20'); e('v_lshlrev_b32 v21, 4, v3')
    e('s_lshl_b32 s10, s8, 8'); e('v_add3_u32 v20, v20, v21, s10')
    for tt in range(4):
        e('s_mov_b32 s12, %d' % (tt*16*8192))
        for ks in range(4):
            r = UK + 16*tt + 4*ks
            e('buffer_load_dwordx4 v[%d:%d], v20, %s, s12 offen offset:%d nt' % (r, r+3, SB, ks*64))
def s0_issue():
    e('s_lshr_b32 s6, s5, 1'); e('s_and_b32 s7, s5, 1')
    srd(SA, 36, 640*7680); srd(SB, 34, 1280)
    e('s_mul_i32 s9, s7, 320'); e('v_add_u32 v20, s9, v24')
    e('s_movk_i32 s10, 7680'); e('v_mul_lo_u32 v20, v20, s10')
    e('v_and_b32 v21, 7, v2'); e('v_lshlrev_b32 v21, 4, v21')
    e('s_lshl_b32 s11, s6, 7'); e('v_add3_u32 v20, v20, v21, s11')
    e('v_lshlrev_b32 v21, 2, v0'); e('s_mul_i32 s12, s7, 640')
    e('buffer_load_dword v25, v21, %s, s12 offen' % SB)
    for i in range(10):
        e('s_mov_b32 s12, %d' % (i*7680)); e('buffer_load_dwordx4 v[%d:%d], v20, %s, s12 offen nt' % (WR+4*i, WR+4*i+3, SA))
def gemv_w8_tail(nx, vm=0, rowreg=24):
    e('v_lshlrev_b32 v21, 2, v%d' % rowreg); e('v_add_u32 v21, %d, v21' % XX)
    for i in range(0, nx, 2): e('ds_read_b64 v[%d:%d], v21 offset:%d' % (XR+i, XR+i+1, 4*i))
    e('v_lshrrev_b32 v20, 3, v2'); e('v_lshrrev_b32 v21, 1, v3'); e('v_cmp_eq_u32 s[12:13], v20, v21')
    e('s_lshl_b32 s8, s4, 1'); e('v_add_u32 v20, s8, v20'); e('v_lshlrev_b32 v20, 8, v20')
    e('v_and_b32 v21, 7, v2'); e('v_lshlrev_b32 v21, 5, v21'); e('v_and_b32 v22, 1, v3'); e('v_lshlrev_b32 v22, 4, v22')
    e('v_add3_u32 v20, v20, v21, v22'); e('v_add_u32 v20, %d, v20' % RED)
    e('s_waitcnt vmcnt(%d) lgkmcnt(0)' % vm)
    gemv(nx, WR, XR)
    e('s_mov_b64 s[14:15], exec'); e('s_mov_b64 exec, s[12:13]')
    e('ds_write_b128 v20, v[%d:%d]' % (ACC, ACC+3))
    e('s_mov_b64 exec, s[14:15]')
    barrier()
def s0_finish(vm):
    e('s_waitcnt vmcnt(%d)' % (10+vm))
    unpack(26, 27, 25)
    for r in (26, 27):
        e('v_mul_f32 v28, 0xbfb8aa3b, v%d' % r); e('v_exp_f32 v28, v28'); nop(1)
        e('v_add_f32 v28, 1.0, v28'); e('v_rcp_f32 v28, v28'); nop(1); e('v_mul_f32 v%d, v%d, v28' % (r, r))
    e('v_cvt_pk_bf16_f32 v26, v26, v27')
    e('v_perm_b32 v28, v26, v26, %s' % SEL_LO); e('v_perm_b32 v29, v26, v26, %s' % SEL_HI)
    e('v_lshlrev_b32 v21, 3, v0'); e('v_add_u32 v21, %d, v21' % XX)
    l = lab(); exec_lt(160, l); e('ds_write_b64 v21, v[28:29]'); exec_restore(l)
    barrier()
    gemv_w8_tail(10, vm)
    l = lab(); exec_lt(32, l)
    e('v_lshlrev_b32 v20, 3, v0'); e('v_add_u32 v21, %d, v20' % RED)
    for s_ in range(8): e('ds_read_b64 v[%d:%d], v21 offset:%d' % (XR+2*s_, XR+2*s_+1, 256*s_))
    e('s_lshl_b32 s8, s7, 14'); e('s_lshl_b32 s9, s6, 8'); e('s_add_u32 s8, s8, s9'); e('s_add_u32 s8, s8, %d' % WS_MOD)
    e('v_mov_b32 v23, %s' % sN)
    e('s_waitcnt lgkmcnt(0)')
    for s_ in (4, 2, 1):
        for k in range(s_): e('v_pk_add_f32 v[%d:%d], v[%d:%d], v[%d:%d]' % (XR+2*k, XR+2*k+1, XR+2*k, XR+2*k+1, XR+2*(k+s_), XR+2*(k+s_)+1))
    e('v_cvt_pk_bf16_f32 v22, v%d, v%d' % (XR, XR+1))
    e('buffer_store_dwordx2 v[22:23], v20, %s, s8 offen sc1' % WS)
    exec_restore(l)

e('s_sub_u32 s5, s3, 192')
s0_issue()
masks()
hash_nonce()
s0_finish(0)
stamp(1)
dma_setup(); dma_rows(0, 32)
e('s_branch L_DMA_D')

e('L_S1:')
e('s_lshr_b32 s5, s3, 2'); e('s_bfe_u32 s6, s3, 0x10001'); e('s_and_b32 s7, s3, 1')
srd(SA, 20, 640*8192); srd(SB, 16, 1280)
e('s_mul_i32 s9, s7, 320'); e('v_add_u32 v20, s9, v24'); e('v_lshlrev_b32 v20, 13, v20')
e('v_and_b32 v21, 7, v2'); e('v_lshlrev_b32 v21, 4, v21')
e('s_lshl_b32 s10, s5, 8'); e('s_lshl_b32 s11, s6, 7'); e('s_add_u32 s10, s10, s11'); e('v_add3_u32 v20, v20, v21, s10')
e('v_mul_u32_u24 v21, 20, v1')
e('buffer_load_dwordx4 v[104:107], v21, %s, 0 offen' % SB); e('buffer_load_dword v108, v21, %s, 0 offen offset:16' % SB)
e('v_lshlrev_b32 v21, 2, v0'); e('s_mul_i32 s12, s7, 640'); e('buffer_load_dword v109, v21, %s, s12 offen' % SB)
e('v_mov_b32 v23, v20')
masks()
e('s_waitcnt vmcnt(0)')
for k in range(5): unpack(110+2*k, 111+2*k, 104+k)
e('v_add_f32 v20, v110, v111')
for k in range(2, 10): e('v_add_f32 v20, v20, v%d' % (110+k))
wave_reduce(20); e('v_readlane_b32 s8, v20, 63'); nop(2)
e('v_mov_b32 v21, s8'); e('v_mul_f32 v21, %s, v21' % hex(f2u(1/640.)))
e('v_mov_b32 v20, 0')
for k in range(10):
    e('v_sub_f32 v22, v%d, v21' % (110+k)); e('v_fmac_f32 v20, v22, v22')
wave_reduce(20); e('v_readlane_b32 s8, v20, 63'); nop(2)
e('v_mov_b32 v22, s8'); e('v_mul_f32 v22, %s, v22' % hex(f2u(1/640.))); e('v_add_f32 v22, %s, v22' % hex(f2u(1e-5)))
e('v_rsq_f32 v22, v22'); nop(1)
for i in range(10):
    e('s_mov_b32 s12, %d' % (i*8192)); e('buffer_load_dwordx4 v[%d:%d], v23, %s, s12 offen nt' % (WR+4*i, WR+4*i+3, SA))
dma_setup(); dma_rows(0, S1_A)
unpack(110, 111, 109)
for r in (110, 111):
    e('v_sub_f32 v%d, v%d, v21' % (r, r)); e('v_mul_f32 v%d, v%d, v22' % (r, r))
hash_nonce()
estamp(5, S1_A)
l = lab(); exec_lt(160, l)
e('v_lshlrev_b32 v20, 3, v0'); e('s_mul_i32 s8, s7, 1280'); e('s_add_u32 s8, s8, %d' % WS_MOD)
e('s_add_u32 s9, s8, 2560'); e('s_add_u32 s10, s8, %d' % MOD_KH); e('s_add_u32 s11, s9, %d' % MOD_KH)
st = lambda k: 112 + 8*k
pollp(3, lambda k: ['buffer_load_dwordx2 v[%d:%d], v20, %s, %s offen sc1' % (st(k)+2*j, st(k)+2*j+1, WS, so) for j, so in enumerate(['s8', 's10', 's9', 's11'])],
      lambda k: [st(k)+1, st(k)+3, st(k)+5, st(k)+7], lambda k: [st(k), st(k)+2, st(k)+4, st(k)+6] if k < 3 else [136, 137, 138, 139])
unpack(140, 141, 136); unpack(142, 143, 137); unpack(144, 145, 138); unpack(146, 147, 139)
e('v_pk_add_f32 v[140:141], v[140:141], v[142:143]'); e('v_pk_add_f32 v[144:145], v[144:145], v[146:147]')
e('v_fma_f32 v140, v110, v144, v140'); e('v_fma_f32 v141, v111, v145, v141')
e('v_add_f32 v140, v140, v110'); e('v_add_f32 v141, v141, v111')
e('v_cvt_pk_bf16_f32 v26, v140, v141')
e('v_perm_b32 v28, v26, v26, %s' % SEL_LO); e('v_perm_b32 v29, v26, v26, %s' % SEL_HI)
e('v_add_u32 v21, %d, v20' % XX); e('ds_write_b64 v21, v[28:29]')
exec_restore(l)
stamp(1)
barrier()
gemv_w8_tail(10, S1_A)
l = lab(); exec_lt(64, l)
e('v_lshlrev_b32 v20, 2, v0'); e('v_add_u32 v20, %d, v20' % RED)
for s_ in range(8): e('ds_read_b32 v%d, v20 offset:%d' % (XR+s_, 256*s_))
e('s_lshl_b32 s8, s5, 11'); e('s_lshl_b32 s9, s7, 10'); e('s_add_u32 s8, s8, s9'); e('s_lshl_b32 s9, s6, 9'); e('s_add_u32 s8, s8, s9'); e('s_add_u32 s8, s8, %d' % WS_Q)
e('v_mov_b32 v23, %s' % sN); e('v_lshlrev_b32 v20, 3, v0')
e('s_waitcnt lgkmcnt(0)')
for s_ in (2, 1):
    for k in range(s_): e('v_pk_add_f32 v[%d:%d], v[%d:%d], v[%d:%d]' % (XR+2*k, XR+2*k+1, XR+2*k, XR+2*k+1, XR+2*(k+s_), XR+2*(k+s_)+1)) if s_ == 2 else None
e('v_pk_add_f32 v[%d:%d], v[%d:%d], v[%d:%d]' % (XR, XR+1, XR, XR+1, XR+2, XR+3)); e('v_add_f32 v22, v%d, v%d' % (XR, XR+1))
e('buffer_store_dwordx2 v[22:23], v20, %s, s8 offen sc1' % WS)
exec_restore(l)
stamp(2)
dma_rows(S1_A, 32)
e('s_branch L_DMA_D')

def s2_finish():
    e('s_sub_u32 s5, s3, 128'); e('s_lshr_b32 s5, s5, 1'); e('s_and_b32 s6, s3, 1')
    l = lab(); exec_lt(128, l)
    e('v_lshlrev_b32 v20, 3, v0'); e('s_lshl_b32 s8, s5, 11'); e('s_add_u32 s8, s8, %d' % WS_Q); e('s_add_u32 s9, s8, 1024')
    st = lambda k: 140 + 4*k
    pollp(3, lambda k: ['buffer_load_dwordx2 v[%d:%d], v20, %s, %s offen sc1' % (st(k)+2*j, st(k)+2*j+1, WS, so) for j, so in enumerate(['s8', 's9'])],
          lambda k: [st(k)+1, st(k)+3], lambda k: [st(k), st(k)+2] if k < 3 else [136, 137], sleep=1)
    e('v_add_f32 v136, v136, v137'); e('v_cvt_pk_bf16_f32 v136, v136, v136')
    e('v_lshlrev_b32 v21, 1, v0'); e('v_add_u32 v21, %d, v21' % XX); e('ds_write_b16 v21, v136')
    exec_restore(l)
    stamp(2)
    barrier()
    e('v_lshlrev_b32 v21, 4, v3'); e('v_add_u32 v21, %d, v21' % XX)
    for ks in range(4): e('ds_read_b128 v[%d:%d], v21 offset:%d' % (XR+4*ks, XR+4*ks+3, 64*ks))
    e('s_lshl_b32 s8, s6, 4'); e('s_lshl_b32 s9, s4, 2'); e('s_add_u32 s8, s8, s9'); e('s_lshl_b32 s8, s8, 10')
    e('s_lshl_b32 s9, s5, 4'); e('s_add_u32 s8, s8, s9'); e('s_add_u32 s8, s8, %d' % WS_QA)
    e('v_lshlrev_b32 v20, 10, v2'); e('v_lshrrev_b32 v21, 1, v3'); e('v_lshlrev_b32 v21, 9, v21'); e('v_and_b32 v24, 1, v3'); e('v_lshlrev_b32 v24, 3, v24')
    e('v_add3_u32 v20, v20, v21, v24')
    e('v_cmp_eq_u32 s[10:11], 1, v2'); e('v_cmp_eq_u32 s[12:13], 2, v2'); e('v_cmp_eq_u32 s[14:15], 3, v2')
    e('s_mov_b32 s9, %s' % hex(f2u(QSCALE)))
    e('s_waitcnt vmcnt(%d) lgkmcnt(0)' % S2_A)
    for ks in range(4):
        for tt in range(4):
            r = UK + 16*tt + 4*ks; a = 208 + 4*tt
            e('v_mfma_f32_16x16x32_bf16 v[%d:%d], v[%d:%d], v[%d:%d], %s' % (a, a+3, r, r+3, XR+4*ks, XR+4*ks+3, '0' if ks == 0 else 'v[%d:%d]' % (a, a+3)))
    nop(8)
    for tt, m in ((1, 's[10:11]'), (2, 's[12:13]'), (3, 's[14:15]')):
        for r in range(4): e('v_cndmask_b32 v%d, v%d, v%d, %s' % (208+r, 208+r, 208+4*tt+r, m))
    for r in range(4): e('v_mul_f32 v%d, s9, v%d' % (208+r, 208+r))
    e('v_cvt_pk_bf16_f32 v22, v208, v209'); e('v_cvt_pk_bf16_f32 v23, v210, v211')
    e('v_cmp_gt_u32 vcc, 4, v2'); e('s_and_saveexec_b64 s[14:15], vcc')
    e('buffer_store_dwordx2 v[22:23], v20, %s, s8 offen sc1' % WS)
    e('s_mov_b64 exec, s[14:15]')
    estamp(6)
    e('s_waitcnt vmcnt(0)'); e('s_barrier')
    l = lab(); exec_lt(8, l)
    e('v_lshlrev_b32 v20, 10, v0'); e('s_sub_u32 s8, s3, 128'); e('s_lshl_b32 s8, s8, 4'); e('s_add_u32 s8, s8, %d' % WS_QAF); e('v_mov_b32 v22, %s' % sN)
    e('buffer_store_dword v22, v20, %s, s8 offen sc1' % WS)
    exec_restore(l)
    stamp(3)
e('L_S2ONLY:')
masks(); hash_nonce()
s2_issue(); dma_setup(); dma_rows(0, S2_A)
s2_finish()
dma_rows(S2_A, 32)
e('s_branch L_DMA_D')

e('L_NOS0:')
masks()
hash_nonce()
dma_setup(); dma_rows(0, 32)
e('L_DMA_D:')
e('v_lshlrev_b32 v21, 4, v1')
stamp(4)
QA_ADDR=224; S_ACC=208; QB=232
e('v_and_b32 v20, 31, v1'); e('v_lshrrev_b32 v22, 5, v1')
e('v_and_b32 v23, 3, v20'); e('v_lshlrev_b32 v23, 2, v23'); e('v_bfe_u32 v24, v20, 2, 2'); e('v_or_b32 v23, v23, v24')
e('v_xor_b32 v23, v23, v22'); e('v_lshlrev_b32 v23, 4, v23')
e('s_lshl_b32 s8, s4, 15'); e('v_lshlrev_b32 v24, 10, v20'); e('v_add3_u32 v23, v23, v24, s8')
for jj in range(8): e('v_xor_b32 v%d, %d, v23' % (QA_ADDR+jj, jj << 5))
e('v_lshlrev_b32 v%d, 4, v1' % QB); e('v_add_u32 v%d, %d, v%d' % (QB, SCR, QB))
e('s_waitcnt vmcnt(0)')
for j in range(32):
    e('ds_read_b128 a[%d:%d], v%d offset:%d' % (4*j, 4*j+3, QA_ADDR+(j & 7), (j >> 3)*256))
    if j >= 12: e('s_waitcnt lgkmcnt(12)')
e('s_cmp_lg_u32 s4, 0'); e('s_cbranch_scc1 L_E3D')
e('s_and_b32 s8, s3, 7'); e('s_lshl_b32 s8, s8, 10'); e('s_add_u32 s8, s8, %d' % WS_QAF)
pollp(2, lambda k: ['buffer_load_dword v%d, v21, %s, s8 offen sc1' % (26+k, WS)], lambda k: [26+k], lambda k: [], sleep=1)
e('L_E3D:')
e('s_barrier')
stamp(5)
e('s_mov_b32 s9, %d' % WS_QA)
e('buffer_load_dwordx4 a[224:227], v21, %s, s9 offen sc1' % WS)
e('s_lshl_b32 s8, s4, 13'); e('s_add_u32 s8, s8, %d' % WS_QA)
for i in range(8):
    if i == 4: e('s_add_u32 s8, s8, 4096')
    e('buffer_load_dwordx4 a[%d:%d], v21, %s, s8 offen offset:%d sc1' % (192+4*i, 195+4*i, WS, (i & 3)*1024))
e('s_cmp_lt_u32 s3, 128'); e('s_cbranch_scc1 L_NOUV')
srd(SA, 24, 512*8192)
e('s_and_b32 s8, s3, 3'); e('s_lshl_b32 s8, s8, 7'); e('s_lshl_b32 s9, s4, 5'); e('s_add_u32 s8, s8, s9')
e('v_lshrrev_b32 v20, 1, v3'); e('v_lshlrev_b32 v20, 4, v20'); e('v_and_b32 v22, 1, v3'); e('v_lshlrev_b32 v22, 2, v22'); e('v_add3_u32 v20, v20, v22, s8')
e('v_lshlrev_b32 v20, 13, v20'); e('v_lshlrev_b32 v22, 4, v2')
e('s_sub_u32 s9, s3, 128'); e('s_lshr_b32 s9, s9, 2'); e('s_lshl_b32 s9, s9, 8'); e('v_add3_u32 v20, v20, v22, s9')
for i in range(8):
    e('s_mov_b32 s12, %d' % ((8*(i >> 2) + (i & 3))*8192)); e('buffer_load_dwordx4 v[%d:%d], v20, %s, s12 offen nt' % (WR+4*i, WR+4*i+3, SA))
e('s_waitcnt vmcnt(8)'); e('s_branch L_UVD')
e('L_NOUV:'); e('s_waitcnt vmcnt(0)')
e('L_UVD:')
e('s_lshl_b32 s8, s4, 13'); e('v_add_u32 v20, s8, v%d' % QB)
for i in range(8): e('ds_write_b128 v20, a[%d:%d] offset:%d' % (192+4*i, 195+4*i, i*1024))
barrier()
stamp(6)
if ARG('exit','')=='qk': e('s_branch L_FIN')
D = 6; R = 8
def qk_read(j):
    e('ds_read_b128 a[%d:%d], v%d offset:%d' % (160+4*(j % R), 163+4*(j % R), QB, j*1024))
for j in range(1, D): qk_read(j)
for j in range(32):
    if j+D < 32: qk_read(j+D)
    if j > 0: e('s_waitcnt lgkmcnt(%d)' % min(D, 31-j))
    b = 'a[224:227]' if j == 0 else 'a[%d:%d]' % (160+4*(j % R), 163+4*(j % R))
    e('v_mfma_f32_32x32x16_bf16 v[%d:%d], a[%d:%d], %s, %s' % (S_ACC, S_ACC+15, 4*j, 4*j+3, b, '0' if j == 0 else 'v[%d:%d]' % (S_ACC, S_ACC+15)))
D = 4
astamp(1)
PV1=224; PV2=228
e('v_bfe_u32 v20, v1, 2, 2')
e('v_lshrrev_b32 v22, 5, v1')
e('v_bfe_u32 v23, v1, 4, 1')
e('v_bfe_u32 v24, v1, 1, 1')
e('v_lshl_or_b32 v23, v23, 1, v24')
e('v_xor_b32 v23, v23, v22')
e('v_lshl_or_b32 v23, v20, 2, v23')
e('v_lshlrev_b32 v23, 4, v23')
e('v_and_b32 v24, 1, v1'); e('v_lshlrev_b32 v24, 3, v24')
e('v_lshlrev_b32 v25, 2, v22'); e('v_add_u32 v25, v25, v20'); e('v_lshlrev_b32 v25, 10, v25')
e('s_lshl_b32 s8, s4, 8'); e('v_add3_u32 v23, v23, v24, v25'); e('v_add_u32 v23, s8, v23')
for t in range(4):
    e('v_xor_b32 v%d, %d, v23' % (PV1+t, t << 6))
    e('v_xor_b32 v%d, %d, v23' % (PV2+t, (t << 6) ^ (2 << 4))); e('v_add_u32 v%d, 8192, v%d' % (PV2+t, PV2+t))
s0 = S_ACC
e('v_max3_f32 v26, v%d, v%d, v%d' % (s0, s0+1, s0+2))
for k in range(3, 15, 2): e('v_max3_f32 v26, v26, v%d, v%d' % (s0+k, s0+k+1))
e('v_max_f32 v26, v26, v%d' % (s0+15))
e('v_mov_b32 v27, v26'); nop(2); e('v_permlane32_swap_b32 v26, v27'); nop(1); e('v_max_f32 v26, v26, v27')
astamp(2)
MX = SCR
e('v_and_b32 v20, 31, v1'); e('v_lshlrev_b32 v20, 2, v20'); e('v_add_u32 v20, %d, v20' % MX)
e('s_lshl_b32 s8, s4, 7'); e('v_add_u32 v22, s8, v20')
e('ds_write_b32 v22, v26')
barrier()
for w in range(4): e('ds_read_b32 v%d, v20 offset:%d' % (28+w, 128*w))
e('s_lshl_b32 s8, s4, 11'); e('s_add_u32 s8, s8, 8192'); e('v_add_u32 v23, s8, v%d' % QB)
e('s_waitcnt lgkmcnt(0)')
e('v_max3_f32 v26, v28, v29, v30'); e('v_max_f32 v26, v26, v31')
astamp(3)
e('v_mov_b32 v27, v26'); nop(1)
for k in range(0, 16, 2): e('v_pk_add_f32 v[%d:%d], v[%d:%d], v[26:27] neg_lo:[0,1] neg_hi:[0,1]' % (s0+k, s0+k+1, s0+k, s0+k+1))
for k in range(16): e('v_exp_f32 v%d, v%d' % (s0+k, s0+k))
e('v_pk_add_f32 v[28:29], v[%d:%d], v[%d:%d]' % (s0, s0+1, s0+2, s0+3)); e('v_pk_add_f32 v[30:31], v[%d:%d], v[%d:%d]' % (s0+4, s0+5, s0+6, s0+7))
for k in (8, 12): e('v_pk_add_f32 v[28:29], v[28:29], v[%d:%d]' % (s0+k, s0+k+1)); e('v_pk_add_f32 v[30:31], v[30:31], v[%d:%d]' % (s0+k+2, s0+k+3))
for k in range(8): e('v_cvt_pk_bf16_f32 v%d, v%d, v%d' % (s0+k, s0+2*k, s0+2*k+1))
e('v_pk_add_f32 v[28:29], v[28:29], v[30:31]')
e('ds_write_b128 v23, v[%d:%d]' % (s0, s0+3)); e('ds_write_b128 v23, v[%d:%d] offset:1024' % (s0+4, s0+7))
e('v_add_f32 v27, v28, v29')
e('v_mov_b32 v28, v27'); nop(2); e('v_permlane32_swap_b32 v27, v28'); nop(1); e('v_add_f32 v27, v27, v28')
e('ds_write_b32 v22, v27 offset:512')
barrier()
stamp(7)
for ks in range(8): e('ds_read_b128 a[%d:%d], v%d offset:%d' % (96+4*ks, 99+4*ks, QB, 8192+ks*1024))
for w in range(4): e('ds_read_b32 v%d, v20 offset:%d' % (28+w, 512+128*w))
e('s_waitcnt lgkmcnt(0)')
e('s_barrier')
e('v_add_f32 v27, v28, v29'); e('v_add_f32 v27, v27, v30'); e('v_add_f32 v27, v27, v31')
steps = [(ks, t) for ks in range(8) for t in range(4)]
def pv_read(q):
    ks, t = steps[q]
    if ks == 4 and t == 0:
        for k in range(8): e('v_add_u32 v%d, 0x10000, v%d' % (PV1+k, PV1+k))
    o = (ks & 3)*16384; r = 128 + 4*(q % R)
    e('ds_read_b64_tr_b16 a[%d:%d], v%d offset:%d' % (r, r+1, PV1+t, o))
    e('ds_read_b64_tr_b16 a[%d:%d], v%d offset:%d' % (r+2, r+3, PV2+t, o))
astamp(4)
for q in range(D): pv_read(q)
for q in range(32):
    if q+D < 32: pv_read(q+D)
    out = min(D, 31-q)
    e('s_waitcnt lgkmcnt(%d)' % (2*out))
    ks, t = steps[q]; r = 128 + 4*(q % R)
    e('v_mfma_f32_32x32x16_bf16 v[%d:%d], a[%d:%d], a[%d:%d], %s' % (128+16*t, 128+16*t+15, r, r+3, 96+4*ks, 99+4*ks, '0' if ks == 0 else 'v[%d:%d]' % (128+16*t, 128+16*t+15)))
astamp(5)
e('v_and_b32 v20, 31, v1'); e('v_lshrrev_b32 v22, 5, v1'); e('v_and_b32 v23, 15, v20'); e('v_xor_b32 v23, v23, v22'); e('v_lshlrev_b32 v23, 4, v23')
e('v_lshlrev_b32 v24, 8, v20'); e('s_lshl_b32 s8, s4, 13'); e('s_add_u32 s8, s8, %d' % SCR); e('v_add3_u32 v23, v23, v24, s8')
nop(4)
for s_ in range(8):
    b = 128 + 8*s_
    for k in range(4): e('v_cvt_pk_bf16_f32 v%d, v%d, v%d' % (208+4*(s_ & 1)+k, b+2*k, b+2*k+1))
    e('v_xor_b32 v24, %d, v23' % (s_ << 5))
    e('ds_write_b128 v24, v[%d:%d]' % (208+4*(s_ & 1), 211+4*(s_ & 1)))
stamp(8)
e('v_lshlrev_b32 v21, 4, v1'); e('v_add_u32 v20, s8, v21')
e('s_waitcnt lgkmcnt(0)')
for i in range(8): e('ds_read_b128 v[%d:%d], v20 offset:%d' % (208+4*i, 211+4*i, i*1024))
e('v_lshlrev_b32 v22, 18, v3'); e('v_xor_b32 v23, v2, v3'); e('v_lshlrev_b32 v23, 4, v23')
e('s_lshl_b32 s9, s3, 8'); e('s_add_u32 s9, s9, %d' % WS_PART); e('s_lshl_b32 s10, s4, 16'); e('s_add_u32 s9, s9, s10')
for i in range(8):
    e('v_xor_b32 v24, %d, v23' % ((4*(i & 3)) << 4)); e('v_add_u32 v24, v24, v22')
    e('s_waitcnt lgkmcnt(%d)' % (7-i))
    e('buffer_store_dwordx4 v[%d:%d], v24, %s, s9 offen sc1' % (208+4*i, 211+4*i, WS))
    e('s_add_u32 s9, s9, 0x100000')
astamp(6)
e('v_mov_b32 v128, v26'); e('v_mov_b32 v129, %s' % sN); e('v_mov_b32 v130, v27'); e('v_mov_b32 v131, %s' % sN)
e('v_lshlrev_b32 v20, 14, v1'); e('s_lshl_b32 s8, s3, 4'); e('s_lshl_b32 s9, s4, 12'); e('s_add_u32 s8, s8, s9'); e('s_add_u32 s8, s8, %d' % WS_STATS)
e('v_cmp_gt_u32 vcc, 32, v1')
e('s_waitcnt vmcnt(0)')
astamp(7)
e('s_and_saveexec_b64 s[14:15], vcc')
e('buffer_store_dwordx4 v[128:131], v20, %s, s8 offen sc1' % WS)
e('s_mov_b64 exec, s[14:15]')
e('s_barrier')
stamp(9)
if ARG('exit','')=='stats': e('s_branch L_FIN')
e('s_cmp_lt_u32 s3, 128'); e('s_cbranch_scc1 L_LATE_E')

e('s_sub_u32 s5, s3, 128'); e('s_lshr_b32 s5, s5, 2')
e('s_and_b32 s6, s3, 3')
e('v_lshlrev_b32 v21, 4, v1')
e('s_lshl_b32 s8, s5, 2'); e('s_add_u32 s8, s8, s6'); e('s_lshl_b32 s7, s8, 12'); e('s_add_u32 s7, s7, %d' % WS_STATS)
e('s_lshl_b32 s8, s8, 16'); e('s_add_u32 s8, s8, %d' % WS_PART); e('s_lshl_b32 s9, s4, 14'); e('s_add_u32 s8, s8, s9')
e('v_lshlrev_b32 v20, 12, v3'); e('v_lshl_add_u32 v20, v2, 4, v20')
e('s_lshl_b32 s9, s4, 10'); e('s_add_u32 s9, s9, s7')
pollp(3, lambda k: ['buffer_load_dwordx4 v[%d:%d], v21, %s, s9 offen sc1' % (224+4*k, 227+4*k, WS)], lambda k: [225+4*k, 227+4*k], lambda k: [])
st4 = ['buffer_load_dwordx4 v[%d:%d], v21, %s, s7 offen offset:%d sc1' % (208+4*k, 211+4*k, WS, 1024*k) for k in range(4)]
for x_ in st4: e(x_)
for i in range(16):
    e('buffer_load_dwordx4 v[%d:%d], v20, %s, s8 offen offset:%d sc1' % (64+4*i, 67+4*i, WS, 256*i))
e('s_waitcnt vmcnt(16)')
tagchk([209+2*k for k in range(8)])
e('s_cbranch_vccz L_S4P2')
poll(st4, [209+2*k for k in range(8)], sleep=0)
e('L_S4P2:')
stamp(10)
lstamp(1)
e('v_max3_f32 v22, v208, v212, v216'); e('v_max_f32 v22, v22, v220')
wave_reduce(22, 'max'); e('v_readlane_b32 s9, v22, 63'); nop(2)
for k in range(4):
    e('v_subrev_f32 v%d, s9, v%d' % (208+4*k, 208+4*k)); e('v_exp_f32 v%d, v%d' % (208+4*k, 208+4*k))
nop(1)
e('v_mul_f32 v22, v208, v210')
for k in range(1, 4): e('v_fmac_f32 v22, v%d, v%d' % (208+4*k, 210+4*k))
wave_reduce(22); e('v_readlane_b32 s10, v22, 63')
e('v_mov_b32 v23, v208')
for k in range(1, 4):
    e('s_cmp_eq_u32 s4, %d' % k); e('s_cselect_b64 vcc, -1, 0'); e('v_cndmask_b32 v23, v23, v%d, vcc' % (208+4*k))
e('v_cvt_pk_bf16_f32 v24, v23, v23')
e('v_and_b32 v25, 0xffff0000, v24'); e('v_sub_f32 v25, v23, v25'); e('v_cvt_pk_bf16_f32 v25, v25, v25')
e('v_lshlrev_b32 v26, 2, v0'); e('v_add_u32 v26, %d, v26' % XX)
e('ds_write_b32 v26, v24'); e('ds_write_b32 v26, v25 offset:1024')
e('v_lshrrev_b32 v26, 3, v2'); e('v_lshlrev_b32 v26, 10, v26'); e('v_lshl_add_u32 v26, v3, 6, v26'); e('s_lshl_b32 s9, s4, 8'); e('s_add_u32 s9, s9, %d' % XX); e('v_add_u32 v26, s9, v26')
e('s_waitcnt lgkmcnt(0)')
for k in range(4): e('ds_read_b128 v[%d:%d], v26 offset:%d' % (XR+4*k, XR+4*k+3, 16*k))
e('s_waitcnt lgkmcnt(0)')
lstamp(2)
e('s_waitcnt vmcnt(0)')
gemv(16, 64, XR)
stamp(11)
e('v_lshrrev_b32 v20, 1, v3'); e('s_lshl_b32 s8, s4, 1'); e('v_add_u32 v20, s8, v20'); e('v_lshlrev_b32 v20, 9, v20')
e('v_and_b32 v22, 1, v3'); e('v_lshlrev_b32 v22, 4, v22'); e('v_lshl_add_u32 v22, v2, 5, v22'); e('v_add3_u32 v20, v20, v22, %s' % 's58')
L.insert(len(L)-1, '    s_mov_b32 s58, %d' % RED)
e('ds_write_b128 v20, v[%d:%d]' % (ACC, ACC+3))
barrier()
lstamp(3)
l = lab(); exec_lt(128, l)
e('v_lshlrev_b32 v20, 2, v0'); e('v_add_u32 v22, %d, v20' % RED)
for s in range(8): e('ds_read_b32 v%d, v22 offset:%d' % (XR+s, 512*s))
e('v_mov_b32 v23, s10'); e('v_rcp_f32 v23, v23')
e('s_waitcnt lgkmcnt(0)')
for s in range(1, 8): e('v_add_f32 v%d, v%d, v%d' % (XR, XR, XR+s))
e('v_mul_f32 v23, v23, v%d' % XR); e('v_cvt_pk_bf16_f32 v23, v23, v23')
e('v_add_u32 v20, %d, v20' % XX); e('ds_write_b32 v20, v23')
exec_restore(l)
barrier()
lstamp(4)
e('v_lshlrev_b32 v26, 5, v3'); e('s_lshl_b32 s9, s4, 7'); e('s_add_u32 s9, s9, %d' % XX); e('v_add_u32 v26, s9, v26')
for k in range(2): e('ds_read_b128 v[%d:%d], v26 offset:%d' % (XR+4*k, XR+4*k+3, 16*k))
e('s_waitcnt lgkmcnt(0)')
lstamp(5)
gemv(8, WR, XR)
lstamp(6)

def red_w16(nslot_bytes):
    e('v_and_b32 v22, 1, v3'); e('v_lshlrev_b32 v22, 4, v22'); e('v_lshl_add_u32 v22, v2, 5, v22')
    e('s_mul_i32 s8, s4, %d' % nslot_bytes); e('s_add_u32 s8, s8, %d' % RED); e('v_add_u32 v20, s8, v22')
    e('v_cmp_gt_u32 vcc, 2, v3'); e('s_and_saveexec_b64 s[14:15], vcc')
    e('ds_write_b128 v20, v[%d:%d]' % (ACC, ACC+3))
    e('s_mov_b64 exec, s[14:15]')
    barrier()
def pair_sum_publish(sbase):
    l = lab(); exec_lt(64, l)
    e('v_lshlrev_b32 v20, 3, v0'); e('v_add_u32 v22, %d, v20' % RED)
    for s in range(4): e('ds_read_b64 v[%d:%d], v22 offset:%d' % (XR+2*s, XR+2*s+1, 512*s))
    e('s_waitcnt lgkmcnt(0)')
    for s in range(1, 4):
        e('v_add_f32 v%d, v%d, v%d' % (XR, XR, XR+2*s)); e('v_add_f32 v%d, v%d, v%d' % (XR+1, XR+1, XR+2*s+1))
    e('v_cvt_pk_bf16_f32 v22, v%d, v%d' % (XR, XR+1)); e('v_mov_b32 v23, %s' % sN)
    e('buffer_store_dwordx2 v[22:23], v20, %s, %s offen sc1' % (WS, sbase))
    exec_restore(l)
red_w16(512)
lstamp(7)
e('s_lshl_b32 s9, s5, 2'); e('s_add_u32 s9, s9, s6'); e('s_lshl_b32 s9, s9, 9'); e('s_add_u32 s9, s9, %d' % WS_CTX)
pair_sum_publish('s9')
stamp(12)
e('s_branch L_FIN')

e('L_LATE_E:')
e('s_cmp_ge_u32 s3, 107'); e('s_cbranch_scc1 L_FIN')
e('s_cmp_lt_u32 s3, 67'); e('s_cbranch_scc1 L_LATE_E2')
e('s_sub_u32 s6, s3, 47')
srd(SA, 36, 640*7680); srd(SB, 34, 1280)
e('v_lshrrev_b32 v24, 3, v2'); e('v_lshl_add_u32 v24, v24, 2, v3'); e('v_mul_u32_u24 v24, 20, v24')
e('s_mul_i32 s8, s4, 160'); e('v_add_u32 v24, s8, v24')
e('s_movk_i32 s10, 7680'); e('v_mul_lo_u32 v20, v24, s10'); e('v_and_b32 v21, 7, v2'); e('v_lshlrev_b32 v21, 4, v21')
e('s_lshl_b32 s11, s6, 7'); e('v_add3_u32 v20, v20, v21, s11')
e('v_lshlrev_b32 v21, 3, v0'); e('buffer_load_dwordx2 v[112:113], v21, %s, 0 offen' % SB)
for i in range(20):
    e('s_mov_b32 s12, %d' % (i*7680)); e('buffer_load_dwordx4 v[%d:%d], v20, %s, s12 offen nt' % (WR+4*i, WR+4*i+3, SA))
e('s_waitcnt vmcnt(20)')
unpack(114, 115, 112); unpack(116, 117, 113)
for r in range(114, 118):
    e('v_mul_f32 v28, 0xbfb8aa3b, v%d' % r); e('v_exp_f32 v28, v28'); nop(1)
    e('v_add_f32 v28, 1.0, v28'); e('v_rcp_f32 v28, v28'); nop(1); e('v_mul_f32 v%d, v%d, v28' % (r, r))
e('v_cvt_pk_bf16_f32 v26, v114, v115'); e('v_cvt_pk_bf16_f32 v27, v116, v117')
e('v_perm_b32 v28, v26, v26, %s' % SEL_LO); e('v_perm_b32 v29, v26, v26, %s' % SEL_HI)
e('v_perm_b32 v30, v27, v27, %s' % SEL_LO); e('v_perm_b32 v31, v27, v27, %s' % SEL_HI)
e('v_lshlrev_b32 v21, 4, v0'); e('v_add_u32 v21, %d, v21' % XX)
l = lab(); exec_lt(160, l); e('ds_write_b128 v21, v[28:31]'); exec_restore(l)
barrier()
gemv_w8_tail(20, 0)
l = lab(); exec_lt(32, l)
e('v_lshlrev_b32 v20, 3, v0'); e('v_add_u32 v21, %d, v20' % RED)
for s_ in range(8): e('ds_read_b64 v[%d:%d], v21 offset:%d' % (XR+2*s_, XR+2*s_+1, 256*s_))
e('s_lshl_b32 s8, s6, 8'); e('s_add_u32 s8, s8, %d' % WS_MOD); e('v_mov_b32 v23, %s' % sN)
e('s_waitcnt lgkmcnt(0)')
for s_ in (4, 2, 1):
    for k in range(s_): e('v_pk_add_f32 v[%d:%d], v[%d:%d], v[%d:%d]' % (XR+2*k, XR+2*k+1, XR+2*k, XR+2*k+1, XR+2*(k+s_), XR+2*(k+s_)+1))
e('v_cvt_pk_bf16_f32 v22, v%d, v%d' % (XR, XR+1))
e('buffer_store_dwordx2 v[22:23], v20, %s, s8 offen sc1' % WS)
exec_restore(l)
e('s_branch L_FIN')
e('L_LATE_E2:')
e('s_cmp_ge_u32 s3, 40'); e('s_cbranch_scc1 L_MLP')
e('s_mul_i32 s5, s3, 52'); e('s_lshr_b32 s5, s5, 8')
e('s_mul_i32 s6, s5, 5'); e('s_sub_u32 s6, s3, s6')
srd(SA, 26, 4096*1280)
e('s_lshl_b32 s8, s5, 9'); e('s_lshl_b32 s9, s4, 7'); e('s_add_u32 s8, s8, s9'); e('v_lshl_add_u32 v20, v3, 5, s8')
e('s_movk_i32 s10, 1280'); e('v_mul_lo_u32 v20, v20, s10'); e('s_lshl_b32 s9, s6, 8'); e('v_lshlrev_b32 v22, 4, v2'); e('v_add3_u32 v20, v20, v22, s9')
for i in range(32):
    e('s_mov_b32 s12, %d' % ((i // 3)*3*1280)); e('buffer_load_dwordx4 v[%d:%d], v20, %s, s12 offen offset:%d nt' % (WR+4*i, WR+4*i+3, SA, (i % 3)*1280))
e('s_lshl_b32 s8, s5, 2'); e('s_add_u32 s8, s8, s4'); e('s_lshl_b32 s8, s8, 11'); e('s_add_u32 s8, s8, %d' % WS_CTX)
e('v_lshlrev_b32 v21, 3, v1')
e('s_lshl_b32 s9, s4, 9'); e('s_add_u32 s9, s9, %d' % XX); e('v_add_u32 v25, s9, v21')
e('v_lshlrev_b32 v26, 7, v3'); e('v_add_u32 v26, s9, v26')
e('v_and_b32 v22, 1, v3'); e('v_lshlrev_b32 v22, 4, v22'); e('v_lshl_add_u32 v22, v2, 5, v22')
e('s_lshl_b32 s9, s4, 9'); e('s_add_u32 s9, s9, %d' % RED); e('v_add_u32 v24, s9, v22')
e('v_cmp_gt_u32 s[12:13], 2, v3')
e('s_lshl_b32 s10, s5, 12'); e('s_lshl_b32 s11, s6, 9'); e('s_add_u32 s10, s10, s11'); e('s_add_u32 s10, s10, %d' % WS_X1P)
e('v_lshlrev_b32 v27, 3, v0'); e('v_add_u32 v23, %d, v27' % RED)
st = lambda k: 224 + 8*k
pollp(3, lambda k: ['buffer_load_dwordx2 v[%d:%d], v21, %s, s8 offen offset:%d sc1' % (st(k)+2*j, st(k)+2*j+1, WS, 512*j) for j in range(4)],
      lambda k: [st(k)+1+2*j for j in range(4)], lambda k: [st(k)+2*j for j in range(4)] if k < 3 else [248, 249, 250, 251])
stamp(10)
for k in range(4): unpack(8+2*k, 9+2*k, 248+k)
e('v_pk_add_f32 v[8:9], v[8:9], v[10:11]'); e('v_pk_add_f32 v[12:13], v[12:13], v[14:15]'); e('v_pk_add_f32 v[8:9], v[8:9], v[12:13]')
e('v_cvt_pk_bf16_f32 v28, v8, v9')
e('v_perm_b32 v30, v28, v28, %s' % SEL_LO); e('v_perm_b32 v31, v28, v28, %s' % SEL_HI)
e('ds_write_b64 v25, v[30:31]')
e('s_waitcnt lgkmcnt(0)')
for k in range(8): e('ds_read_b128 v[%d:%d], v26 offset:%d' % (XR+4*k, XR+4*k+3, 16*k))
e('s_waitcnt lgkmcnt(6)')
gemv(32, WR, XR, wait=lambda i: e('s_waitcnt lgkmcnt(%d)' % max(0, 6-(i+2)//4)) if (i % 4 == 2 and i < 28) else None)
e('s_mov_b64 s[14:15], exec'); e('s_mov_b64 exec, s[12:13]')
e('ds_write_b128 v24, v[%d:%d]' % (ACC, ACC+3))
e('s_mov_b64 exec, s[14:15]')
barrier()
l = lab(); exec_lt(64, l)
for s_ in range(4): e('ds_read_b64 v[%d:%d], v23 offset:%d' % (XR+2*s_, XR+2*s_+1, 512*s_))
e('v_mov_b32 v29, %s' % sN)
e('s_waitcnt lgkmcnt(0)')
e('v_pk_add_f32 v[%d:%d], v[%d:%d], v[%d:%d]' % (XR, XR+1, XR, XR+1, XR+2, XR+3)); e('v_pk_add_f32 v[%d:%d], v[%d:%d], v[%d:%d]' % (XR+4, XR+5, XR+4, XR+5, XR+6, XR+7))
e('v_pk_add_f32 v[%d:%d], v[%d:%d], v[%d:%d]' % (XR, XR+1, XR, XR+1, XR+4, XR+5))
e('v_cvt_pk_bf16_f32 v28, v%d, v%d' % (XR, XR+1))
e('buffer_store_dwordx2 v[28:29], v27, %s, s10 offen sc1' % WS)
exec_restore(l)
stamp(12)
e('s_branch L_FIN')

e('L_MLP:')
e('s_sub_u32 s5, s3, 40')
srd(SA, 30, 640*3456)
e('v_lshrrev_b32 v20, 3, v2'); e('v_lshl_add_u32 v20, v20, 2, v3'); e('v_mul_u32_u24 v20, 20, v20')
e('s_mul_i32 s8, s4, 160'); e('v_add_u32 v24, s8, v20')
e('s_movk_i32 s10, 3456'); e('v_mul_lo_u32 v20, v24, s10'); e('v_and_b32 v21, 7, v2'); e('v_lshlrev_b32 v21, 4, v21')
e('s_lshl_b32 s9, s5, 7'); e('v_add3_u32 v20, v20, v21, s9')
for i in range(20):
    e('s_mov_b32 s12, %d' % (i*3456)); e('buffer_load_dwordx4 v[%d:%d], v20, %s, s12 offen nt' % (WR+4*i, WR+4*i+3, SA))
srd(SA, 32, 1728*1280)
e('s_lshl_b32 s8, s5, 6'); e('s_lshl_b32 s9, s4, 4'); e('s_add_u32 s8, s8, s9'); e('v_lshl_add_u32 v20, v3, 2, s8')
e('s_movk_i32 s10, 1280'); e('v_mul_lo_u32 v20, v20, s10'); e('v_lshl_add_u32 v20, v2, 4, v20')
for i in range(4):
    e('s_mov_b32 s12, %d' % (i*1280))
    for cg in range(5):
        r = 112 + 4*(5*i + cg)
        e('buffer_load_dwordx4 v[%d:%d], v20, %s, s12 offen offset:%d nt' % (r, r+3, SA, cg*256))
srd(SB, 16, 1280)
lm = lab(); exec_lt(160, lm)
e('v_lshlrev_b32 v21, 3, v0'); e('buffer_load_dwordx2 v[224:225], v21, %s, 0 offen' % SB)
e('v_lshlrev_b32 v21, 4, v0')
lds_ = []
for q in range(4):
    lds_.append('s_mov_b32 s12, %d' % (WS_MOD + (2+q)*2560))
    lds_.append('buffer_load_dwordx4 v[%d:%d], v21, %s, s12 offen sc1' % (192+4*q, 195+4*q, WS))
poll(lds_, [193+2*k for k in range(8)], sleep=4)
for q in range(4):
    b = 192+4*q; d = 240+4*q
    unpack(d, d+1, b); unpack(d+2, d+3, b+2)
unpack(236, 237, 224); unpack(238, 239, 225)
for k in range(4): e('v_add_f32 v%d, 1.0, v%d' % (248+k, 248+k))
lds_ = []
for kg in range(8):
    lds_.append('s_mov_b32 s12, %d' % (WS_X1P + kg*4096))
    lds_.append('buffer_load_dwordx4 v[%d:%d], v21, %s, s12 offen sc1' % (192+4*kg, 195+4*kg, WS))
X1L = SCR + 16384; GBL = X1L + 4096
e('v_add_u32 v25, %d, v21' % X1L); e('ds_write_b128 v25, v[252:255] offset:4096')
poll(lds_, [193+2*k for k in range(16)], sleep=0)
stamp(10)
unpack(232, 233, 192); unpack(234, 235, 194)
for kg in range(1, 8):
    b = 192+4*kg
    unpack(224, 225, b); unpack(226, 227, b+2)
    e('v_pk_add_f32 v[232:233], v[232:233], v[224:225]'); e('v_pk_add_f32 v[234:235], v[234:235], v[226:227]')
e('v_pk_fma_f32 v[232:233], v[240:241], v[232:233], v[236:237]'); e('v_pk_fma_f32 v[234:235], v[242:243], v[234:235], v[238:239]')
e('v_pk_add_f32 v[22:23], v[232:233], v[234:235]'); e('v_pk_mul_f32 v[28:29], v[232:233], v[232:233]'); e('v_pk_fma_f32 v[28:29], v[234:235], v[234:235], v[28:29]')
e('ds_write_b128 v25, v[232:235]')
e('v_add_f32 v22, v22, v23'); e('v_add_f32 v23, v28, v29')
e('s_branch L_MS1')
e(lm + ':')
e('v_mov_b32 v22, 0'); e('v_mov_b32 v23, 0')
e('L_MS1:')
e('s_mov_b64 exec, s[14:15]')
e('v_cmp_gt_u32 vcc, 160, v0'); nop(2); e('v_cndmask_b32 v22, 0, v22, vcc'); e('v_cndmask_b32 v23, 0, v23, vcc')
for sh in (1, 2, 4, 8):
    nop(1)
    e('v_add_f32_dpp v22, v22, v22 row_shr:%d row_mask:0xf bank_mask:0xf bound_ctrl:0' % sh); e('v_add_f32_dpp v23, v23, v23 row_shr:%d row_mask:0xf bank_mask:0xf bound_ctrl:0' % sh)
nop(1); e('v_add_f32_dpp v22, v22, v22 row_bcast:15 row_mask:0xa bank_mask:0xf'); e('v_add_f32_dpp v23, v23, v23 row_bcast:15 row_mask:0xa bank_mask:0xf')
nop(1); e('v_add_f32_dpp v22, v22, v22 row_bcast:31 row_mask:0xc bank_mask:0xf'); e('v_add_f32_dpp v23, v23, v23 row_bcast:31 row_mask:0xc bank_mask:0xf')
ST = SCR + 3072
e('s_lshl_b32 s10, s4, 3'); e('s_add_u32 s10, s10, %d' % ST); e('v_mov_b32 v20, s10')
e('s_mov_b64 s[14:15], exec'); e('s_mov_b32 exec_lo, 0'); e('s_mov_b32 exec_hi, 0x80000000')
e('ds_write_b64 v20, v[22:23]')
e('s_mov_b64 exec, s[14:15]')
barrier()
e('v_mov_b32 v20, %d' % ST); e('ds_read_b128 v[24:27], v20'); e('ds_read_b128 v[28:31], v20 offset:16')
e('v_lshlrev_b32 v21, 4, v0'); e('v_add_u32 v21, %d, v21' % XX)
e('s_waitcnt lgkmcnt(0)')
e('v_pk_add_f32 v[24:25], v[24:25], v[26:27]'); e('v_pk_add_f32 v[28:29], v[28:29], v[30:31]'); e('v_pk_add_f32 v[22:23], v[24:25], v[28:29]')
e('v_mul_f32 v22, %s, v22' % hex(f2u(1/640.))); e('v_mul_f32 v23, %s, v23' % hex(f2u(1/640.)))
e('v_fma_f32 v23, -v22, v22, v23'); e('v_max_f32 v23, 0, v23'); e('v_add_f32 v23, %s, v23' % hex(f2u(1e-5))); e('v_rsq_f32 v24, v23'); e('v_mov_b32 v23, v22')
lm = lab(); exec_lt(160, lm)
e('v_mov_b32 v25, v24')
for k in (0, 2):
    e('v_pk_add_f32 v[%d:%d], v[%d:%d], v[22:23] neg_lo:[0,1] neg_hi:[0,1]' % (224+k, 225+k, 232+k, 233+k))
    e('v_pk_mul_f32 v[%d:%d], v[%d:%d], v[%d:%d]' % (228+k, 229+k, 248+k, 249+k, 24, 25))
    e('v_pk_fma_f32 v[%d:%d], v[%d:%d], v[%d:%d], v[%d:%d]' % (224+k, 225+k, 224+k, 225+k, 228+k, 229+k, 244+k, 245+k))
e('v_cvt_pk_bf16_f32 v26, v224, v225'); e('v_cvt_pk_bf16_f32 v27, v226, v227')
e('v_perm_b32 v28, v26, v26, %s' % SEL_LO); e('v_perm_b32 v29, v26, v26, %s' % SEL_HI)
e('v_perm_b32 v30, v27, v27, %s' % SEL_LO); e('v_perm_b32 v31, v27, v27, %s' % SEL_HI)
e('ds_write_b128 v21, v[28:31]')
exec_restore(lm)
e('v_lshrrev_b32 v20, 3, v2'); e('v_lshl_add_u32 v22, v20, 2, v3'); e('v_mul_u32_u24 v22, 80, v22')
e('s_mul_i32 s8, s4, 640'); e('s_add_u32 s8, s8, %d' % XX); e('v_add_u32 v21, s8, v22')
e('v_lshrrev_b32 v22, 1, v3'); e('v_cmp_eq_u32 s[12:13], v20, v22')
e('s_lshl_b32 s8, s4, 1'); e('v_add_u32 v20, s8, v20'); e('v_lshlrev_b32 v20, 8, v20')
e('v_and_b32 v22, 7, v2'); e('v_lshlrev_b32 v22, 5, v22'); e('v_and_b32 v23, 1, v3'); e('v_lshlrev_b32 v23, 4, v23')
e('v_add3_u32 v20, v20, v22, v23'); e('v_add_u32 v20, %d, v20' % RED)
barrier()
for i in range(0, 20, 4): e('ds_read_b128 v[%d:%d], v21 offset:%d' % (XR+i, XR+i+3, 4*i))
e('s_waitcnt vmcnt(0) lgkmcnt(3)')
gemv(20, WR, XR, wait=lambda i: e('s_waitcnt lgkmcnt(%d)' % max(0, 3-(i+2)//4)) if (i % 4 == 2 and i < 16) else None)
e('s_mov_b64 s[14:15], exec'); e('s_mov_b64 exec, s[12:13]')
e('ds_write_b128 v20, v[%d:%d]' % (ACC, ACC+3))
e('s_mov_b64 exec, s[14:15]')
XX3 = SCR + 3584
e('v_lshlrev_b32 v20, 2, v0'); e('v_add_u32 v21, %d, v20' % RED); e('v_add_u32 v20, %d, v20' % XX3)
barrier()
l = lab(); exec_lt(64, l)
for s_ in range(8): e('ds_read_b32 v%d, v21 offset:%d' % (XR+s_, 256*s_))
e('s_waitcnt lgkmcnt(0)')
e('v_pk_add_f32 v[%d:%d], v[%d:%d], v[%d:%d]' % (XR, XR+1, XR, XR+1, XR+4, XR+5)); e('v_pk_add_f32 v[%d:%d], v[%d:%d], v[%d:%d]' % (XR+2, XR+3, XR+2, XR+3, XR+6, XR+7))
e('v_pk_add_f32 v[%d:%d], v[%d:%d], v[%d:%d]' % (XR, XR+1, XR, XR+1, XR+2, XR+3)); e('v_add_f32 v22, v%d, v%d' % (XR, XR+1))
e('v_max_f32 v22, 0, v22'); e('v_cvt_pk_bf16_f32 v22, v22, v22')
e('ds_write_b32 v20, v22')
exec_restore(l)
barrier()
stamp(11)
e('v_lshlrev_b32 v20, 4, v3'); e('s_lshl_b32 s8, s4, 6'); e('s_add_u32 s8, s8, %d' % XX3); e('v_add_u32 v20, s8, v20')
e('ds_read_b128 v[%d:%d], v20' % (XR, XR+3))
e('s_waitcnt lgkmcnt(0)')
AF = 208
for i in range(4):
    for d in range(4): e('v_and_b32 v%d, v%d, v%d' % (AF+4*i+d, XR+i, MK[d]))
nop(2)
AC2 = 224
for i in range(4):
    for cg in range(5):
        r = 112 + 4*(5*i+cg); a = AC2+4*cg
        e('v_mfma_f32_16x16x32_bf16 v[%d:%d], v[%d:%d], v[%d:%d], %s' % (a, a+3, AF+4*i, AF+4*i+3, r, r+3, '0' if i == 0 else 'v[%d:%d]' % (a, a+3)))
nop(8)
e('v_and_b32 v22, 1, v3'); e('v_lshlrev_b32 v22, 4, v22'); e('v_lshl_add_u32 v22, v2, 5, v22')
e('s_mul_i32 s8, s4, 2560'); e('s_add_u32 s8, s8, %d' % RED); e('v_add_u32 v20, s8, v22')
e('v_cmp_gt_u32 vcc, 2, v3'); e('s_and_saveexec_b64 s[14:15], vcc')
for cg in range(5): e('ds_write_b128 v20, v[%d:%d] offset:%d' % (AC2+4*cg, AC2+4*cg+3, 512*cg))
e('s_mov_b64 exec, s[14:15]')
barrier()
l = lab(); exec_lt(160, l)
e('v_lshlrev_b32 v21, 4, v0'); e('v_add_u32 v20, %d, v21' % RED)
for s in range(4): e('ds_read_b128 v[%d:%d], v20 offset:%d' % (XR+4*s, XR+4*s+3, 2560*s))
e('s_waitcnt lgkmcnt(0)')
for s in range(1, 4):
    for k in range(4): e('v_add_f32 v%d, v%d, v%d' % (XR+k, XR+k, XR+4*s+k))
e('v_mov_b32 v208, v192'); e('v_mov_b32 v209, %s' % sN); e('v_mov_b32 v210, v193'); e('v_mov_b32 v211, %s' % sN)
e('v_mov_b32 v212, v194'); e('v_mov_b32 v213, %s' % sN); e('v_mov_b32 v214, v195'); e('v_mov_b32 v215, %s' % sN)
e('v_lshlrev_b32 v20, 5, v0'); e('s_lshl_b32 s8, s5, 13'); e('s_add_u32 s8, s8, %d' % WS_MLP)
e('buffer_store_dwordx4 v[208:211], v20, %s, s8 offen sc1' % WS); e('buffer_store_dwordx4 v[212:215], v20, %s, s8 offen offset:16 sc1' % WS)
exec_restore(l)
stamp(12)
e('s_cmp_ge_u32 s5, 20'); e('s_cbranch_scc1 L_FIN')
e('v_and_b32 v20, 31, v0'); e('v_lshrrev_b32 v21, 5, v0')
e('v_lshlrev_b32 v22, 13, v21'); e('v_lshl_add_u32 v22, v20, 3, v22')
e('s_lshl_b32 s8, s5, 8'); e('s_add_u32 s8, s8, %d' % WS_MLP)
e('v_cmp_gt_u32 vcc, 3, v21'); e('v_add_u32 v23, %d, v22' % (24*8192)); nop(1); e('v_cndmask_b32 v23, v22, v23, vcc')
e('s_add_u32 s9, s8, %d' % (8*8192)); e('s_add_u32 s10, s8, %d' % (16*8192))
e('s_mov_b64 s[12:13], vcc')
st = lambda k: 216 + 8*k
pollp(3, lambda k: ['buffer_load_dwordx2 v[%d:%d], v%d, %s, %s offen sc1' % (st(k)+2*j, st(k)+2*j+1, a_, WS, so) for j, (a_, so) in enumerate([(22, 's8'), (22, 's9'), (22, 's10'), (23, 's8')])],
      lambda k: [st(k)+1+2*j for j in range(4)], lambda k: [st(k)+2*j for j in range(4)] if k < 3 else [192, 194, 196, 198])
stamp(13)
e('v_cndmask_b32 v198, 0, v198, s[12:13]')
e('v_add_f32 v192, v192, v194'); e('v_add_f32 v196, v196, v198'); e('v_add_f32 v192, v192, v196')
FR = SCR + 24576
e('v_lshlrev_b32 v22, 2, v0'); e('v_add_u32 v22, %d, v22' % FR); e('ds_write_b32 v22, v192')
barrier()
l = lab(); exec_lt(16, l)
e('v_lshlrev_b32 v20, 3, v0'); e('v_add_u32 v22, %d, v20' % FR)
for p in range(8): e('ds_read_b64 v[%d:%d], v22 offset:%d' % (192+2*p, 193+2*p, 128*p))
e('s_lshl_b32 s8, s5, 7'); e('s_add_u32 s8, s8, %d' % X1L); e('v_add_u32 v23, s8, v20')
e('ds_read_b64 v[208:209], v23'); e('ds_read_b64 v[210:211], v23 offset:4096')
e('s_waitcnt lgkmcnt(0)')
for p in range(1, 8): e('v_add_f32 v192, v192, v%d' % (192+2*p)); e('v_add_f32 v193, v193, v%d' % (193+2*p))
e('v_fma_f32 v192, v210, v192, v208'); e('v_fma_f32 v193, v211, v193, v209')
e('v_cvt_pk_bf16_f32 v192, v192, v193')
srd(SA, 38, 1280)
e('v_lshlrev_b32 v20, 2, v0'); e('s_lshl_b32 s8, s5, 6')
e('buffer_store_dword v192, v20, %s, s8 offen' % SA)
exec_restore(l)
e('s_cmp_lg_u32 s3, 40'); e('s_cbranch_scc1 L_FIN')
l = lab(); exec_lt(1, l)
e('v_mov_b32 v20, 0'); e('v_mov_b32 v22, s97'); e('buffer_store_dword v22, v20, %s, 0 offen sc1' % WS)
exec_restore(l)
e('L_FIN:')
if STAMPS and '--dbg' in sys.argv:
    stamp(14)
    e('s_load_dwordx2 s[8:9], s[0:1], 96')
    e('s_waitcnt lgkmcnt(0)')
    e('s_mov_b32 s10, 256'); e('s_mov_b32 s11, 0x20000')
    e('s_cmp_lg_u32 s3, 40'); e('s_cbranch_scc1 L_END')
    l = lab(); exec_lt(1, l)
    for k in range(15):
        e('v_mov_b32 v24, s%d' % (60+2*k)); e('v_mov_b32 v20, %d' % (4*k)); e('buffer_store_dword v24, v20, s[8:11], 0 offen'); nop(2)
    exec_restore(l)
elif STAMPS:
    stamp(14)
    e('s_waitcnt lgkmcnt(0)')
    l = lab(); exec_lt(1, l)
    e('s_lshl_b32 s8, s3, 6'); e('s_add_u32 s8, s8, %d' % WS_STAMP); e('v_mov_b32 v20, 0')
    for k in range(0, 16, 4):
        for j in range(4): e('v_mov_b32 v%d, s%d' % (24+j, 60+2*(k+j)))
        e('buffer_store_dwordx4 v[24:27], v20, %s, s8 offen offset:%d' % (WS, 4*k)); nop(2)
    exec_restore(l)
e('L_END:')
e('s_endpgm')
L.append('.section .rodata,"a"')
L.append('.p2align 6')
L.append('.amdhsa_kernel %s_kernel' % NAME)
for k, v in [('next_free_vgpr', 512), ('next_free_sgpr', 102), ('accum_offset', 256), ('group_segment_fixed_size', 0), ('kernarg_size', 112),
             ('user_sgpr_count', 2), ('user_sgpr_kernarg_segment_ptr', 1), ('system_sgpr_workgroup_id_x', 1)]:
    L.append('  .amdhsa_%s %d' % (k, v))
L.append('.end_amdhsa_kernel')
txt = '\n'.join(L) + '\n'
import subprocess, re
tmp = txt.replace('NSLICE', '0')
open('_sz.s', 'w').write(tmp)
subprocess.run(['clang', '-x', 'assembler', '-target', 'amdgcn-amd-amdhsa', '-mcpu=gfx950', '-c', '_sz.s', '-o', '_sz.o'], check=True)
dis = subprocess.run(['llvm-objdump', '-d', '--mcpu=gfx950', '_sz.o'], capture_output=True, text=True).stdout
end = int(re.findall(r's_endpgm\s+// ([0-9A-F]+):', dis)[-1], 16)
m = re.findall(r's_getpc_b64.*// ([0-9A-F]+):', dis)
pc = int(m[0], 16) + 4 if m else 0
nsl = (end - pc) // 1024 - 1
print('code bytes', end, 'slices', nsl)
txt = txt.replace('NSLICE', str(nsl))
open(OUT, 'w').write(txt)
print('wrote', OUT, len(L), 'lines')
```

```python
import sys
def ARG(k,d):
    for a in sys.argv[1:]:
        if a.startswith('--%s='%k): return a.split('=')[1]
    return d
NAME = "adaLN_cond__compressed_kv_cla__dense_activation_relu__decode"
STAMPS = '--stamps' in sys.argv
OUT = [a for a in sys.argv[1:] if not a.startswith('--')]
OUT = OUT[0] if OUT else 'cdna_kernels/%s.s' % NAME

L = []
def e(s=''):
    for ln in s.split('\n'):
        L.append('    ' + ln.strip() if ln.strip() and not ln.strip().endswith(':') else ln.strip())
_lab = [0]
def lab(p='L'):
    _lab[0] += 1
    return '%s_%d' % (p, _lab[0])
def nop(n):
    while n > 0:
        k = min(n, 16); e('s_nop %d' % (k-1)); n -= k

WS_GEN=0; WS_MOD=0x1000; MOD_KH=0x4000; WS_Q=0x10000; WS_QAF=0x20000; WS_QA=0x28000
WS_STATS=0x900000; WS_CTX=0x60000; WS_X1P=0x70000; WS_MLP=0x80000; WS_STAMP=0xC0000; WS_PART=0x100000
WS_SIZE=0x980000
SCR=131072
XX=SCR; RED=SCR+4096
QSCALE = (128**-0.5)*1.4426950408889634
import struct
def f2u(f): return struct.unpack('<I', struct.pack('<f', f))[0]

sID='s3'; sW='s4'; sN='s42'; WS='s[44:47]'; SA='s[48:51]'; SB='s[52:55]'
SEL_LO='s56'; SEL_HI='s57'
vT='v0'; vL='v1'; vN='v2'; vG='v3'
MK=[4,5,6,7]; AB=[8,12]; ACC=16
WR=32; XR=192

nst=[0]
LATE = '--late' in sys.argv
ATT = '--att' in sys.argv
EARLY = '--early' in sys.argv
def estamp(k, wait=None):
    if STAMPS and EARLY:
        if wait is not None: e('s_waitcnt vmcnt(%d)' % wait)
        e('s_memrealtime s[%d:%d]' % (60+2*k, 61+2*k))
def stamp(k):
    if EARLY and 5 <= k <= 8: return
    if STAMPS and not ((LATE or ATT) and 1 <= k <= 8): e('s_memrealtime s[%d:%d]' % (60+2*k, 61+2*k))
def lstamp(k):
    if STAMPS and LATE: e('s_memrealtime s[%d:%d]' % (60+2*k, 61+2*k))
def astamp(k):
    if STAMPS and ATT: e('s_memrealtime s[%d:%d]' % (60+2*k, 61+2*k))

def srd(q, plo, size, add=None):
    b = int(q[2:q.index(':')])
    if add is None:
        e('s_mov_b32 s%d, s%d' % (b, plo)); e('s_mov_b32 s%d, s%d' % (b+1, plo+1))
    else:
        e('s_add_u32 s%d, s%d, %s' % (b, plo, add)); e('s_addc_u32 s%d, s%d, 0' % (b+1, plo+1))
    e('s_mov_b32 s%d, %d' % (b+2, size)); e('s_mov_b32 s%d, 0x20000' % (b+3))

def gemv(n, wbase, xbase, acc=ACC, wait=None):
    def ands(i):
        a = AB[i & 1]
        for d in range(4): e('v_and_b32 v%d, v%d, v%d' % (a+d, xbase+i, MK[d]))
    ands(0)
    for i in range(n):
        if i+1 < n: ands(i+1)
        else: nop(2)
        if wait: wait(i)
        a = AB[i & 1]
        c = '0' if i == 0 else 'v[%d:%d]' % (acc, acc+3)
        e('v_mfma_f32_16x16x32_bf16 v[%d:%d], v[%d:%d], v[%d:%d], %s' % (acc, acc+3, a, a+3, wbase+4*i, wbase+4*i+3, c))
    nop(8)

def wave_reduce(v, op='add', tmp=None):
    ins = 'v_add_f32_dpp' if op == 'add' else 'v_max_f32_dpp'
    for sh in (1,2,4,8):
        nop(2)
        if op == 'add': e('%s v%d, v%d, v%d row_shr:%d row_mask:0xf bank_mask:0xf bound_ctrl:0' % (ins, v, v, v, sh))
        else: e('%s v%d, v%d, v%d row_shr:%d row_mask:0xf bank_mask:0xf' % (ins, v, v, v, sh))
    nop(2); e('%s v%d, v%d, v%d row_bcast:15 row_mask:0xa bank_mask:0xf' % (ins, v, v, v))
    nop(2); e('%s v%d, v%d, v%d row_bcast:31 row_mask:0xc bank_mask:0xf' % (ins, v, v, v))
    nop(1)

def tagchk(tags):
    e('v_sad_u32 v30, v%d, %s, 0' % (tags[0], sN))
    for t in tags[1:]: e('v_sad_u32 v30, v%d, %s, v30' % (t, sN))
    e('v_cmp_ne_u32 vcc, 0, v30')
def poll(loads, tags, sleep=1, pre=None):
    l0 = lab('P'); l1 = lab('PD')
    e(l0 + ':')
    for s_ in loads: e(s_)
    e('s_waitcnt vmcnt(0)')
    tagchk(tags)
    e('s_cbranch_vccz %s' % l1)
    e('s_sub_u32 s59, s59, 1')
    e('s_cbranch_scc1 L_END')
    if sleep: e('s_sleep %d' % sleep)
    e('s_branch %s' % l0)
    e(l1 + ':')
def pollp(K, loads, tags, regs, sleep=0):
    P = sum(1 for x in loads(0) if x.startswith('buffer_'))
    l0 = lab('P'); ld = lab('PD'); dn = [lab('PK') for _ in range(K)]
    for k in range(K):
        for s_ in loads(k): e(s_)
    e(l0 + ':')
    for k in range(K):
        e('s_waitcnt vmcnt(%d)' % ((K-1)*P))
        tagchk(tags(k))
        e('s_cbranch_vccz %s' % dn[k])
        if k == 0:
            e('s_sub_u32 s59, s59, 1'); e('s_cbranch_scc1 L_END')
        if sleep: e('s_sleep %d' % sleep)
        for s_ in loads(k): e(s_)
    e('s_branch %s' % l0)
    for k in range(K-1, 0, -1):
        e(dn[k] + ':')
        e('s_waitcnt vmcnt(%d)' % ((K-1-k)*P if False else 0)) if False else None
        for d_, s_ in zip(regs(K), regs(k)): e('v_mov_b32 v%d, v%d' % (d_, s_))
        e('s_branch %s' % ld)
    e(dn[0] + ':')
    for d_, s_ in zip(regs(K), regs(0)): e('v_mov_b32 v%d, v%d' % (d_, s_))
    e(ld + ':')

def exec_lt(n, lbl):
    e('v_cmp_gt_u32 vcc, %d, %s' % (n, vT)); e('s_and_saveexec_b64 s[14:15], vcc'); e('s_cbranch_execz %s' % lbl)
def exec_restore(lbl):
    e(lbl + ':'); e('s_mov_b64 exec, s[14:15]')

def unpack(lo, hi, src):
    e('v_lshlrev_b32 v%d, 16, v%d' % (lo, src)); e('v_and_b32 v%d, 0xffff0000, v%d' % (hi, src))

def barrier(lds=True):
    if lds: e('s_waitcnt lgkmcnt(0)')
    e('s_barrier')

def hash_nonce():
    e('s_waitcnt lgkmcnt(0)')
    e('s_mul_i32 s8, %s, 0x9e3779b1' % sN); e('s_add_u32 s97, s8, 0x7f4a7c15')
    e('s_and_b32 %s, s97, 0xbfffbfff' % sN)

TAILR = int(ARG('tail', 6))
def swz(k): return ((k & 3) << 2) | ((k >> 2) & 3)
S0C_A = int(ARG('s0a', 8))
S1_A, S2_A = int(ARG('s1a',0)), int(ARG('s2a',12))
def dma_setup():
    e('s_lshl_b32 s8, s3, 17')
    srd('s[92:95]', 18, 131072, add='s8')
    e('v_lshlrev_b32 v19, 4, v1')
    e('s_lshl_b32 s96, s4, 15')
W0ROWS = 99
def dma_rows(r0, r1):
    e('v_lshlrev_b32 v31, 4, v1')
    lskip = lab('DS')
    for r in range(r0, r1):
        if r1 == 32 and r == W0ROWS:
            e('s_cmp_eq_u32 s4, 0'); e('s_cbranch_scc1 %s' % lskip)
        e('s_mov_b32 m0, s96')
        e('v_xor_b32 v30, %d, v31' % (swz(r) << 4))
        e('buffer_load_dwordx4 v30, s[92:95], s96 offen nt lds')
        e('s_add_u32 s96, s96, 1024')
    if False:
        e('s_lshl_b32 s96, s4, 12'); e('s_add_u32 s96, s96, %d' % (16*1024)); e('s_lshl_b32 s8, s4, 4'); e('v_xor_b32 v31, s8, v31')
        for i in range(4):
            e('s_mov_b32 m0, s96')
            e('v_xor_b32 v30, %d, v31' % (i << 6))
            e('buffer_load_dwordx4 v30, s[92:95], s96 offen nt lds')
            e('s_add_u32 s96, s96, 1024')
        e(lskip + ':')

L[-1] = L[-1].strip()
L.append('; @launch grid=(256,1,1) block=(256,1,1) lds=163840')
L.append('.amdgcn_target "amdgcn-amd-amdhsa--gfx950"')
L.append('.text')
L.append('.globl %s_kernel' % NAME)
L.append('.p2align 8')
L.append('.type %s_kernel,@function' % NAME)
L.append('%s_kernel:' % NAME)
e('s_cmp_ge_u32 s2, 256')
e('s_cbranch_scc1 L_END')
stamp(0)
if '--dbg' in sys.argv:
    for k in range(1, 16): e('s_mov_b32 s%d, 0' % (60+2*k))
e('s_load_dwordx16 s[16:31], s[0:1], 0')
e('s_load_dwordx8 s[32:39], s[0:1], 64')
e('s_load_dwordx2 s[40:41], s[0:1], 104')
e('s_sub_u32 s3, s2, 40'); e('s_add_u32 s5, s2, 88'); e('s_cmp_lt_u32 s2, 40'); e('s_cselect_b32 s3, s5, s3')
e('s_cmp_ge_u32 s2, 128'); e('s_cselect_b32 s3, s2, s3')
e('v_and_b32 v1, 63, v0')
e('v_and_b32 v2, 15, v0')
e('v_bfe_u32 v3, v0, 4, 2')
e('v_lshrrev_b32 v20, 6, v0')
e('s_mov_b32 s56, 0x01000100')
e('s_mov_b32 s57, 0x03020302')
e('s_mov_b32 s59, 0x10000')
e('v_readfirstlane_b32 s4, v20')
def masks():
    e('v_and_b32 v20, 1, v0'); e('v_lshlrev_b32 v20, 4, v20'); e('v_mov_b32 v21, 0xffff'); e('v_lshlrev_b32 v21, v20, v21')
    e('v_bfe_u32 v22, v0, 1, 2')
    for d in range(4):
        e('v_cmp_eq_u32 vcc, %d, v22' % d); nop(2); e('v_cndmask_b32 v%d, 0, v21, vcc' % MK[d])
e('v_lshrrev_b32 v24, 3, v2'); e('v_lshl_add_u32 v24, v24, 2, v3'); e('v_mul_u32_u24 v24, 10, v24')
e('s_mul_i32 s8, s4, 80'); e('v_add_u32 v24, s8, v24')
if ARG('pf','0') == '1':
    e('s_getpc_b64 s[10:11]')
    e('L_PC:')
    e('s_lshr_b32 s5, s2, 3'); e('s_mul_i32 s6, s4, 8'); e('s_add_u32 s5, s5, s6'); e('s_and_b32 s5, s5, 31')
    e('s_min_u32 s5, s5, NSLICE'); e('s_lshl_b32 s5, s5, 10')
    e('v_lshlrev_b32 v20, 4, v1'); e('v_add_u32 v20, s5, v20')
    e('global_load_dwordx4 v[248:251], v20, s[10:11]')
e('s_waitcnt lgkmcnt(0)')
e('s_load_dword s42, s[40:41], 0')
srd(WS, 40, WS_SIZE)
e('s_cmp_lt_u32 s3, 64'); e('s_cbranch_scc1 L_S1')
e('s_cmp_lt_u32 s3, 88'); e('s_cbranch_scc1 L_NOS0')
e('s_cmp_ge_u32 s3, 128'); e('s_cbranch_scc1 L_S2ONLY')

UK = 72
def s2_issue():
    e('s_sub_u32 s8, s3, 128'); e('s_lshr_b32 s8, s8, 2'); e('s_and_b32 s9, s3, 3')
    srd(SB, 22, 512*8192)
    e('s_lshl_b32 s9, s9, 7'); e('s_lshl_b32 s10, s4, 5'); e('s_add_u32 s9, s9, s10')
    e('v_add_u32 v20, s9, v2'); e('v_lshlrev_b32 v20, 13, v20'); e('v_lshlrev_b32 v21, 4, v3')
    e('s_lshl_b32 s10, s8, 8'); e('v_add3_u32 v20, v20, v21, s10')
    for tt in range(2):
        e('s_mov_b32 s12, %d' % (tt*16*8192))
        for ks in range(4):
            r = UK + 16*tt + 4*ks
            e('buffer_load_dwordx4 v[%d:%d], v20, %s, s12 offen offset:%d nt' % (r, r+3, SB, ks*64))
def s0_issue():
    e('s_lshr_b32 s6, s5, 1'); e('s_and_b32 s7, s5, 1')
    srd(SA, 36, 640*7680); srd(SB, 34, 1280)
    e('s_mul_i32 s9, s7, 320'); e('v_add_u32 v20, s9, v24')
    e('s_movk_i32 s10, 7680'); e('v_mul_lo_u32 v20, v20, s10')
    e('v_and_b32 v21, 7, v2'); e('v_lshlrev_b32 v21, 4, v21')
    e('s_lshl_b32 s11, s6, 7'); e('v_add3_u32 v20, v20, v21, s11')
    e('v_lshlrev_b32 v21, 2, v0'); e('s_mul_i32 s12, s7, 640')
    e('buffer_load_dword v25, v21, %s, s12 offen' % SB)
    for i in range(10):
        e('s_mov_b32 s12, %d' % (i*7680)); e('buffer_load_dwordx4 v[%d:%d], v20, %s, s12 offen nt' % (WR+4*i, WR+4*i+3, SA))
def gemv_w8_tail(nx, vm=0, rowreg=24):
    e('v_lshlrev_b32 v21, 2, v%d' % rowreg); e('v_add_u32 v21, %d, v21' % XX)
    for i in range(0, nx, 2): e('ds_read_b64 v[%d:%d], v21 offset:%d' % (XR+i, XR+i+1, 4*i))
    e('v_lshrrev_b32 v20, 3, v2'); e('v_lshrrev_b32 v21, 1, v3'); e('v_cmp_eq_u32 s[12:13], v20, v21')
    e('s_lshl_b32 s8, s4, 1'); e('v_add_u32 v20, s8, v20'); e('v_lshlrev_b32 v20, 8, v20')
    e('v_and_b32 v21, 7, v2'); e('v_lshlrev_b32 v21, 5, v21'); e('v_and_b32 v22, 1, v3'); e('v_lshlrev_b32 v22, 4, v22')
    e('v_add3_u32 v20, v20, v21, v22'); e('v_add_u32 v20, %d, v20' % RED)
    e('s_waitcnt vmcnt(%d) lgkmcnt(0)' % vm)
    gemv(nx, WR, XR)
    e('s_mov_b64 s[14:15], exec'); e('s_mov_b64 exec, s[12:13]')
    e('ds_write_b128 v20, v[%d:%d]' % (ACC, ACC+3))
    e('s_mov_b64 exec, s[14:15]')
    barrier()
def s0_finish(vm):
    e('s_waitcnt vmcnt(%d)' % (10+vm))
    unpack(26, 27, 25)
    for r in (26, 27):
        e('v_mul_f32 v28, 0xbfb8aa3b, v%d' % r); e('v_exp_f32 v28, v28'); nop(1)
        e('v_add_f32 v28, 1.0, v28'); e('v_rcp_f32 v28, v28'); nop(1); e('v_mul_f32 v%d, v%d, v28' % (r, r))
    e('v_cvt_pk_bf16_f32 v26, v26, v27')
    e('v_perm_b32 v28, v26, v26, %s' % SEL_LO); e('v_perm_b32 v29, v26, v26, %s' % SEL_HI)
    e('v_lshlrev_b32 v21, 3, v0'); e('v_add_u32 v21, %d, v21' % XX)
    l = lab(); exec_lt(160, l); e('ds_write_b64 v21, v[28:29]'); exec_restore(l)
    barrier()
    gemv_w8_tail(10, vm)
    l = lab(); exec_lt(32, l)
    e('v_lshlrev_b32 v20, 3, v0'); e('v_add_u32 v21, %d, v20' % RED)
    for s_ in range(8): e('ds_read_b64 v[%d:%d], v21 offset:%d' % (XR+2*s_, XR+2*s_+1, 256*s_))
    e('s_lshl_b32 s8, s7, 14'); e('s_lshl_b32 s9, s6, 8'); e('s_add_u32 s8, s8, s9'); e('s_add_u32 s8, s8, %d' % WS_MOD)
    e('v_mov_b32 v23, %s' % sN)
    e('s_waitcnt lgkmcnt(0)')
    for s_ in (4, 2, 1):
        for k in range(s_): e('v_pk_add_f32 v[%d:%d], v[%d:%d], v[%d:%d]' % (XR+2*k, XR+2*k+1, XR+2*k, XR+2*k+1, XR+2*(k+s_), XR+2*(k+s_)+1))
    e('v_cvt_pk_bf16_f32 v22, v%d, v%d' % (XR, XR+1))
    e('buffer_store_dwordx2 v[22:23], v20, %s, s8 offen sc1' % WS)
    exec_restore(l)

def s2_finish(arows):
    e('s_sub_u32 s5, s3, 128'); e('s_lshr_b32 s5, s5, 2'); e('s_and_b32 s6, s3, 3')
    l = lab(); exec_lt(128, l)
    e('v_lshlrev_b32 v20, 3, v0'); e('s_lshl_b32 s8, s5, 10'); e('s_add_u32 s8, s8, %d' % WS_Q)
    st = lambda k: 140 + 2*k
    pollp(3, lambda k: ['buffer_load_dwordx2 v[%d:%d], v20, %s, s8 offen sc1' % (st(k), st(k)+1, WS)],
          lambda k: [st(k)+1], lambda k: [st(k)] if k < 3 else [136], sleep=1)
    e('v_cvt_pk_bf16_f32 v136, v136, v136')
    e('v_lshlrev_b32 v21, 1, v0'); e('v_add_u32 v21, %d, v21' % XX); e('ds_write_b16 v21, v136')
    exec_restore(l)
    stamp(2)
    barrier()
    e('v_lshlrev_b32 v21, 4, v3'); e('v_add_u32 v21, %d, v21' % XX)
    for ks in range(4): e('ds_read_b128 v[%d:%d], v21 offset:%d' % (XR+4*ks, XR+4*ks+3, 64*ks))
    e('s_lshl_b32 s8, s6, 3'); e('s_lshl_b32 s9, s4, 1'); e('s_add_u32 s8, s8, s9'); e('s_lshl_b32 s8, s8, 10')
    e('s_lshl_b32 s9, s5, 4'); e('s_add_u32 s8, s8, s9'); e('s_add_u32 s8, s8, %d' % WS_QA)
    e('v_lshlrev_b32 v20, 10, v2'); e('v_lshrrev_b32 v21, 1, v3'); e('v_lshlrev_b32 v21, 9, v21'); e('v_and_b32 v24, 1, v3'); e('v_lshlrev_b32 v24, 3, v24')
    e('v_add3_u32 v20, v20, v21, v24')
    e('v_cmp_eq_u32 s[10:11], 1, v2')
    e('s_mov_b32 s9, %s' % hex(f2u(QSCALE)))
    e('s_waitcnt vmcnt(%d) lgkmcnt(0)' % arows)
    for ks in range(4):
        for tt in range(2):
            r = UK + 16*tt + 4*ks; a = 208 + 4*tt
            e('v_mfma_f32_16x16x32_bf16 v[%d:%d], v[%d:%d], v[%d:%d], %s' % (a, a+3, r, r+3, XR+4*ks, XR+4*ks+3, '0' if ks == 0 else 'v[%d:%d]' % (a, a+3)))
    nop(8)
    for tt, m in ((1, 's[10:11]'),):
        for r in range(4): e('v_cndmask_b32 v%d, v%d, v%d, %s' % (208+r, 208+r, 208+4*tt+r, m))
    for r in range(4): e('v_mul_f32 v%d, s9, v%d' % (208+r, 208+r))
    e('v_cvt_pk_bf16_f32 v22, v208, v209'); e('v_cvt_pk_bf16_f32 v23, v210, v211')
    e('v_cmp_gt_u32 vcc, 2, v2'); e('s_and_saveexec_b64 s[14:15], vcc')
    e('buffer_store_dwordx2 v[22:23], v20, %s, s8 offen sc1' % WS)
    e('s_mov_b64 exec, s[14:15]')
    estamp(6)
    e('s_waitcnt vmcnt(0)'); e('s_barrier')
    l = lab(); exec_lt(8, l)
    e('v_lshlrev_b32 v20, 11, v0'); e('s_sub_u32 s8, s3, 128'); e('s_lshl_b32 s8, s8, 4'); e('s_add_u32 s8, s8, %d' % WS_QAF); e('v_mov_b32 v22, %s' % sN)
    e('buffer_store_dword v22, v20, %s, s8 offen sc1' % WS)
    exec_restore(l)
    stamp(3)
e('s_sub_u32 s5, s3, 88')
s0_issue()
masks()
hash_nonce()
s0_finish(0)
stamp(1)
dma_setup(); dma_rows(0, 32)
e('s_branch L_DMA_D')

e('L_NOS0:')
masks()
hash_nonce()
dma_setup(); dma_rows(0, 32)
e('s_branch L_DMA_D')

e('L_S1:')
e('s_lshr_b32 s5, s3, 1'); e('s_and_b32 s6, s3, 1')
srd(SA, 20, 640*8192); srd(SB, 16, 1280)
e('v_mul_u32_u24 v21, 20, v1')
e('buffer_load_dwordx4 v[124:127], v21, %s, 0 offen' % SB); e('buffer_load_dword v128, v21, %s, 0 offen offset:16' % SB)
e('v_lshlrev_b32 v21, 3, v0'); e('buffer_load_dwordx2 v[130:131], v21, %s, 0 offen' % SB)
masks()
e('v_lshrrev_b32 v24, 3, v2'); e('v_lshl_add_u32 v24, v24, 2, v3'); e('v_mul_u32_u24 v24, 20, v24')
e('s_mul_i32 s8, s4, 160'); e('v_add_u32 v24, s8, v24')
e('v_lshlrev_b32 v23, 13, v24'); e('v_and_b32 v21, 7, v2'); e('v_lshlrev_b32 v21, 4, v21')
e('s_lshl_b32 s10, s5, 8'); e('s_lshl_b32 s11, s6, 7'); e('s_add_u32 s10, s10, s11'); e('v_add3_u32 v23, v23, v21, s10')
e('s_waitcnt vmcnt(0)')
for i in range(20):
    e('s_mov_b32 s12, %d' % (i*8192)); e('buffer_load_dwordx4 v[%d:%d], v23, %s, s12 offen nt' % (WR+4*i, WR+4*i+3, SA))
dma_setup(); dma_rows(0, S1_A)
for k in range(5): unpack(132+2*k, 133+2*k, 124+k)
e('v_add_f32 v20, v132, v133')
for k in range(2, 10): e('v_add_f32 v20, v20, v%d' % (132+k))
wave_reduce(20); e('v_readlane_b32 s8, v20, 63'); nop(2)
e('v_mov_b32 v21, s8'); e('v_mul_f32 v21, %s, v21' % hex(f2u(1/640.)))
e('v_mov_b32 v20, 0')
for k in range(10):
    e('v_sub_f32 v22, v%d, v21' % (132+k)); e('v_fmac_f32 v20, v22, v22')
wave_reduce(20); e('v_readlane_b32 s8, v20, 63'); nop(2)
e('v_mov_b32 v22, s8'); e('v_mul_f32 v22, %s, v22' % hex(f2u(1/640.))); e('v_add_f32 v22, %s, v22' % hex(f2u(1e-5)))
e('v_rsq_f32 v22, v22'); nop(1)
unpack(132, 133, 130); unpack(134, 135, 131)
for r in range(132, 136):
    e('v_sub_f32 v%d, v%d, v21' % (r, r)); e('v_mul_f32 v%d, v%d, v22' % (r, r))
hash_nonce()
l = lab(); exec_lt(160, l)
e('v_lshlrev_b32 v20, 4, v0')
e('s_mov_b32 s8, %d' % WS_MOD); e('s_mov_b32 s9, %d' % (WS_MOD+2560)); e('s_mov_b32 s10, %d' % (WS_MOD+MOD_KH)); e('s_mov_b32 s11, %d' % (WS_MOD+MOD_KH+2560))
st = lambda k: 144 + 16*k
pollp(2, lambda k: ['buffer_load_dwordx4 v[%d:%d], v20, %s, %s offen sc1' % (st(k)+4*j, st(k)+4*j+3, WS, so) for j, so in enumerate(['s8', 's10', 's9', 's11'])],
      lambda k: [st(k)+1+2*j for j in range(8)], lambda k: [st(k)+2*j for j in range(8)] if k < 2 else list(range(176, 184)))
unpack(8, 9, 176); unpack(10, 11, 177); unpack(12, 13, 178); unpack(14, 15, 179)
e('v_pk_add_f32 v[8:9], v[8:9], v[12:13]'); e('v_pk_add_f32 v[10:11], v[10:11], v[14:15]')
unpack(12, 13, 180); unpack(14, 15, 181); unpack(16, 17, 182); unpack(18, 19, 183)
e('v_pk_add_f32 v[12:13], v[12:13], v[16:17]'); e('v_pk_add_f32 v[14:15], v[14:15], v[18:19]')
e('v_pk_fma_f32 v[8:9], v[132:133], v[12:13], v[8:9]'); e('v_pk_fma_f32 v[10:11], v[134:135], v[14:15], v[10:11]')
e('v_pk_add_f32 v[8:9], v[8:9], v[132:133]'); e('v_pk_add_f32 v[10:11], v[10:11], v[134:135]')
e('v_cvt_pk_bf16_f32 v26, v8, v9'); e('v_cvt_pk_bf16_f32 v27, v10, v11')
e('v_perm_b32 v28, v26, v26, %s' % SEL_LO); e('v_perm_b32 v29, v26, v26, %s' % SEL_HI)
e('v_perm_b32 v30, v27, v27, %s' % SEL_LO); e('v_perm_b32 v31, v27, v27, %s' % SEL_HI)
e('v_add_u32 v21, %d, v20' % XX); e('ds_write_b128 v21, v[28:31]')
exec_restore(l)
stamp(1)
barrier()
gemv_w8_tail(20, S1_A)
l = lab(); exec_lt(64, l)
e('v_lshlrev_b32 v20, 2, v0'); e('v_add_u32 v20, %d, v20' % RED)
for s_ in range(8): e('ds_read_b32 v%d, v20 offset:%d' % (XR+s_, 256*s_))
e('s_lshl_b32 s8, s5, 10'); e('s_lshl_b32 s9, s6, 9'); e('s_add_u32 s8, s8, s9'); e('s_add_u32 s8, s8, %d' % WS_Q)
e('v_mov_b32 v23, %s' % sN); e('v_lshlrev_b32 v20, 3, v0')
e('s_waitcnt lgkmcnt(0)')
e('v_pk_add_f32 v[%d:%d], v[%d:%d], v[%d:%d]' % (XR, XR+1, XR, XR+1, XR+4, XR+5)); e('v_pk_add_f32 v[%d:%d], v[%d:%d], v[%d:%d]' % (XR+2, XR+3, XR+2, XR+3, XR+6, XR+7))
e('v_pk_add_f32 v[%d:%d], v[%d:%d], v[%d:%d]' % (XR, XR+1, XR, XR+1, XR+2, XR+3)); e('v_add_f32 v22, v%d, v%d' % (XR, XR+1))
e('buffer_store_dwordx2 v[22:23], v20, %s, s8 offen sc1' % WS)
exec_restore(l)
stamp(2)
dma_rows(S1_A, 32)
e('s_branch L_DMA_D')

e('L_S2ONLY:')
masks(); hash_nonce()
s2_issue(); dma_setup(); dma_rows(0, S2_A)
s2_finish(S2_A)
dma_rows(S2_A, 32)
e('s_branch L_DMA_D')

e('L_DMA_D:')
e('v_lshlrev_b32 v21, 4, v1')
stamp(4)
QA_ADDR=224; S_ACC=208; QB=232
e('v_and_b32 v20, 31, v1'); e('v_lshrrev_b32 v22, 5, v1')
e('v_and_b32 v23, 3, v20'); e('v_lshlrev_b32 v23, 2, v23'); e('v_bfe_u32 v24, v20, 2, 2'); e('v_or_b32 v23, v23, v24')
e('v_xor_b32 v23, v23, v22'); e('v_lshlrev_b32 v23, 4, v23')
e('s_lshl_b32 s8, s4, 15'); e('v_lshlrev_b32 v24, 10, v20'); e('v_add3_u32 v23, v23, v24, s8')
for jj in range(8): e('v_xor_b32 v%d, %d, v23' % (QA_ADDR+jj, jj << 5))
e('v_lshlrev_b32 v%d, 4, v1' % QB); e('v_add_u32 v%d, %d, v%d' % (QB, SCR, QB))
e('s_waitcnt vmcnt(0)')
for j in range(32):
    e('ds_read_b128 a[%d:%d], v%d offset:%d' % (4*j, 4*j+3, QA_ADDR+(j & 7), (j >> 3)*256))
    if j >= 12: e('s_waitcnt lgkmcnt(12)')
e('s_cmp_lg_u32 s4, 0'); e('s_cbranch_scc1 L_E3D')
e('s_and_b32 s8, s3, 7'); e('s_lshl_b32 s8, s8, 11'); e('s_add_u32 s8, s8, %d' % WS_QAF)
pollp(2, lambda k: ['buffer_load_dword v%d, v21, %s, s8 offen sc1' % (26+2*k, WS), 'buffer_load_dword v%d, v21, %s, s8 offen offset:1024 sc1' % (27+2*k, WS)], lambda k: [26+2*k, 27+2*k], lambda k: [], sleep=1)
e('L_E3D:')
e('s_barrier')
stamp(5)
e('s_mov_b32 s9, %d' % WS_QA)
e('buffer_load_dwordx4 a[224:227], v21, %s, s9 offen sc1' % WS)
e('s_lshl_b32 s8, s4, 13'); e('s_add_u32 s8, s8, %d' % WS_QA)
for i in range(8):
    if i == 4: e('s_add_u32 s8, s8, 4096')
    e('buffer_load_dwordx4 a[%d:%d], v21, %s, s8 offen offset:%d sc1' % (192+4*i, 195+4*i, WS, (i & 3)*1024))
e('s_lshl_b32 s8, s4, 13'); e('v_add_u32 v25, s8, v%d' % QB)
e('s_cmp_lt_u32 s3, 128'); e('s_cbranch_scc1 L_NOUV')
srd(SA, 24, 512*8192)
e('s_and_b32 s8, s3, 3'); e('s_lshl_b32 s8, s8, 7'); e('s_lshl_b32 s9, s4, 5'); e('s_add_u32 s8, s8, s9')
e('v_lshrrev_b32 v20, 1, v3'); e('v_lshlrev_b32 v20, 4, v20'); e('v_and_b32 v22, 1, v3'); e('v_lshlrev_b32 v22, 2, v22'); e('v_add3_u32 v20, v20, v22, s8')
e('v_lshlrev_b32 v20, 13, v20'); e('v_lshlrev_b32 v22, 4, v2')
e('s_sub_u32 s9, s3, 128'); e('s_lshr_b32 s9, s9, 2'); e('s_lshl_b32 s9, s9, 8'); e('v_add3_u32 v20, v20, v22, s9')
for i in range(8):
    e('s_mov_b32 s12, %d' % ((8*(i >> 2) + (i & 3))*8192)); e('buffer_load_dwordx4 v[%d:%d], v20, %s, s12 offen nt' % (WR+4*i, WR+4*i+3, SA))
e('s_waitcnt vmcnt(8)'); e('s_branch L_UVD')
e('L_NOUV:'); e('s_waitcnt vmcnt(0)')
e('L_UVD:')
for i in range(8): e('ds_write_b128 v25, a[%d:%d] offset:%d' % (192+4*i, 195+4*i, i*1024))
barrier()
stamp(6)
if ARG('exit','')=='qk': e('s_branch L_FIN')
D = 6; R = 8
def qk_read(j):
    e('ds_read_b128 a[%d:%d], v%d offset:%d' % (160+4*(j % R), 163+4*(j % R), QB, j*1024))
for j in range(1, D): qk_read(j)
for j in range(32):
    if j+D < 32: qk_read(j+D)
    if j > 0: e('s_waitcnt lgkmcnt(%d)' % min(D, 31-j))
    b = 'a[224:227]' if j == 0 else 'a[%d:%d]' % (160+4*(j % R), 163+4*(j % R))
    e('v_mfma_f32_32x32x16_bf16 v[%d:%d], a[%d:%d], %s, %s' % (S_ACC, S_ACC+15, 4*j, 4*j+3, b, '0' if j == 0 else 'v[%d:%d]' % (S_ACC, S_ACC+15)))
D = 4
astamp(1)
PV1=224; PV2=228
e('v_bfe_u32 v20, v1, 2, 2')
e('v_lshrrev_b32 v22, 5, v1')
e('v_bfe_u32 v23, v1, 4, 1')
e('v_bfe_u32 v24, v1, 1, 1')
e('v_lshl_or_b32 v23, v23, 1, v24')
e('v_xor_b32 v23, v23, v22')
e('v_lshl_or_b32 v23, v20, 2, v23')
e('v_lshlrev_b32 v23, 4, v23')
e('v_and_b32 v24, 1, v1'); e('v_lshlrev_b32 v24, 3, v24')
e('v_lshlrev_b32 v25, 2, v22'); e('v_add_u32 v25, v25, v20'); e('v_lshlrev_b32 v25, 10, v25')
e('s_lshl_b32 s8, s4, 8'); e('v_add3_u32 v23, v23, v24, v25'); e('v_add_u32 v23, s8, v23')
for t in range(4):
    e('v_xor_b32 v%d, %d, v23' % (PV1+t, t << 6))
    e('v_xor_b32 v%d, %d, v23' % (PV2+t, (t << 6) ^ (2 << 4))); e('v_add_u32 v%d, 8192, v%d' % (PV2+t, PV2+t))
s0 = S_ACC
e('v_max3_f32 v26, v%d, v%d, v%d' % (s0, s0+1, s0+2))
for k in range(3, 15, 2): e('v_max3_f32 v26, v26, v%d, v%d' % (s0+k, s0+k+1))
e('v_max_f32 v26, v26, v%d' % (s0+15))
e('v_mov_b32 v27, v26'); nop(2); e('v_permlane32_swap_b32 v26, v27'); nop(1); e('v_max_f32 v26, v26, v27')
astamp(2)
MX = SCR
e('v_and_b32 v20, 31, v1'); e('v_lshlrev_b32 v20, 2, v20'); e('v_add_u32 v20, %d, v20' % MX)
e('s_lshl_b32 s8, s4, 7'); e('v_add_u32 v22, s8, v20')
e('ds_write_b32 v22, v26')
barrier()
for w in range(4): e('ds_read_b32 v%d, v20 offset:%d' % (28+w, 128*w))
e('s_lshl_b32 s8, s4, 11'); e('s_add_u32 s8, s8, 8192'); e('v_add_u32 v23, s8, v%d' % QB)
e('s_waitcnt lgkmcnt(0)')
e('v_max3_f32 v26, v28, v29, v30'); e('v_max_f32 v26, v26, v31')
astamp(3)
e('v_mov_b32 v27, v26'); nop(1)
for k in range(0, 16, 2): e('v_pk_add_f32 v[%d:%d], v[%d:%d], v[26:27] neg_lo:[0,1] neg_hi:[0,1]' % (s0+k, s0+k+1, s0+k, s0+k+1))
for k in range(16): e('v_exp_f32 v%d, v%d' % (s0+k, s0+k))
e('v_pk_add_f32 v[28:29], v[%d:%d], v[%d:%d]' % (s0, s0+1, s0+2, s0+3)); e('v_pk_add_f32 v[30:31], v[%d:%d], v[%d:%d]' % (s0+4, s0+5, s0+6, s0+7))
for k in (8, 12): e('v_pk_add_f32 v[28:29], v[28:29], v[%d:%d]' % (s0+k, s0+k+1)); e('v_pk_add_f32 v[30:31], v[30:31], v[%d:%d]' % (s0+k+2, s0+k+3))
for k in range(8): e('v_cvt_pk_bf16_f32 v%d, v%d, v%d' % (s0+k, s0+2*k, s0+2*k+1))
e('v_pk_add_f32 v[28:29], v[28:29], v[30:31]')
e('ds_write_b128 v23, v[%d:%d]' % (s0, s0+3)); e('ds_write_b128 v23, v[%d:%d] offset:1024' % (s0+4, s0+7))
e('v_add_f32 v27, v28, v29')
e('v_mov_b32 v28, v27'); nop(2); e('v_permlane32_swap_b32 v27, v28'); nop(1); e('v_add_f32 v27, v27, v28')
e('ds_write_b32 v22, v27 offset:512')
barrier()
stamp(7)
for ks in range(8): e('ds_read_b128 a[%d:%d], v%d offset:%d' % (96+4*ks, 99+4*ks, QB, 8192+ks*1024))
for w in range(4): e('ds_read_b32 v%d, v20 offset:%d' % (28+w, 512+128*w))
e('s_waitcnt lgkmcnt(0)')
e('s_barrier')
e('v_add_f32 v27, v28, v29'); e('v_add_f32 v27, v27, v30'); e('v_add_f32 v27, v27, v31')
steps = [(ks, t) for ks in range(8) for t in range(4)]
def pv_read(q):
    ks, t = steps[q]
    if ks == 4 and t == 0:
        for k in range(8): e('v_add_u32 v%d, 0x10000, v%d' % (PV1+k, PV1+k))
    o = (ks & 3)*16384; r = 128 + 4*(q % R)
    e('ds_read_b64_tr_b16 a[%d:%d], v%d offset:%d' % (r, r+1, PV1+t, o))
    e('ds_read_b64_tr_b16 a[%d:%d], v%d offset:%d' % (r+2, r+3, PV2+t, o))
astamp(4)
for q in range(D): pv_read(q)
for q in range(32):
    if q+D < 32: pv_read(q+D)
    out = min(D, 31-q)
    e('s_waitcnt lgkmcnt(%d)' % (2*out))
    ks, t = steps[q]; r = 128 + 4*(q % R)
    e('v_mfma_f32_32x32x16_bf16 v[%d:%d], a[%d:%d], a[%d:%d], %s' % (128+16*t, 128+16*t+15, r, r+3, 96+4*ks, 99+4*ks, '0' if ks == 0 else 'v[%d:%d]' % (128+16*t, 128+16*t+15)))
astamp(5)
e('v_and_b32 v20, 31, v1'); e('v_lshrrev_b32 v22, 5, v1'); e('v_and_b32 v23, 15, v20'); e('v_xor_b32 v23, v23, v22'); e('v_lshlrev_b32 v23, 4, v23')
e('v_lshlrev_b32 v24, 8, v20'); e('s_lshl_b32 s8, s4, 13'); e('s_add_u32 s8, s8, %d' % SCR); e('v_add3_u32 v23, v23, v24, s8')
nop(4)
for s_ in range(8):
    b = 128 + 8*s_
    for k in range(4): e('v_cvt_pk_bf16_f32 v%d, v%d, v%d' % (208+4*(s_ & 1)+k, b+2*k, b+2*k+1))
    e('v_xor_b32 v24, %d, v23' % (s_ << 5))
    e('ds_write_b128 v24, v[%d:%d]' % (208+4*(s_ & 1), 211+4*(s_ & 1)))
stamp(8)
e('v_lshlrev_b32 v21, 4, v1'); e('v_add_u32 v20, s8, v21')
e('s_waitcnt lgkmcnt(0)')
for i in range(8): e('ds_read_b128 v[%d:%d], v20 offset:%d' % (208+4*i, 211+4*i, i*1024))
e('v_lshlrev_b32 v22, 18, v3'); e('v_xor_b32 v23, v2, v3'); e('v_lshlrev_b32 v23, 4, v23')
e('s_lshl_b32 s9, s3, 8'); e('s_add_u32 s9, s9, %d' % WS_PART); e('s_lshl_b32 s10, s4, 16'); e('s_add_u32 s9, s9, s10')
for i in range(8):
    e('v_xor_b32 v24, %d, v23' % ((4*(i & 3)) << 4)); e('v_add_u32 v24, v24, v22')
    e('s_waitcnt lgkmcnt(%d)' % (7-i))
    e('buffer_store_dwordx4 v[%d:%d], v24, %s, s9 offen sc1' % (208+4*i, 211+4*i, WS))
    e('s_add_u32 s9, s9, 0x100000')
astamp(6)
e('v_mov_b32 v128, v26'); e('v_mov_b32 v129, %s' % sN); e('v_mov_b32 v130, v27'); e('v_mov_b32 v131, %s' % sN)
e('v_lshlrev_b32 v20, 14, v1'); e('s_lshl_b32 s8, s3, 4'); e('s_lshl_b32 s9, s4, 12'); e('s_add_u32 s8, s8, s9'); e('s_add_u32 s8, s8, %d' % WS_STATS)
e('v_cmp_gt_u32 vcc, 32, v1')
e('s_waitcnt vmcnt(0)')
astamp(7)
e('s_and_saveexec_b64 s[14:15], vcc')
e('buffer_store_dwordx4 v[128:131], v20, %s, s8 offen sc1' % WS)
e('s_mov_b64 exec, s[14:15]')
e('s_barrier')
stamp(9)
if ARG('exit','')=='stats': e('s_branch L_FIN')
e('s_cmp_lt_u32 s3, 128'); e('s_cbranch_scc1 L_LATE_E')

e('s_sub_u32 s5, s3, 128'); e('s_lshr_b32 s5, s5, 2')
e('s_and_b32 s6, s3, 3')
e('v_lshlrev_b32 v21, 4, v1')
e('s_lshl_b32 s8, s5, 2'); e('s_add_u32 s8, s8, s6'); e('s_lshl_b32 s7, s8, 12'); e('s_add_u32 s7, s7, %d' % WS_STATS)
e('s_lshl_b32 s8, s8, 16'); e('s_add_u32 s8, s8, %d' % WS_PART); e('s_lshl_b32 s9, s4, 14'); e('s_add_u32 s8, s8, s9')
e('v_lshlrev_b32 v20, 12, v3'); e('v_lshl_add_u32 v20, v2, 4, v20')
e('s_lshl_b32 s9, s4, 10'); e('s_add_u32 s9, s9, s7')
st4 = ['buffer_load_dwordx4 v[%d:%d], v21, %s, s7 offen offset:%d sc1' % (208+4*k, 211+4*k, WS, 1024*k) for k in range(4)]
if ARG('s4', '2') == '2':
    pollp(3, lambda k: ['buffer_load_dwordx4 v[%d:%d], v21, %s, s9 offen sc1' % (224+4*k, 227+4*k, WS)], lambda k: [225+4*k, 227+4*k], lambda k: [])
    for x_ in st4: e(x_)
    for i in range(16):
        e('buffer_load_dwordx4 v[%d:%d], v20, %s, s8 offen offset:%d sc1' % (64+4*i, 67+4*i, WS, 256*i))
    e('s_waitcnt vmcnt(16)')
    tagchk([209+2*k for k in range(8)])
    e('s_cbranch_vccz L_S4P2')
    poll(st4, [209+2*k for k in range(8)], sleep=0)
    e('L_S4P2:')
else:
    poll(st4, [209+2*k for k in range(8)], sleep=int(ARG('s4sl', 1)))
    for i in range(16):
        e('buffer_load_dwordx4 v[%d:%d], v20, %s, s8 offen offset:%d sc1' % (64+4*i, 67+4*i, WS, 256*i))
stamp(10)
lstamp(1)
e('v_max3_f32 v22, v208, v212, v216'); e('v_max_f32 v22, v22, v220')
wave_reduce(22, 'max'); e('v_readlane_b32 s9, v22, 63'); nop(2)
for k in range(4):
    e('v_subrev_f32 v%d, s9, v%d' % (208+4*k, 208+4*k)); e('v_exp_f32 v%d, v%d' % (208+4*k, 208+4*k))
nop(1)
e('v_mul_f32 v22, v208, v210')
for k in range(1, 4): e('v_fmac_f32 v22, v%d, v%d' % (208+4*k, 210+4*k))
wave_reduce(22); e('v_readlane_b32 s10, v22, 63')
e('v_mov_b32 v23, v208')
for k in range(1, 4):
    e('s_cmp_eq_u32 s4, %d' % k); e('s_cselect_b64 vcc, -1, 0'); e('v_cndmask_b32 v23, v23, v%d, vcc' % (208+4*k))
e('v_cvt_pk_bf16_f32 v24, v23, v23')
e('v_and_b32 v25, 0xffff0000, v24'); e('v_sub_f32 v25, v23, v25'); e('v_cvt_pk_bf16_f32 v25, v25, v25')
e('v_lshlrev_b32 v26, 2, v0'); e('v_add_u32 v26, %d, v26' % XX)
e('ds_write_b32 v26, v24'); e('ds_write_b32 v26, v25 offset:1024')
e('v_lshrrev_b32 v26, 3, v2'); e('v_lshlrev_b32 v26, 10, v26'); e('v_lshl_add_u32 v26, v3, 6, v26'); e('s_lshl_b32 s9, s4, 8'); e('s_add_u32 s9, s9, %d' % XX); e('v_add_u32 v26, s9, v26')
e('s_waitcnt lgkmcnt(0)')
for k in range(4): e('ds_read_b128 v[%d:%d], v26 offset:%d' % (XR+4*k, XR+4*k+3, 16*k))
e('s_waitcnt lgkmcnt(0)')
lstamp(2)
e('s_waitcnt vmcnt(0)')
gemv(16, 64, XR)
stamp(11)
e('v_lshrrev_b32 v20, 1, v3'); e('s_lshl_b32 s8, s4, 1'); e('v_add_u32 v20, s8, v20'); e('v_lshlrev_b32 v20, 9, v20')
e('v_and_b32 v22, 1, v3'); e('v_lshlrev_b32 v22, 4, v22'); e('v_lshl_add_u32 v22, v2, 5, v22'); e('v_add3_u32 v20, v20, v22, %s' % 's58')
L.insert(len(L)-1, '    s_mov_b32 s58, %d' % RED)
e('ds_write_b128 v20, v[%d:%d]' % (ACC, ACC+3))
barrier()
lstamp(3)
l = lab(); exec_lt(128, l)
e('v_lshlrev_b32 v20, 2, v0'); e('v_add_u32 v22, %d, v20' % RED)
for s in range(8): e('ds_read_b32 v%d, v22 offset:%d' % (XR+s, 512*s))
e('v_mov_b32 v23, s10'); e('v_rcp_f32 v23, v23')
e('s_waitcnt lgkmcnt(0)')
for s in range(1, 8): e('v_add_f32 v%d, v%d, v%d' % (XR, XR, XR+s))
e('v_mul_f32 v23, v23, v%d' % XR); e('v_cvt_pk_bf16_f32 v23, v23, v23')
e('v_add_u32 v20, %d, v20' % XX); e('ds_write_b32 v20, v23')
exec_restore(l)
barrier()
lstamp(4)
e('v_lshlrev_b32 v26, 5, v3'); e('s_lshl_b32 s9, s4, 7'); e('s_add_u32 s9, s9, %d' % XX); e('v_add_u32 v26, s9, v26')
for k in range(2): e('ds_read_b128 v[%d:%d], v26 offset:%d' % (XR+4*k, XR+4*k+3, 16*k))
e('s_waitcnt lgkmcnt(0)')
lstamp(5)
gemv(8, WR, XR)
lstamp(6)

def red_w16(nslot_bytes):
    e('v_and_b32 v22, 1, v3'); e('v_lshlrev_b32 v22, 4, v22'); e('v_lshl_add_u32 v22, v2, 5, v22')
    e('s_mul_i32 s8, s4, %d' % nslot_bytes); e('s_add_u32 s8, s8, %d' % RED); e('v_add_u32 v20, s8, v22')
    e('v_cmp_gt_u32 vcc, 2, v3'); e('s_and_saveexec_b64 s[14:15], vcc')
    e('ds_write_b128 v20, v[%d:%d]' % (ACC, ACC+3))
    e('s_mov_b64 exec, s[14:15]')
    barrier()
def pair_sum_publish(sbase):
    l = lab(); exec_lt(64, l)
    e('v_lshlrev_b32 v20, 3, v0'); e('v_add_u32 v22, %d, v20' % RED)
    for s in range(4): e('ds_read_b64 v[%d:%d], v22 offset:%d' % (XR+2*s, XR+2*s+1, 512*s))
    e('s_waitcnt lgkmcnt(0)')
    for s in range(1, 4):
        e('v_add_f32 v%d, v%d, v%d' % (XR, XR, XR+2*s)); e('v_add_f32 v%d, v%d, v%d' % (XR+1, XR+1, XR+2*s+1))
    e('v_cvt_pk_bf16_f32 v22, v%d, v%d' % (XR, XR+1)); e('v_mov_b32 v23, %s' % sN)
    e('buffer_store_dwordx2 v[22:23], v20, %s, %s offen sc1' % (WS, sbase))
    exec_restore(l)
red_w16(512)
lstamp(7)
e('s_lshl_b32 s9, s5, 2'); e('s_add_u32 s9, s9, s6'); e('s_lshl_b32 s9, s9, 9'); e('s_add_u32 s9, s9, %d' % WS_CTX)
pair_sum_publish('s9')
stamp(12)
e('s_branch L_FIN')

e('L_LATE_E:')
e('s_cmp_ge_u32 s3, 107'); e('s_cbranch_scc1 L_FIN')
e('s_cmp_lt_u32 s3, 67'); e('s_cbranch_scc1 L_LATE_E2')
e('s_sub_u32 s6, s3, 47')
srd(SA, 36, 640*7680); srd(SB, 34, 1280)
e('v_lshrrev_b32 v24, 3, v2'); e('v_lshl_add_u32 v24, v24, 2, v3'); e('v_mul_u32_u24 v24, 20, v24')
e('s_mul_i32 s8, s4, 160'); e('v_add_u32 v24, s8, v24')
e('s_movk_i32 s10, 7680'); e('v_mul_lo_u32 v20, v24, s10'); e('v_and_b32 v21, 7, v2'); e('v_lshlrev_b32 v21, 4, v21')
e('s_lshl_b32 s11, s6, 7'); e('v_add3_u32 v20, v20, v21, s11')
e('v_lshlrev_b32 v21, 3, v0'); e('buffer_load_dwordx2 v[112:113], v21, %s, 0 offen' % SB)
for i in range(20):
    e('s_mov_b32 s12, %d' % (i*7680)); e('buffer_load_dwordx4 v[%d:%d], v20, %s, s12 offen nt' % (WR+4*i, WR+4*i+3, SA))
e('s_waitcnt vmcnt(20)')
unpack(114, 115, 112); unpack(116, 117, 113)
for r in range(114, 118):
    e('v_mul_f32 v28, 0xbfb8aa3b, v%d' % r); e('v_exp_f32 v28, v28'); nop(1)
    e('v_add_f32 v28, 1.0, v28'); e('v_rcp_f32 v28, v28'); nop(1); e('v_mul_f32 v%d, v%d, v28' % (r, r))
e('v_cvt_pk_bf16_f32 v26, v114, v115'); e('v_cvt_pk_bf16_f32 v27, v116, v117')
e('v_perm_b32 v28, v26, v26, %s' % SEL_LO); e('v_perm_b32 v29, v26, v26, %s' % SEL_HI)
e('v_perm_b32 v30, v27, v27, %s' % SEL_LO); e('v_perm_b32 v31, v27, v27, %s' % SEL_HI)
e('v_lshlrev_b32 v21, 4, v0'); e('v_add_u32 v21, %d, v21' % XX)
l = lab(); exec_lt(160, l); e('ds_write_b128 v21, v[28:31]'); exec_restore(l)
barrier()
gemv_w8_tail(20, 0)
l = lab(); exec_lt(32, l)
e('v_lshlrev_b32 v20, 3, v0'); e('v_add_u32 v21, %d, v20' % RED)
for s_ in range(8): e('ds_read_b64 v[%d:%d], v21 offset:%d' % (XR+2*s_, XR+2*s_+1, 256*s_))
e('s_lshl_b32 s8, s6, 8'); e('s_add_u32 s8, s8, %d' % WS_MOD); e('v_mov_b32 v23, %s' % sN)
e('s_waitcnt lgkmcnt(0)')
for s_ in (4, 2, 1):
    for k in range(s_): e('v_pk_add_f32 v[%d:%d], v[%d:%d], v[%d:%d]' % (XR+2*k, XR+2*k+1, XR+2*k, XR+2*k+1, XR+2*(k+s_), XR+2*(k+s_)+1))
e('v_cvt_pk_bf16_f32 v22, v%d, v%d' % (XR, XR+1))
e('buffer_store_dwordx2 v[22:23], v20, %s, s8 offen sc1' % WS)
exec_restore(l)
e('s_branch L_FIN')
e('L_LATE_E2:')
e('s_cmp_ge_u32 s3, 40'); e('s_cbranch_scc1 L_MLP')
e('s_mul_i32 s5, s3, 52'); e('s_lshr_b32 s5, s5, 8')
e('s_mul_i32 s6, s5, 5'); e('s_sub_u32 s6, s3, s6')
srd(SA, 26, 4096*1280)
e('s_lshl_b32 s8, s5, 9'); e('s_lshl_b32 s9, s4, 7'); e('s_add_u32 s8, s8, s9'); e('v_lshl_add_u32 v20, v3, 5, s8')
e('s_movk_i32 s10, 1280'); e('v_mul_lo_u32 v20, v20, s10'); e('s_lshl_b32 s9, s6, 8'); e('v_lshlrev_b32 v22, 4, v2'); e('v_add3_u32 v20, v20, v22, s9')
for i in range(32):
    e('s_mov_b32 s12, %d' % ((i // 3)*3*1280)); e('buffer_load_dwordx4 v[%d:%d], v20, %s, s12 offen offset:%d nt' % (WR+4*i, WR+4*i+3, SA, (i % 3)*1280))
e('s_lshl_b32 s8, s5, 2'); e('s_add_u32 s8, s8, s4'); e('s_lshl_b32 s8, s8, 11'); e('s_add_u32 s8, s8, %d' % WS_CTX)
e('v_lshlrev_b32 v21, 3, v1')
e('s_lshl_b32 s9, s4, 9'); e('s_add_u32 s9, s9, %d' % XX); e('v_add_u32 v25, s9, v21')
e('v_lshlrev_b32 v26, 7, v3'); e('v_add_u32 v26, s9, v26')
e('v_and_b32 v22, 1, v3'); e('v_lshlrev_b32 v22, 4, v22'); e('v_lshl_add_u32 v22, v2, 5, v22')
e('s_lshl_b32 s9, s4, 9'); e('s_add_u32 s9, s9, %d' % RED); e('v_add_u32 v24, s9, v22')
e('v_cmp_gt_u32 s[12:13], 2, v3')
e('s_lshl_b32 s10, s5, 12'); e('s_lshl_b32 s11, s6, 9'); e('s_add_u32 s10, s10, s11'); e('s_add_u32 s10, s10, %d' % WS_X1P)
e('v_lshlrev_b32 v27, 3, v0'); e('v_add_u32 v23, %d, v27' % RED)
st = lambda k: 224 + 8*k
pollp(3, lambda k: ['buffer_load_dwordx2 v[%d:%d], v21, %s, s8 offen offset:%d sc1' % (st(k)+2*j, st(k)+2*j+1, WS, 512*j) for j in range(4)],
      lambda k: [st(k)+1+2*j for j in range(4)], lambda k: [st(k)+2*j for j in range(4)] if k < 3 else [248, 249, 250, 251], sleep=int(ARG('s5sl',0)))
stamp(10)
for k in range(4): unpack(8+2*k, 9+2*k, 248+k)
e('v_pk_add_f32 v[8:9], v[8:9], v[10:11]'); e('v_pk_add_f32 v[12:13], v[12:13], v[14:15]'); e('v_pk_add_f32 v[8:9], v[8:9], v[12:13]')
e('v_cvt_pk_bf16_f32 v28, v8, v9')
e('v_perm_b32 v30, v28, v28, %s' % SEL_LO); e('v_perm_b32 v31, v28, v28, %s' % SEL_HI)
e('ds_write_b64 v25, v[30:31]')
e('s_waitcnt lgkmcnt(0)')
for k in range(8): e('ds_read_b128 v[%d:%d], v26 offset:%d' % (XR+4*k, XR+4*k+3, 16*k))
e('s_waitcnt lgkmcnt(6)')
gemv(32, WR, XR, wait=lambda i: e('s_waitcnt lgkmcnt(%d)' % max(0, 6-(i+2)//4)) if (i % 4 == 2 and i < 28) else None)
e('s_mov_b64 s[14:15], exec'); e('s_mov_b64 exec, s[12:13]')
e('ds_write_b128 v24, v[%d:%d]' % (ACC, ACC+3))
e('s_mov_b64 exec, s[14:15]')
barrier()
l = lab(); exec_lt(64, l)
for s_ in range(4): e('ds_read_b64 v[%d:%d], v23 offset:%d' % (XR+2*s_, XR+2*s_+1, 512*s_))
e('v_mov_b32 v29, %s' % sN)
e('s_waitcnt lgkmcnt(0)')
e('v_pk_add_f32 v[%d:%d], v[%d:%d], v[%d:%d]' % (XR, XR+1, XR, XR+1, XR+2, XR+3)); e('v_pk_add_f32 v[%d:%d], v[%d:%d], v[%d:%d]' % (XR+4, XR+5, XR+4, XR+5, XR+6, XR+7))
e('v_pk_add_f32 v[%d:%d], v[%d:%d], v[%d:%d]' % (XR, XR+1, XR, XR+1, XR+4, XR+5))
e('v_cvt_pk_bf16_f32 v28, v%d, v%d' % (XR, XR+1))
e('buffer_store_dwordx2 v[28:29], v27, %s, s10 offen sc1' % WS)
exec_restore(l)
stamp(12)
e('s_branch L_FIN')

def mlp_weights():
    srd(SA, 30, 640*3456)
    e('v_lshrrev_b32 v20, 3, v2'); e('v_lshl_add_u32 v20, v20, 2, v3'); e('v_mul_u32_u24 v20, 20, v20')
    e('s_mul_i32 s8, s4, 160'); e('v_add_u32 v24, s8, v20')
    e('s_movk_i32 s10, 3456'); e('v_mul_lo_u32 v20, v24, s10'); e('v_and_b32 v21, 7, v2'); e('v_lshlrev_b32 v21, 4, v21')
    e('s_lshl_b32 s9, s5, 7'); e('v_add3_u32 v20, v20, v21, s9')
    for i in range(20):
        e('s_mov_b32 s12, %d' % (i*3456)); e('buffer_load_dwordx4 v[%d:%d], v20, %s, s12 offen nt' % (WR+4*i, WR+4*i+3, SA))
    srd(SA, 32, 1728*1280)
    e('s_lshl_b32 s8, s5, 6'); e('s_lshl_b32 s9, s4, 4'); e('s_add_u32 s8, s8, s9'); e('v_lshl_add_u32 v20, v3, 2, s8')
    e('s_movk_i32 s10, 1280'); e('v_mul_lo_u32 v20, v20, s10'); e('v_lshl_add_u32 v20, v2, 4, v20')
    for i in range(4):
        e('s_mov_b32 s12, %d' % (i*1280))
        for cg in range(5):
            r = 112 + 4*(5*i + cg)
            e('buffer_load_dwordx4 v[%d:%d], v20, %s, s12 offen offset:%d nt' % (r, r+3, SA, cg*256))
e('L_MLP:')
e('s_sub_u32 s5, s3, 40')
if ARG('mlpw','early') == 'early': mlp_weights()
srd(SB, 16, 1280)
lm = lab(); exec_lt(160, lm)
e('v_lshlrev_b32 v21, 3, v0'); e('buffer_load_dwordx2 v[224:225], v21, %s, 0 offen' % SB)
e('v_lshlrev_b32 v21, 4, v0')
lds_ = []
for q in range(4):
    lds_.append('s_mov_b32 s12, %d' % (WS_MOD + (2+q)*2560))
    lds_.append('buffer_load_dwordx4 v[%d:%d], v21, %s, s12 offen sc1' % (192+4*q, 195+4*q, WS))
poll(lds_, [193+2*k for k in range(8)], sleep=4)
for q in range(4):
    b = 192+4*q; d = 240+4*q
    unpack(d, d+1, b); unpack(d+2, d+3, b+2)
unpack(236, 237, 224); unpack(238, 239, 225)
for k in range(4): e('v_add_f32 v%d, 1.0, v%d' % (248+k, 248+k))
exec_restore(lm)
if ARG('mlpw','early') == 'late': mlp_weights()
lm = lab(); exec_lt(160, lm)
e('v_lshlrev_b32 v21, 4, v0')
lds_ = []
for kg in range(8):
    lds_.append('s_mov_b32 s12, %d' % (WS_X1P + kg*4096))
    lds_.append('buffer_load_dwordx4 v[%d:%d], v21, %s, s12 offen sc1' % (192+4*kg, 195+4*kg, WS))
X1L = SCR + 16384; GBL = X1L + 4096
e('v_add_u32 v25, %d, v21' % X1L); e('ds_write_b128 v25, v[252:255] offset:4096')
poll(lds_, [193+2*k for k in range(16)], sleep=int(ARG('xsl',0)))
stamp(10)
unpack(232, 233, 192); unpack(234, 235, 194)
for kg in range(1, 8):
    b = 192+4*kg
    unpack(224, 225, b); unpack(226, 227, b+2)
    e('v_pk_add_f32 v[232:233], v[232:233], v[224:225]'); e('v_pk_add_f32 v[234:235], v[234:235], v[226:227]')
e('v_pk_fma_f32 v[232:233], v[240:241], v[232:233], v[236:237]'); e('v_pk_fma_f32 v[234:235], v[242:243], v[234:235], v[238:239]')
e('v_pk_add_f32 v[22:23], v[232:233], v[234:235]'); e('v_pk_mul_f32 v[28:29], v[232:233], v[232:233]'); e('v_pk_fma_f32 v[28:29], v[234:235], v[234:235], v[28:29]')
e('ds_write_b128 v25, v[232:235]')
e('v_add_f32 v22, v22, v23'); e('v_add_f32 v23, v28, v29')
e('s_branch L_MS1')
e(lm + ':')
e('v_mov_b32 v22, 0'); e('v_mov_b32 v23, 0')
e('L_MS1:')
e('s_mov_b64 exec, s[14:15]')
e('v_cmp_gt_u32 vcc, 160, v0'); nop(2); e('v_cndmask_b32 v22, 0, v22, vcc'); e('v_cndmask_b32 v23, 0, v23, vcc')
for sh in (1, 2, 4, 8):
    nop(1)
    e('v_add_f32_dpp v22, v22, v22 row_shr:%d row_mask:0xf bank_mask:0xf bound_ctrl:0' % sh); e('v_add_f32_dpp v23, v23, v23 row_shr:%d row_mask:0xf bank_mask:0xf bound_ctrl:0' % sh)
nop(1); e('v_add_f32_dpp v22, v22, v22 row_bcast:15 row_mask:0xa bank_mask:0xf'); e('v_add_f32_dpp v23, v23, v23 row_bcast:15 row_mask:0xa bank_mask:0xf')
nop(1); e('v_add_f32_dpp v22, v22, v22 row_bcast:31 row_mask:0xc bank_mask:0xf'); e('v_add_f32_dpp v23, v23, v23 row_bcast:31 row_mask:0xc bank_mask:0xf')
ST = SCR + 3072
e('s_lshl_b32 s10, s4, 3'); e('s_add_u32 s10, s10, %d' % ST); e('v_mov_b32 v20, s10')
e('s_mov_b64 s[14:15], exec'); e('s_mov_b32 exec_lo, 0'); e('s_mov_b32 exec_hi, 0x80000000')
e('ds_write_b64 v20, v[22:23]')
e('s_mov_b64 exec, s[14:15]')
barrier()
e('v_mov_b32 v20, %d' % ST); e('ds_read_b128 v[24:27], v20'); e('ds_read_b128 v[28:31], v20 offset:16')
e('v_lshlrev_b32 v21, 4, v0'); e('v_add_u32 v21, %d, v21' % XX)
e('s_waitcnt lgkmcnt(0)')
e('v_pk_add_f32 v[24:25], v[24:25], v[26:27]'); e('v_pk_add_f32 v[28:29], v[28:29], v[30:31]'); e('v_pk_add_f32 v[22:23], v[24:25], v[28:29]')
e('v_mul_f32 v22, %s, v22' % hex(f2u(1/640.))); e('v_mul_f32 v23, %s, v23' % hex(f2u(1/640.)))
e('v_fma_f32 v23, -v22, v22, v23'); e('v_max_f32 v23, 0, v23'); e('v_add_f32 v23, %s, v23' % hex(f2u(1e-5))); e('v_rsq_f32 v24, v23'); e('v_mov_b32 v23, v22')
lm = lab(); exec_lt(160, lm)
e('v_mov_b32 v25, v24')
for k in (0, 2):
    e('v_pk_add_f32 v[%d:%d], v[%d:%d], v[22:23] neg_lo:[0,1] neg_hi:[0,1]' % (224+k, 225+k, 232+k, 233+k))
    e('v_pk_mul_f32 v[%d:%d], v[%d:%d], v[%d:%d]' % (228+k, 229+k, 248+k, 249+k, 24, 25))
    e('v_pk_fma_f32 v[%d:%d], v[%d:%d], v[%d:%d], v[%d:%d]' % (224+k, 225+k, 224+k, 225+k, 228+k, 229+k, 244+k, 245+k))
e('v_cvt_pk_bf16_f32 v26, v224, v225'); e('v_cvt_pk_bf16_f32 v27, v226, v227')
e('v_perm_b32 v28, v26, v26, %s' % SEL_LO); e('v_perm_b32 v29, v26, v26, %s' % SEL_HI)
e('v_perm_b32 v30, v27, v27, %s' % SEL_LO); e('v_perm_b32 v31, v27, v27, %s' % SEL_HI)
e('ds_write_b128 v21, v[28:31]')
exec_restore(lm)
e('v_lshrrev_b32 v20, 3, v2'); e('v_lshl_add_u32 v22, v20, 2, v3'); e('v_mul_u32_u24 v22, 80, v22')
e('s_mul_i32 s8, s4, 640'); e('s_add_u32 s8, s8, %d' % XX); e('v_add_u32 v21, s8, v22')
e('v_lshrrev_b32 v22, 1, v3'); e('v_cmp_eq_u32 s[12:13], v20, v22')
e('s_lshl_b32 s8, s4, 1'); e('v_add_u32 v20, s8, v20'); e('v_lshlrev_b32 v20, 8, v20')
e('v_and_b32 v22, 7, v2'); e('v_lshlrev_b32 v22, 5, v22'); e('v_and_b32 v23, 1, v3'); e('v_lshlrev_b32 v23, 4, v23')
e('v_add3_u32 v20, v20, v22, v23'); e('v_add_u32 v20, %d, v20' % RED)
barrier()
for i in range(0, 20, 4): e('ds_read_b128 v[%d:%d], v21 offset:%d' % (XR+i, XR+i+3, 4*i))
e('s_waitcnt vmcnt(0) lgkmcnt(3)')
gemv(20, WR, XR, wait=lambda i: e('s_waitcnt lgkmcnt(%d)' % max(0, 3-(i+2)//4)) if (i % 4 == 2 and i < 16) else None)
e('s_mov_b64 s[14:15], exec'); e('s_mov_b64 exec, s[12:13]')
e('ds_write_b128 v20, v[%d:%d]' % (ACC, ACC+3))
e('s_mov_b64 exec, s[14:15]')
XX3 = SCR + 3584
e('v_lshlrev_b32 v20, 2, v0'); e('v_add_u32 v21, %d, v20' % RED); e('v_add_u32 v20, %d, v20' % XX3)
barrier()
l = lab(); exec_lt(64, l)
for s_ in range(8): e('ds_read_b32 v%d, v21 offset:%d' % (XR+s_, 256*s_))
e('s_waitcnt lgkmcnt(0)')
e('v_pk_add_f32 v[%d:%d], v[%d:%d], v[%d:%d]' % (XR, XR+1, XR, XR+1, XR+4, XR+5)); e('v_pk_add_f32 v[%d:%d], v[%d:%d], v[%d:%d]' % (XR+2, XR+3, XR+2, XR+3, XR+6, XR+7))
e('v_pk_add_f32 v[%d:%d], v[%d:%d], v[%d:%d]' % (XR, XR+1, XR, XR+1, XR+2, XR+3)); e('v_add_f32 v22, v%d, v%d' % (XR, XR+1))
e('v_max_f32 v22, 0, v22'); e('v_cvt_pk_bf16_f32 v22, v22, v22')
e('ds_write_b32 v20, v22')
exec_restore(l)
barrier()
stamp(11)
e('v_lshlrev_b32 v20, 4, v3'); e('s_lshl_b32 s8, s4, 6'); e('s_add_u32 s8, s8, %d' % XX3); e('v_add_u32 v20, s8, v20')
e('ds_read_b128 v[%d:%d], v20' % (XR, XR+3))
e('s_waitcnt lgkmcnt(0)')
AF = 208
for i in range(4):
    for d in range(4): e('v_and_b32 v%d, v%d, v%d' % (AF+4*i+d, XR+i, MK[d]))
nop(2)
AC2 = 224
for i in range(4):
    for cg in range(5):
        r = 112 + 4*(5*i+cg); a = AC2+4*cg
        e('v_mfma_f32_16x16x32_bf16 v[%d:%d], v[%d:%d], v[%d:%d], %s' % (a, a+3, AF+4*i, AF+4*i+3, r, r+3, '0' if i == 0 else 'v[%d:%d]' % (a, a+3)))
nop(8)
e('v_and_b32 v22, 1, v3'); e('v_lshlrev_b32 v22, 4, v22'); e('v_lshl_add_u32 v22, v2, 5, v22')
e('s_mul_i32 s8, s4, 2560'); e('s_add_u32 s8, s8, %d' % RED); e('v_add_u32 v20, s8, v22')
e('v_cmp_gt_u32 vcc, 2, v3'); e('s_and_saveexec_b64 s[14:15], vcc')
for cg in range(5): e('ds_write_b128 v20, v[%d:%d] offset:%d' % (AC2+4*cg, AC2+4*cg+3, 512*cg))
e('s_mov_b64 exec, s[14:15]')
barrier()
l = lab(); exec_lt(160, l)
e('v_lshlrev_b32 v21, 4, v0'); e('v_add_u32 v20, %d, v21' % RED)
for s in range(4): e('ds_read_b128 v[%d:%d], v20 offset:%d' % (XR+4*s, XR+4*s+3, 2560*s))
e('s_waitcnt lgkmcnt(0)')
for s in range(1, 4):
    for k in range(4): e('v_add_f32 v%d, v%d, v%d' % (XR+k, XR+k, XR+4*s+k))
e('v_mov_b32 v208, v192'); e('v_mov_b32 v209, %s' % sN); e('v_mov_b32 v210, v193'); e('v_mov_b32 v211, %s' % sN)
e('v_mov_b32 v212, v194'); e('v_mov_b32 v213, %s' % sN); e('v_mov_b32 v214, v195'); e('v_mov_b32 v215, %s' % sN)
e('v_lshlrev_b32 v20, 5, v0'); e('s_lshl_b32 s8, s5, 13'); e('s_add_u32 s8, s8, %d' % WS_MLP)
e('buffer_store_dwordx4 v[208:211], v20, %s, s8 offen sc1' % WS); e('buffer_store_dwordx4 v[212:215], v20, %s, s8 offen offset:16 sc1' % WS)
exec_restore(l)
stamp(12)
e('s_cmp_ge_u32 s5, 20'); e('s_cbranch_scc1 L_FIN')
e('v_and_b32 v20, 31, v0'); e('v_lshrrev_b32 v21, 5, v0')
e('v_lshlrev_b32 v22, 13, v21'); e('v_lshl_add_u32 v22, v20, 3, v22')
e('s_lshl_b32 s8, s5, 8'); e('s_add_u32 s8, s8, %d' % WS_MLP)
e('v_cmp_gt_u32 vcc, 3, v21'); e('v_add_u32 v23, %d, v22' % (24*8192)); nop(1); e('v_cndmask_b32 v23, v22, v23, vcc')
e('s_add_u32 s9, s8, %d' % (8*8192)); e('s_add_u32 s10, s8, %d' % (16*8192))
e('s_mov_b64 s[12:13], vcc')
st = lambda k: 216 + 8*k
pollp(3, lambda k: ['buffer_load_dwordx2 v[%d:%d], v%d, %s, %s offen sc1' % (st(k)+2*j, st(k)+2*j+1, a_, WS, so) for j, (a_, so) in enumerate([(22, 's8'), (22, 's9'), (22, 's10'), (23, 's8')])],
      lambda k: [st(k)+1+2*j for j in range(4)], lambda k: [st(k)+2*j for j in range(4)] if k < 3 else [192, 194, 196, 198], sleep=int(ARG('fsl',0)))
stamp(13)
e('v_cndmask_b32 v198, 0, v198, s[12:13]')
e('v_add_f32 v192, v192, v194'); e('v_add_f32 v196, v196, v198'); e('v_add_f32 v192, v192, v196')
FR = SCR + 24576
e('v_lshlrev_b32 v22, 2, v0'); e('v_add_u32 v22, %d, v22' % FR); e('ds_write_b32 v22, v192')
barrier()
l = lab(); exec_lt(16, l)
e('v_lshlrev_b32 v20, 3, v0'); e('v_add_u32 v22, %d, v20' % FR)
for p in range(8): e('ds_read_b64 v[%d:%d], v22 offset:%d' % (192+2*p, 193+2*p, 128*p))
e('s_lshl_b32 s8, s5, 7'); e('s_add_u32 s8, s8, %d' % X1L); e('v_add_u32 v23, s8, v20')
e('ds_read_b64 v[208:209], v23'); e('ds_read_b64 v[210:211], v23 offset:4096')
e('s_waitcnt lgkmcnt(0)')
for p in range(1, 8): e('v_add_f32 v192, v192, v%d' % (192+2*p)); e('v_add_f32 v193, v193, v%d' % (193+2*p))
e('v_fma_f32 v192, v210, v192, v208'); e('v_fma_f32 v193, v211, v193, v209')
e('v_cvt_pk_bf16_f32 v192, v192, v193')
srd(SA, 38, 1280)
e('v_lshlrev_b32 v20, 2, v0'); e('s_lshl_b32 s8, s5, 6')
e('buffer_store_dword v192, v20, %s, s8 offen' % SA)
exec_restore(l)
e('s_cmp_lg_u32 s3, 40'); e('s_cbranch_scc1 L_FIN')
l = lab(); exec_lt(1, l)
e('v_mov_b32 v20, 0'); e('v_mov_b32 v22, s97'); e('buffer_store_dword v22, v20, %s, 0 offen sc1' % WS)
exec_restore(l)
e('L_FIN:')
if STAMPS and '--dbg' in sys.argv:
    stamp(14)
    e('s_load_dwordx2 s[8:9], s[0:1], 96')
    e('s_waitcnt lgkmcnt(0)')
    e('s_mov_b32 s10, 256'); e('s_mov_b32 s11, 0x20000')
    e('s_cmp_lg_u32 s3, 40'); e('s_cbranch_scc1 L_END')
    l = lab(); exec_lt(1, l)
    for k in range(15):
        e('v_mov_b32 v24, s%d' % (60+2*k)); e('v_mov_b32 v20, %d' % (4*k)); e('buffer_store_dword v24, v20, s[8:11], 0 offen'); nop(2)
    exec_restore(l)
elif STAMPS:
    stamp(14)
    e('s_waitcnt lgkmcnt(0)')
    l = lab(); exec_lt(1, l)
    e('s_lshl_b32 s8, s3, 6'); e('s_add_u32 s8, s8, %d' % WS_STAMP); e('v_mov_b32 v20, 0')
    for k in range(0, 16, 4):
        for j in range(4): e('v_mov_b32 v%d, s%d' % (24+j, 60+2*(k+j)))
        e('buffer_store_dwordx4 v[24:27], v20, %s, s8 offen offset:%d' % (WS, 4*k)); nop(2)
    exec_restore(l)
e('L_END:')
e('s_endpgm')
L.append('.section .rodata,"a"')
L.append('.p2align 6')
L.append('.amdhsa_kernel %s_kernel' % NAME)
for k, v in [('next_free_vgpr', 512), ('next_free_sgpr', 102), ('accum_offset', 256), ('group_segment_fixed_size', 0), ('kernarg_size', 112),
             ('user_sgpr_count', 2), ('user_sgpr_kernarg_segment_ptr', 1), ('system_sgpr_workgroup_id_x', 1)]:
    L.append('  .amdhsa_%s %d' % (k, v))
L.append('.end_amdhsa_kernel')
txt = '\n'.join(L) + '\n'
import subprocess, re
tmp = txt.replace('NSLICE', '0')
open('_sz.s', 'w').write(tmp)
subprocess.run(['clang', '-x', 'assembler', '-target', 'amdgcn-amd-amdhsa', '-mcpu=gfx950', '-c', '_sz.s', '-o', '_sz.o'], check=True)
dis = subprocess.run(['llvm-objdump', '-d', '--mcpu=gfx950', '_sz.o'], capture_output=True, text=True).stdout
end = int(re.findall(r's_endpgm\s+// ([0-9A-F]+):', dis)[-1], 16)
m = re.findall(r's_getpc_b64.*// ([0-9A-F]+):', dis)
pc = int(m[0], 16) + 4 if m else 0
nsl = (end - pc) // 1024 - 1
print('code bytes', end, 'slices', nsl)
txt = txt.replace('NSLICE', str(nsl))
open(OUT, 'w').write(txt)
print('wrote', OUT, len(L), 'lines')
```

```python
import sys
def ARG(k,d):
    for a in sys.argv[1:]:
        if a.startswith('--%s='%k): return a.split('=')[1]
    return d
NAME = "adaLN_cond__compressed_kv_cla__dense_activation_relu__decode"
STAMPS = '--stamps' in sys.argv
OUT = [a for a in sys.argv[1:] if not a.startswith('--')]
OUT = OUT[0] if OUT else 'cdna_kernels/%s.s' % NAME

L = []
def e(s=''):
    for ln in s.split('\n'):
        L.append('    ' + ln.strip() if ln.strip() and not ln.strip().endswith(':') else ln.strip())
_lab = [0]
def lab(p='L'):
    _lab[0] += 1
    return '%s_%d' % (p, _lab[0])
def nop(n):
    while n > 0:
        k = min(n, 16); e('s_nop %d' % (k-1)); n -= k

WS_GEN=0; WS_MOD=0x1000; MOD_KH=0x4000; WS_Q=0x10000; WS_QAF=0x20000; WS_QA=0x28000
WS_STATS=0x900000; WS_CTX=0x60000; WS_X1P=0x70000; WS_MLP=0x80000; WS_STAMP=0xC0000; WS_PART=0x100000
WS_SIZE=0x980000
SCR=131072
XX=SCR; RED=SCR+4096
QSCALE = (128**-0.5)*1.4426950408889634
import struct
def f2u(f): return struct.unpack('<I', struct.pack('<f', f))[0]

sID='s3'; sW='s4'; sN='s42'; WS='s[44:47]'; SA='s[48:51]'; SB='s[52:55]'
SEL_LO='s56'; SEL_HI='s57'
vT='v0'; vL='v1'; vN='v2'; vG='v3'
MK=[4,5,6,7]; AB=[8,12]; ACC=16
WR=32; XR=192

nst=[0]
LATE = '--late' in sys.argv
ATT = '--att' in sys.argv
EARLY = '--early' in sys.argv
def estamp(k, wait=None):
    if STAMPS and EARLY:
        if wait is not None: e('s_waitcnt vmcnt(%d)' % wait)
        e('s_memrealtime s[%d:%d]' % (60+2*k, 61+2*k))
def stamp(k):
    if EARLY and 5 <= k <= 8: return
    if STAMPS and not ((LATE or ATT) and 1 <= k <= 8): e('s_memrealtime s[%d:%d]' % (60+2*k, 61+2*k))
def lstamp(k):
    if STAMPS and LATE: e('s_memrealtime s[%d:%d]' % (60+2*k, 61+2*k))
def astamp(k):
    if STAMPS and ATT: e('s_memrealtime s[%d:%d]' % (60+2*k, 61+2*k))

def srd(q, plo, size, add=None):
    b = int(q[2:q.index(':')])
    if add is None:
        e('s_mov_b32 s%d, s%d' % (b, plo)); e('s_mov_b32 s%d, s%d' % (b+1, plo+1))
    else:
        e('s_add_u32 s%d, s%d, %s' % (b, plo, add)); e('s_addc_u32 s%d, s%d, 0' % (b+1, plo+1))
    e('s_mov_b32 s%d, %d' % (b+2, size)); e('s_mov_b32 s%d, 0x20000' % (b+3))

QW = list(range(0, 96, 4)) + list(range(160, 192, 4)) + list(range(192, 224, 4))
def aq(i): return 'a[%d:%d]' % (QW[i], QW[i]+3)
def gemv(n, wbase, xbase, acc=ACC, wait=None):
    def ands(i):
        a = AB[i & 1]
        for d in range(4): e('v_and_b32 v%d, v%d, v%d' % (a+d, xbase+i, MK[d]))
    ands(0)
    for i in range(n):
        if i+1 < n: ands(i+1)
        else: nop(2)
        if wait: wait(i)
        a = AB[i & 1]
        c = '0' if i == 0 else 'v[%d:%d]' % (acc, acc+3)
        b_ = aq(i) if wbase == 'A' else 'v[%d:%d]' % (wbase+4*i, wbase+4*i+3)
        e('v_mfma_f32_16x16x32_bf16 v[%d:%d], v[%d:%d], %s, %s' % (acc, acc+3, a, a+3, b_, c))
    nop(8)

def wave_reduce(v, op='add', tmp=None):
    ins = 'v_add_f32_dpp' if op == 'add' else 'v_max_f32_dpp'
    for sh in (1,2,4,8):
        nop(2)
        if op == 'add': e('%s v%d, v%d, v%d row_shr:%d row_mask:0xf bank_mask:0xf bound_ctrl:0' % (ins, v, v, v, sh))
        else: e('%s v%d, v%d, v%d row_shr:%d row_mask:0xf bank_mask:0xf' % (ins, v, v, v, sh))
    nop(2); e('%s v%d, v%d, v%d row_bcast:15 row_mask:0xa bank_mask:0xf' % (ins, v, v, v))
    nop(2); e('%s v%d, v%d, v%d row_bcast:31 row_mask:0xc bank_mask:0xf' % (ins, v, v, v))
    nop(1)

def tagchk(tags):
    e('v_sad_u32 v30, v%d, %s, 0' % (tags[0], sN))
    for t in tags[1:]: e('v_sad_u32 v30, v%d, %s, v30' % (t, sN))
    e('v_cmp_ne_u32 vcc, 0, v30')
def poll(loads, tags, sleep=1, pre=None):
    l0 = lab('P'); l1 = lab('PD')
    e(l0 + ':')
    for s_ in loads: e(s_)
    e('s_waitcnt vmcnt(0)')
    tagchk(tags)
    e('s_cbranch_vccz %s' % l1)
    e('s_sub_u32 s59, s59, 1')
    e('s_cbranch_scc1 L_END')
    if sleep: e('s_sleep %d' % sleep)
    e('s_branch %s' % l0)
    e(l1 + ':')
def pollp(K, loads, tags, regs, sleep=0):
    P = sum(1 for x in loads(0) if x.startswith('buffer_'))
    l0 = lab('P'); ld = lab('PD'); dn = [lab('PK') for _ in range(K)]
    for k in range(K):
        for s_ in loads(k): e(s_)
    e(l0 + ':')
    for k in range(K):
        e('s_waitcnt vmcnt(%d)' % ((K-1)*P))
        tagchk(tags(k))
        e('s_cbranch_vccz %s' % dn[k])
        if k == 0:
            e('s_sub_u32 s59, s59, 1'); e('s_cbranch_scc1 L_END')
        if sleep: e('s_sleep %d' % sleep)
        for s_ in loads(k): e(s_)
    e('s_branch %s' % l0)
    for k in range(K-1, 0, -1):
        e(dn[k] + ':')
        e('s_waitcnt vmcnt(%d)' % ((K-1-k)*P if False else 0)) if False else None
        for d_, s_ in zip(regs(K), regs(k)): e('v_mov_b32 v%d, v%d' % (d_, s_))
        e('s_branch %s' % ld)
    e(dn[0] + ':')
    for d_, s_ in zip(regs(K), regs(0)): e('v_mov_b32 v%d, v%d' % (d_, s_))
    e(ld + ':')

def exec_lt(n, lbl):
    e('v_cmp_gt_u32 vcc, %d, %s' % (n, vT)); e('s_and_saveexec_b64 s[14:15], vcc'); e('s_cbranch_execz %s' % lbl)
def exec_restore(lbl):
    e(lbl + ':'); e('s_mov_b64 exec, s[14:15]')

def unpack(lo, hi, src):
    e('v_lshlrev_b32 v%d, 16, v%d' % (lo, src)); e('v_and_b32 v%d, 0xffff0000, v%d' % (hi, src))

def barrier(lds=True):
    if lds: e('s_waitcnt lgkmcnt(0)')
    e('s_barrier')

def hash_nonce():
    e('s_waitcnt lgkmcnt(0)')
    e('s_mul_i32 s8, %s, 0x9e3779b1' % sN); e('s_add_u32 s97, s8, 0x7f4a7c15')
    e('s_and_b32 %s, s97, 0xbfffbfff' % sN)

TAILR = int(ARG('tail', 6))
def swz(k): return ((k & 3) << 2) | ((k >> 2) & 3)
S0C_A = int(ARG('s0a', 8))
S1_A, S2_A = int(ARG('s1a',0)), int(ARG('s2a',24))
def dma_setup():
    e('s_lshl_b32 s8, s3, 17')
    srd('s[92:95]', 18, 131072, add='s8')
    e('v_lshlrev_b32 v19, 4, v1')
    e('s_lshl_b32 s96, s4, 15')
W0ROWS = 99
def dma_rows(r0, r1):
    e('v_lshlrev_b32 v31, 4, v1')
    lskip = lab('DS')
    for r in range(r0, r1):
        if r1 == 32 and r == W0ROWS:
            e('s_cmp_eq_u32 s4, 0'); e('s_cbranch_scc1 %s' % lskip)
        e('s_mov_b32 m0, s96')
        e('v_xor_b32 v30, %d, v31' % (swz(r) << 4))
        e('buffer_load_dwordx4 v30, s[92:95], s96 offen nt lds')
        e('s_add_u32 s96, s96, 1024')
    if False:
        e('s_lshl_b32 s96, s4, 12'); e('s_add_u32 s96, s96, %d' % (16*1024)); e('s_lshl_b32 s8, s4, 4'); e('v_xor_b32 v31, s8, v31')
        for i in range(4):
            e('s_mov_b32 m0, s96')
            e('v_xor_b32 v30, %d, v31' % (i << 6))
            e('buffer_load_dwordx4 v30, s[92:95], s96 offen nt lds')
            e('s_add_u32 s96, s96, 1024')
        e(lskip + ':')

NEARLY = int(ARG('ne', 0))
def late_weights(lo, hi, sfx):
    D_, N_, M_ = 'L_LW_D'+sfx, 'L_LW_S0N'+sfx, 'L_LW_MLP'+sfx
    e('s_cmp_ge_u32 s3, 107'); e('s_cbranch_scc1 %s' % D_)
    e('s_cmp_ge_u32 s3, 67'); e('s_cbranch_scc1 %s' % N_)
    e('s_cmp_ge_u32 s3, 40'); e('s_cbranch_scc1 %s' % M_)
    e('s_mul_i32 s5, s3, 52'); e('s_lshr_b32 s5, s5, 8'); e('s_mul_i32 s6, s5, 5'); e('s_sub_u32 s6, s3, s6')
    srd(SA, 26, 4096*1280)
    e('s_lshl_b32 s8, s5, 9'); e('s_lshl_b32 s9, s4, 7'); e('s_add_u32 s8, s8, s9'); e('v_lshl_add_u32 v20, v3, 5, s8')
    e('s_movk_i32 s10, 1280'); e('v_mul_lo_u32 v20, v20, s10'); e('s_lshl_b32 s9, s6, 8'); e('v_lshlrev_b32 v22, 4, v2'); e('v_add3_u32 v20, v20, v22, s9')
    for i in range(lo, min(hi, 32)):
        e('s_mov_b32 s12, %d' % (i*1280)); e('buffer_load_dwordx4 %s, v20, %s, s12 offen nt' % (aq(i), SA))
    e('s_branch %s' % D_)
    e(M_ + ':')
    e('s_sub_u32 s5, s3, 40')
    if lo < 20:
        srd(SA, 30, 640*3456)
        e('v_lshrrev_b32 v20, 3, v2'); e('v_lshl_add_u32 v20, v20, 2, v3'); e('v_mul_u32_u24 v20, 20, v20')
        e('s_mul_i32 s8, s4, 160'); e('v_add_u32 v20, s8, v20')
        e('s_movk_i32 s10, 3456'); e('v_mul_lo_u32 v20, v20, s10'); e('v_and_b32 v22, 7, v2'); e('v_lshlrev_b32 v22, 4, v22')
        e('s_lshl_b32 s9, s5, 7'); e('v_add3_u32 v20, v20, v22, s9')
        for i in range(lo, min(hi, 20)):
            e('s_mov_b32 s12, %d' % (i*3456)); e('buffer_load_dwordx4 %s, v20, %s, s12 offen nt' % (aq(i), SA))
    if hi > 20:
        srd(SA, 32, 1728*1280)
        e('s_lshl_b32 s8, s5, 6'); e('s_lshl_b32 s9, s4, 4'); e('s_add_u32 s8, s8, s9'); e('v_lshl_add_u32 v20, v3, 2, s8')
        e('s_movk_i32 s10, 1280'); e('v_mul_lo_u32 v20, v20, s10'); e('v_lshl_add_u32 v20, v2, 4, v20')
        for i in range(max(lo, 20), hi):
            e('s_mov_b32 s12, %d' % ((i-20)*256)); e('buffer_load_dwordx4 %s, v20, %s, s12 offen nt' % (aq(i), SA))
    e('s_branch %s' % D_)
    e(N_ + ':')
    if lo < 20:
        e('s_sub_u32 s6, s3, 47')
        srd(SA, 36, 640*7680)
        e('v_lshrrev_b32 v20, 3, v2'); e('v_lshl_add_u32 v20, v20, 2, v3'); e('v_mul_u32_u24 v20, 20, v20')
        e('s_mul_i32 s8, s4, 160'); e('v_add_u32 v20, s8, v20')
        e('s_movk_i32 s10, 7680'); e('v_mul_lo_u32 v20, v20, s10'); e('v_and_b32 v22, 7, v2'); e('v_lshlrev_b32 v22, 4, v22')
        e('s_lshl_b32 s11, s6, 7'); e('v_add3_u32 v20, v20, v22, s11')
        for i in range(lo, min(hi, 20)):
            e('s_mov_b32 s12, %d' % (i*7680)); e('buffer_load_dwordx4 %s, v20, %s, s12 offen nt' % (aq(i), SA))
    e(D_ + ':')

HDR = """; Fused adaLN + compressed-KV attention (absorbed form) + ReLU MLP decode step. One persistent launch, 256 workgroups (one per CU).
; All spin loops are bounded. Workgroups with id >= 256 exit at once."""
for ln in HDR.split('\n'): L.append(ln)
L.append('; @launch grid=(256,1,1) block=(256,1,1) lds=163840')
L.append('.amdgcn_target "amdgcn-amd-amdhsa--gfx950"')
L.append('.text')
L.append('.globl %s_kernel' % NAME)
L.append('.p2align 8')
L.append('.type %s_kernel,@function' % NAME)
L.append('%s_kernel:' % NAME)
e('s_cmp_ge_u32 s2, 256')
e('s_cbranch_scc1 L_END')
stamp(0)
if '--dbg' in sys.argv:
    for k in range(1, 16): e('s_mov_b32 s%d, 0' % (60+2*k))
e('s_load_dwordx16 s[16:31], s[0:1], 0')
e('s_load_dwordx8 s[32:39], s[0:1], 64')
e('s_load_dwordx2 s[40:41], s[0:1], 104')
e('s_sub_u32 s3, s2, 40'); e('s_add_u32 s5, s2, 88'); e('s_cmp_lt_u32 s2, 40'); e('s_cselect_b32 s3, s5, s3')
e('s_cmp_ge_u32 s2, 128'); e('s_cselect_b32 s3, s2, s3')
e('v_and_b32 v1, 63, v0')
e('v_and_b32 v2, 15, v0')
e('v_bfe_u32 v3, v0, 4, 2')
e('v_lshrrev_b32 v20, 6, v0')
e('s_mov_b32 s56, 0x01000100')
e('s_mov_b32 s57, 0x03020302')
e('s_mov_b32 s59, 0x10000')
e('v_readfirstlane_b32 s4, v20')
def masks():
    e('v_and_b32 v20, 1, v0'); e('v_lshlrev_b32 v20, 4, v20'); e('v_mov_b32 v21, 0xffff'); e('v_lshlrev_b32 v21, v20, v21')
    e('v_bfe_u32 v22, v0, 1, 2')
    for d in range(4):
        e('v_cmp_eq_u32 vcc, %d, v22' % d); nop(2); e('v_cndmask_b32 v%d, 0, v21, vcc' % MK[d])
e('v_lshrrev_b32 v24, 3, v2'); e('v_lshl_add_u32 v24, v24, 2, v3'); e('v_mul_u32_u24 v24, 10, v24')
e('s_mul_i32 s8, s4, 80'); e('v_add_u32 v24, s8, v24')
if ARG('pf','0') == '1':
    e('s_getpc_b64 s[10:11]')
    e('L_PC:')
    e('s_lshr_b32 s5, s2, 3'); e('s_mul_i32 s6, s4, 8'); e('s_add_u32 s5, s5, s6'); e('s_and_b32 s5, s5, 31')
    e('s_min_u32 s5, s5, NSLICE'); e('s_lshl_b32 s5, s5, 10')
    e('v_lshlrev_b32 v20, 4, v1'); e('v_add_u32 v20, s5, v20')
    e('global_load_dwordx4 v[248:251], v20, s[10:11]')
e('s_waitcnt lgkmcnt(0)')
e('s_load_dword s42, s[40:41], 0')
srd(WS, 40, WS_SIZE)
e('s_cmp_lt_u32 s3, 64'); e('s_cbranch_scc1 L_S1')
e('s_cmp_lt_u32 s3, 88'); e('s_cbranch_scc1 L_NOS0')
e('s_cmp_ge_u32 s3, 128'); e('s_cbranch_scc1 L_S2ONLY')

UK = 72
def s2_issue():
    e('s_sub_u32 s8, s3, 128'); e('s_lshr_b32 s8, s8, 2'); e('s_and_b32 s9, s3, 3')
    srd(SB, 22, 512*8192)
    e('s_lshl_b32 s9, s9, 7'); e('s_lshl_b32 s10, s4, 5'); e('s_add_u32 s9, s9, s10')
    e('v_add_u32 v20, s9, v2'); e('v_lshlrev_b32 v20, 13, v20'); e('v_lshlrev_b32 v21, 4, v3')
    e('s_lshl_b32 s10, s8, 8'); e('v_add3_u32 v20, v20, v21, s10')
    for tt in range(2):
        e('s_mov_b32 s12, %d' % (tt*16*8192))
        for ks in range(4):
            r = UK + 16*tt + 4*ks
            e('buffer_load_dwordx4 v[%d:%d], v20, %s, s12 offen offset:%d nt' % (r, r+3, SB, ks*64))
def s0_issue():
    e('s_lshr_b32 s6, s5, 1'); e('s_and_b32 s7, s5, 1')
    srd(SA, 36, 640*7680); srd(SB, 34, 1280)
    e('s_mul_i32 s9, s7, 320'); e('v_add_u32 v20, s9, v24')
    e('s_movk_i32 s10, 7680'); e('v_mul_lo_u32 v20, v20, s10')
    e('v_and_b32 v21, 7, v2'); e('v_lshlrev_b32 v21, 4, v21')
    e('s_lshl_b32 s11, s6, 7'); e('v_add3_u32 v20, v20, v21, s11')
    e('v_lshlrev_b32 v21, 2, v0'); e('s_mul_i32 s12, s7, 640')
    e('buffer_load_dword v25, v21, %s, s12 offen' % SB)
    for i in range(10):
        e('s_mov_b32 s12, %d' % (i*7680)); e('buffer_load_dwordx4 v[%d:%d], v20, %s, s12 offen nt' % (WR+4*i, WR+4*i+3, SA))
def gemv_w8_tail(nx, vm=0, rowreg=24, wb=WR):
    e('v_lshlrev_b32 v21, 2, v%d' % rowreg); e('v_add_u32 v21, %d, v21' % XX)
    for i in range(0, nx, 2): e('ds_read_b64 v[%d:%d], v21 offset:%d' % (XR+i, XR+i+1, 4*i))
    e('v_lshrrev_b32 v20, 3, v2'); e('v_lshrrev_b32 v21, 1, v3'); e('v_cmp_eq_u32 s[12:13], v20, v21')
    e('s_lshl_b32 s8, s4, 1'); e('v_add_u32 v20, s8, v20'); e('v_lshlrev_b32 v20, 8, v20')
    e('v_and_b32 v21, 7, v2'); e('v_lshlrev_b32 v21, 5, v21'); e('v_and_b32 v22, 1, v3'); e('v_lshlrev_b32 v22, 4, v22')
    e('v_add3_u32 v20, v20, v21, v22'); e('v_add_u32 v20, %d, v20' % RED)
    e('s_waitcnt vmcnt(%d) lgkmcnt(0)' % vm)
    gemv(nx, wb, XR)
    e('s_mov_b64 s[14:15], exec'); e('s_mov_b64 exec, s[12:13]')
    e('ds_write_b128 v20, v[%d:%d]' % (ACC, ACC+3))
    e('s_mov_b64 exec, s[14:15]')
    barrier()
def s0_finish(vm):
    e('s_waitcnt vmcnt(%d)' % (10+vm))
    unpack(26, 27, 25)
    for r in (26, 27):
        e('v_mul_f32 v28, 0xbfb8aa3b, v%d' % r); e('v_exp_f32 v28, v28'); nop(1)
        e('v_add_f32 v28, 1.0, v28'); e('v_rcp_f32 v28, v28'); nop(1); e('v_mul_f32 v%d, v%d, v28' % (r, r))
    e('v_cvt_pk_bf16_f32 v26, v26, v27')
    e('v_perm_b32 v28, v26, v26, %s' % SEL_LO); e('v_perm_b32 v29, v26, v26, %s' % SEL_HI)
    e('v_lshlrev_b32 v21, 3, v0'); e('v_add_u32 v21, %d, v21' % XX)
    l = lab(); exec_lt(160, l); e('ds_write_b64 v21, v[28:29]'); exec_restore(l)
    barrier()
    gemv_w8_tail(10, vm)
    l = lab(); exec_lt(32, l)
    e('v_lshlrev_b32 v20, 3, v0'); e('v_add_u32 v21, %d, v20' % RED)
    for s_ in range(8): e('ds_read_b64 v[%d:%d], v21 offset:%d' % (XR+2*s_, XR+2*s_+1, 256*s_))
    e('s_lshl_b32 s8, s7, 14'); e('s_lshl_b32 s9, s6, 8'); e('s_add_u32 s8, s8, s9'); e('s_add_u32 s8, s8, %d' % WS_MOD)
    e('v_mov_b32 v23, %s' % sN)
    e('s_waitcnt lgkmcnt(0)')
    for s_ in (4, 2, 1):
        for k in range(s_): e('v_pk_add_f32 v[%d:%d], v[%d:%d], v[%d:%d]' % (XR+2*k, XR+2*k+1, XR+2*k, XR+2*k+1, XR+2*(k+s_), XR+2*(k+s_)+1))
    e('v_cvt_pk_bf16_f32 v22, v%d, v%d' % (XR, XR+1))
    e('buffer_store_dwordx2 v[22:23], v20, %s, s8 offen sc1' % WS)
    exec_restore(l)

def s2_finish(arows):
    e('s_sub_u32 s5, s3, 128'); e('s_lshr_b32 s5, s5, 2'); e('s_and_b32 s6, s3, 3')
    l = lab(); exec_lt(128, l)
    e('v_lshlrev_b32 v20, 3, v0'); e('s_lshl_b32 s8, s5, 10'); e('s_add_u32 s8, s8, %d' % WS_Q)
    st = lambda k: 140 + 2*k
    pollp(3, lambda k: ['buffer_load_dwordx2 v[%d:%d], v20, %s, s8 offen sc1' % (st(k), st(k)+1, WS)],
          lambda k: [st(k)+1], lambda k: [st(k)] if k < 3 else [136], sleep=1)
    e('v_cvt_pk_bf16_f32 v136, v136, v136')
    e('v_lshlrev_b32 v21, 1, v0'); e('v_add_u32 v21, %d, v21' % XX); e('ds_write_b16 v21, v136')
    exec_restore(l)
    stamp(2)
    barrier()
    e('v_lshlrev_b32 v21, 4, v3'); e('v_add_u32 v21, %d, v21' % XX)
    for ks in range(4): e('ds_read_b128 v[%d:%d], v21 offset:%d' % (XR+4*ks, XR+4*ks+3, 64*ks))
    e('s_lshl_b32 s8, s6, 3'); e('s_lshl_b32 s9, s4, 1'); e('s_add_u32 s8, s8, s9'); e('s_lshl_b32 s8, s8, 10')
    e('s_lshl_b32 s9, s5, 4'); e('s_add_u32 s8, s8, s9'); e('s_add_u32 s8, s8, %d' % WS_QA)
    e('v_lshlrev_b32 v20, 10, v2'); e('v_lshrrev_b32 v21, 1, v3'); e('v_lshlrev_b32 v21, 9, v21'); e('v_and_b32 v24, 1, v3'); e('v_lshlrev_b32 v24, 3, v24')
    e('v_add3_u32 v20, v20, v21, v24')
    e('v_cmp_eq_u32 s[10:11], 1, v2')
    e('s_mov_b32 s9, %s' % hex(f2u(QSCALE)))
    e('s_waitcnt vmcnt(%d) lgkmcnt(0)' % arows)
    for ks in range(4):
        for tt in range(2):
            r = UK + 16*tt + 4*ks; a = 208 + 4*tt
            e('v_mfma_f32_16x16x32_bf16 v[%d:%d], v[%d:%d], v[%d:%d], %s' % (a, a+3, r, r+3, XR+4*ks, XR+4*ks+3, '0' if ks == 0 else 'v[%d:%d]' % (a, a+3)))
    nop(8)
    for tt, m in ((1, 's[10:11]'),):
        for r in range(4): e('v_cndmask_b32 v%d, v%d, v%d, %s' % (208+r, 208+r, 208+4*tt+r, m))
    for r in range(4): e('v_mul_f32 v%d, s9, v%d' % (208+r, 208+r))
    e('v_cvt_pk_bf16_f32 v22, v208, v209'); e('v_cvt_pk_bf16_f32 v23, v210, v211')
    e('v_cmp_gt_u32 vcc, 2, v2'); e('s_and_saveexec_b64 s[14:15], vcc')
    e('buffer_store_dwordx2 v[22:23], v20, %s, s8 offen sc1' % WS)
    e('s_mov_b64 exec, s[14:15]')
    estamp(6)
    e('s_waitcnt vmcnt(0)'); e('s_barrier')
    l = lab(); exec_lt(8, l)
    e('v_lshlrev_b32 v20, 11, v0'); e('s_sub_u32 s8, s3, 128'); e('s_lshl_b32 s8, s8, 4'); e('s_add_u32 s8, s8, %d' % WS_QAF); e('v_mov_b32 v22, %s' % sN)
    e('buffer_store_dword v22, v20, %s, s8 offen sc1' % WS)
    exec_restore(l)
    stamp(3)
e('s_sub_u32 s5, s3, 88')
s0_issue()
masks()
hash_nonce()
s0_finish(0)
stamp(1)
dma_setup(); dma_rows(0, 32)
e('s_branch L_DMA_D')

e('L_NOS0:')
masks()
hash_nonce()
dma_setup(); dma_rows(0, 32)
e('s_branch L_DMA_D')

e('L_S1:')
e('s_lshr_b32 s5, s3, 1'); e('s_and_b32 s6, s3, 1')
srd(SA, 20, 640*8192); srd(SB, 16, 1280)
e('v_mul_u32_u24 v21, 20, v1')
e('buffer_load_dwordx4 v[124:127], v21, %s, 0 offen' % SB); e('buffer_load_dword v128, v21, %s, 0 offen offset:16' % SB)
e('v_lshlrev_b32 v21, 3, v0'); e('buffer_load_dwordx2 v[130:131], v21, %s, 0 offen' % SB)
masks()
e('v_lshrrev_b32 v24, 3, v2'); e('v_lshl_add_u32 v24, v24, 2, v3'); e('v_mul_u32_u24 v24, 20, v24')
e('s_mul_i32 s8, s4, 160'); e('v_add_u32 v24, s8, v24')
e('v_lshlrev_b32 v23, 13, v24'); e('v_and_b32 v21, 7, v2'); e('v_lshlrev_b32 v21, 4, v21')
e('s_lshl_b32 s10, s5, 8'); e('s_lshl_b32 s11, s6, 7'); e('s_add_u32 s10, s10, s11'); e('v_add3_u32 v23, v23, v21, s10')
if ARG('wq', 'early') == 'late': e('s_waitcnt vmcnt(0)')
for i in range(20):
    e('s_mov_b32 s12, %d' % (i*8192)); e('buffer_load_dwordx4 v[%d:%d], v23, %s, s12 offen nt' % (WR+4*i, WR+4*i+3, SA))
dma_setup(); dma_rows(0, S1_A)
e('s_waitcnt vmcnt(%d)' % (20+S1_A))
for k in range(5): unpack(132+2*k, 133+2*k, 124+k)
e('v_add_f32 v20, v132, v133')
for k in range(2, 10): e('v_add_f32 v20, v20, v%d' % (132+k))
wave_reduce(20); e('v_readlane_b32 s8, v20, 63'); nop(2)
e('v_mov_b32 v21, s8'); e('v_mul_f32 v21, %s, v21' % hex(f2u(1/640.)))
e('v_mov_b32 v20, 0')
for k in range(10):
    e('v_sub_f32 v22, v%d, v21' % (132+k)); e('v_fmac_f32 v20, v22, v22')
wave_reduce(20); e('v_readlane_b32 s8, v20, 63'); nop(2)
e('v_mov_b32 v22, s8'); e('v_mul_f32 v22, %s, v22' % hex(f2u(1/640.))); e('v_add_f32 v22, %s, v22' % hex(f2u(1e-5)))
e('v_rsq_f32 v22, v22'); nop(1)
unpack(132, 133, 130); unpack(134, 135, 131)
for r in range(132, 136):
    e('v_sub_f32 v%d, v%d, v21' % (r, r)); e('v_mul_f32 v%d, v%d, v22' % (r, r))
hash_nonce()
l = lab(); exec_lt(160, l)
e('v_lshlrev_b32 v20, 4, v0')
e('s_mov_b32 s8, %d' % WS_MOD); e('s_mov_b32 s9, %d' % (WS_MOD+2560)); e('s_mov_b32 s10, %d' % (WS_MOD+MOD_KH)); e('s_mov_b32 s11, %d' % (WS_MOD+MOD_KH+2560))
st = lambda k: 144 + 16*k
pollp(2, lambda k: ['buffer_load_dwordx4 v[%d:%d], v20, %s, %s offen sc1' % (st(k)+4*j, st(k)+4*j+3, WS, so) for j, so in enumerate(['s8', 's10', 's9', 's11'])],
      lambda k: [st(k)+1+2*j for j in range(8)], lambda k: [st(k)+2*j for j in range(8)] if k < 2 else list(range(176, 184)))
unpack(8, 9, 176); unpack(10, 11, 177); unpack(12, 13, 178); unpack(14, 15, 179)
e('v_pk_add_f32 v[8:9], v[8:9], v[12:13]'); e('v_pk_add_f32 v[10:11], v[10:11], v[14:15]')
unpack(12, 13, 180); unpack(14, 15, 181); unpack(16, 17, 182); unpack(18, 19, 183)
e('v_pk_add_f32 v[12:13], v[12:13], v[16:17]'); e('v_pk_add_f32 v[14:15], v[14:15], v[18:19]')
e('v_pk_fma_f32 v[8:9], v[132:133], v[12:13], v[8:9]'); e('v_pk_fma_f32 v[10:11], v[134:135], v[14:15], v[10:11]')
e('v_pk_add_f32 v[8:9], v[8:9], v[132:133]'); e('v_pk_add_f32 v[10:11], v[10:11], v[134:135]')
e('v_cvt_pk_bf16_f32 v26, v8, v9'); e('v_cvt_pk_bf16_f32 v27, v10, v11')
e('v_perm_b32 v28, v26, v26, %s' % SEL_LO); e('v_perm_b32 v29, v26, v26, %s' % SEL_HI)
e('v_perm_b32 v30, v27, v27, %s' % SEL_LO); e('v_perm_b32 v31, v27, v27, %s' % SEL_HI)
e('v_add_u32 v21, %d, v20' % XX); e('ds_write_b128 v21, v[28:31]')
exec_restore(l)
stamp(1)
barrier()
gemv_w8_tail(20, S1_A)
l = lab(); exec_lt(64, l)
e('v_lshlrev_b32 v20, 2, v0'); e('v_add_u32 v20, %d, v20' % RED)
for s_ in range(8): e('ds_read_b32 v%d, v20 offset:%d' % (XR+s_, 256*s_))
e('s_lshl_b32 s8, s5, 10'); e('s_lshl_b32 s9, s6, 9'); e('s_add_u32 s8, s8, s9'); e('s_add_u32 s8, s8, %d' % WS_Q)
e('v_mov_b32 v23, %s' % sN); e('v_lshlrev_b32 v20, 3, v0')
e('s_waitcnt lgkmcnt(0)')
e('v_pk_add_f32 v[%d:%d], v[%d:%d], v[%d:%d]' % (XR, XR+1, XR, XR+1, XR+4, XR+5)); e('v_pk_add_f32 v[%d:%d], v[%d:%d], v[%d:%d]' % (XR+2, XR+3, XR+2, XR+3, XR+6, XR+7))
e('v_pk_add_f32 v[%d:%d], v[%d:%d], v[%d:%d]' % (XR, XR+1, XR, XR+1, XR+2, XR+3)); e('v_add_f32 v22, v%d, v%d' % (XR, XR+1))
e('buffer_store_dwordx2 v[22:23], v20, %s, s8 offen sc1' % WS)
exec_restore(l)
stamp(2)
dma_rows(S1_A, 32)
e('s_branch L_DMA_D')

e('L_S2ONLY:')
masks(); hash_nonce()
s2_issue(); dma_setup()
if ARG('s2w', '1') == '1': e('s_waitcnt vmcnt(0)')
dma_rows(0, S2_A)
s2_finish(S2_A)
dma_rows(S2_A, 32)
e('s_branch L_DMA_D')

e('L_DMA_D:')
e('v_lshlrev_b32 v21, 4, v1')
stamp(4)
QA_ADDR=224; S_ACC=208; QB=232
e('v_and_b32 v20, 31, v1'); e('v_lshrrev_b32 v22, 5, v1')
e('v_and_b32 v23, 3, v20'); e('v_lshlrev_b32 v23, 2, v23'); e('v_bfe_u32 v24, v20, 2, 2'); e('v_or_b32 v23, v23, v24')
e('v_xor_b32 v23, v23, v22'); e('v_lshlrev_b32 v23, 4, v23')
e('s_lshl_b32 s8, s4, 15'); e('v_lshlrev_b32 v24, 10, v20'); e('v_add3_u32 v23, v23, v24, s8')
for jj in range(8): e('v_xor_b32 v%d, %d, v23' % (QA_ADDR+jj, jj << 5))
e('v_lshlrev_b32 v%d, 4, v1' % QB); e('v_add_u32 v%d, %d, v%d' % (QB, SCR, QB))
e('s_waitcnt vmcnt(0)')
for j in range(32):
    e('ds_read_b128 a[%d:%d], v%d offset:%d' % (4*j, 4*j+3, QA_ADDR+(j & 7), (j >> 3)*256))
    if j >= 12: e('s_waitcnt lgkmcnt(12)')
e('s_cmp_lg_u32 s4, 0'); e('s_cbranch_scc1 L_E3D')
e('s_and_b32 s8, s3, 7'); e('s_lshl_b32 s8, s8, 11'); e('s_add_u32 s8, s8, %d' % WS_QAF)
pollp(2, lambda k: ['buffer_load_dword v%d, v21, %s, s8 offen sc1' % (26+2*k, WS), 'buffer_load_dword v%d, v21, %s, s8 offen offset:1024 sc1' % (27+2*k, WS)], lambda k: [26+2*k, 27+2*k], lambda k: [], sleep=1)
e('L_E3D:')
e('s_barrier')
stamp(5)
e('s_mov_b32 s9, %d' % WS_QA)
e('buffer_load_dwordx4 a[224:227], v21, %s, s9 offen sc1' % WS)
e('s_lshl_b32 s8, s4, 13'); e('s_add_u32 s8, s8, %d' % WS_QA)
for i in range(8):
    if i == 4: e('s_add_u32 s8, s8, 4096')
    e('buffer_load_dwordx4 a[%d:%d], v21, %s, s8 offen offset:%d sc1' % (192+4*i, 195+4*i, WS, (i & 3)*1024))
e('s_lshl_b32 s8, s4, 13'); e('v_add_u32 v25, s8, v%d' % QB)
e('s_cmp_lt_u32 s3, 128'); e('s_cbranch_scc1 L_NOUV')
srd(SA, 24, 512*8192)
e('s_and_b32 s8, s3, 3'); e('s_lshl_b32 s8, s8, 7'); e('s_lshl_b32 s9, s4, 5'); e('s_add_u32 s8, s8, s9')
e('v_lshrrev_b32 v20, 1, v3'); e('v_lshlrev_b32 v20, 4, v20'); e('v_and_b32 v22, 1, v3'); e('v_lshlrev_b32 v22, 2, v22'); e('v_add3_u32 v20, v20, v22, s8')
e('v_lshlrev_b32 v20, 13, v20'); e('v_lshlrev_b32 v22, 4, v2')
e('s_sub_u32 s9, s3, 128'); e('s_lshr_b32 s9, s9, 2'); e('s_lshl_b32 s9, s9, 8'); e('v_add3_u32 v20, v20, v22, s9')
for i in range(8):
    e('s_mov_b32 s12, %d' % ((8*(i >> 2) + (i & 3))*8192)); e('buffer_load_dwordx4 v[%d:%d], v20, %s, s12 offen nt' % (WR+4*i, WR+4*i+3, SA))
e('s_waitcnt vmcnt(8)'); e('s_branch L_UVD')
e('L_NOUV:'); e('s_waitcnt vmcnt(0)')
e('L_UVD:')
for i in range(8): e('ds_write_b128 v25, a[%d:%d] offset:%d' % (192+4*i, 195+4*i, i*1024))
barrier()
stamp(6)
if ARG('exit','')=='qk': e('s_branch L_FIN')
D = 6; R = 8
def qk_read(j):
    e('ds_read_b128 a[%d:%d], v%d offset:%d' % (160+4*(j % R), 163+4*(j % R), QB, j*1024))
for j in range(1, D): qk_read(j)
for j in range(32):
    if j+D < 32: qk_read(j+D)
    if j > 0: e('s_waitcnt lgkmcnt(%d)' % min(D, 31-j))
    b = 'a[224:227]' if j == 0 else 'a[%d:%d]' % (160+4*(j % R), 163+4*(j % R))
    e('v_mfma_f32_32x32x16_bf16 v[%d:%d], a[%d:%d], %s, %s' % (S_ACC, S_ACC+15, 4*j, 4*j+3, b, '0' if j == 0 else 'v[%d:%d]' % (S_ACC, S_ACC+15)))
D = 4
if NEARLY: late_weights(0, NEARLY, 'A')
astamp(1)
PV1=224; PV2=228
e('v_bfe_u32 v20, v1, 2, 2')
e('v_lshrrev_b32 v22, 5, v1')
e('v_bfe_u32 v23, v1, 4, 1')
e('v_bfe_u32 v24, v1, 1, 1')
e('v_lshl_or_b32 v23, v23, 1, v24')
e('v_xor_b32 v23, v23, v22')
e('v_lshl_or_b32 v23, v20, 2, v23')
e('v_lshlrev_b32 v23, 4, v23')
e('v_and_b32 v24, 1, v1'); e('v_lshlrev_b32 v24, 3, v24')
e('v_lshlrev_b32 v25, 2, v22'); e('v_add_u32 v25, v25, v20'); e('v_lshlrev_b32 v25, 10, v25')
e('s_lshl_b32 s8, s4, 8'); e('v_add3_u32 v23, v23, v24, v25'); e('v_add_u32 v23, s8, v23')
for t in range(4):
    e('v_xor_b32 v%d, %d, v23' % (PV1+t, t << 6))
    e('v_xor_b32 v%d, %d, v23' % (PV2+t, (t << 6) ^ (2 << 4))); e('v_add_u32 v%d, 8192, v%d' % (PV2+t, PV2+t))
s0 = S_ACC
e('v_max3_f32 v26, v%d, v%d, v%d' % (s0, s0+1, s0+2))
for k in range(3, 15, 2): e('v_max3_f32 v26, v26, v%d, v%d' % (s0+k, s0+k+1))
e('v_max_f32 v26, v26, v%d' % (s0+15))
e('v_mov_b32 v27, v26'); nop(2); e('v_permlane32_swap_b32 v26, v27'); nop(1); e('v_max_f32 v26, v26, v27')
astamp(2)
MX = SCR
e('v_and_b32 v20, 31, v1'); e('v_lshlrev_b32 v20, 2, v20'); e('v_add_u32 v20, %d, v20' % MX)
e('s_lshl_b32 s8, s4, 7'); e('v_add_u32 v22, s8, v20')
e('ds_write_b32 v22, v26')
barrier()
for w in range(4): e('ds_read_b32 v%d, v20 offset:%d' % (28+w, 128*w))
e('s_lshl_b32 s8, s4, 11'); e('s_add_u32 s8, s8, 8192'); e('v_add_u32 v23, s8, v%d' % QB)
e('s_waitcnt lgkmcnt(0)')
e('v_max3_f32 v26, v28, v29, v30'); e('v_max_f32 v26, v26, v31')
astamp(3)
e('v_mov_b32 v27, v26'); nop(1)
for k in range(0, 16, 2): e('v_pk_add_f32 v[%d:%d], v[%d:%d], v[26:27] neg_lo:[0,1] neg_hi:[0,1]' % (s0+k, s0+k+1, s0+k, s0+k+1))
for k in range(16): e('v_exp_f32 v%d, v%d' % (s0+k, s0+k))
e('v_pk_add_f32 v[28:29], v[%d:%d], v[%d:%d]' % (s0, s0+1, s0+2, s0+3)); e('v_pk_add_f32 v[30:31], v[%d:%d], v[%d:%d]' % (s0+4, s0+5, s0+6, s0+7))
for k in (8, 12): e('v_pk_add_f32 v[28:29], v[28:29], v[%d:%d]' % (s0+k, s0+k+1)); e('v_pk_add_f32 v[30:31], v[30:31], v[%d:%d]' % (s0+k+2, s0+k+3))
for k in range(8): e('v_cvt_pk_bf16_f32 v%d, v%d, v%d' % (s0+k, s0+2*k, s0+2*k+1))
e('v_pk_add_f32 v[28:29], v[28:29], v[30:31]')
e('ds_write_b128 v23, v[%d:%d]' % (s0, s0+3)); e('ds_write_b128 v23, v[%d:%d] offset:1024' % (s0+4, s0+7))
e('v_add_f32 v27, v28, v29')
e('v_mov_b32 v28, v27'); nop(2); e('v_permlane32_swap_b32 v27, v28'); nop(1); e('v_add_f32 v27, v27, v28')
e('ds_write_b32 v22, v27 offset:512')
barrier()
stamp(7)
for ks in range(8): e('ds_read_b128 a[%d:%d], v%d offset:%d' % (96+4*ks, 99+4*ks, QB, 8192+ks*1024))
for w in range(4): e('ds_read_b32 v%d, v20 offset:%d' % (28+w, 512+128*w))
e('s_waitcnt lgkmcnt(0)')
e('s_barrier')
e('v_add_f32 v27, v28, v29'); e('v_add_f32 v27, v27, v30'); e('v_add_f32 v27, v27, v31')
steps = [(ks, t) for half in range(2) for ks in range(8) for t in (2*half, 2*half+1)]
lds_q = []
def lds(tag, txt): e(txt); lds_q.append(tag)
def need(tag):
    idx = [i for i, t_ in enumerate(lds_q) if t_ == tag]
    if not idx: return
    k = max(idx)
    assert len(lds_q) <= 15
    n = len(lds_q) - 1 - k
    e('s_waitcnt lgkmcnt(%d)' % n); del lds_q[:k+1]
def pv_read(q):
    ks, t = steps[q]
    if ks == 4 and (t & 1) == 0:
        for k in (t, t+1): e('v_add_u32 v%d, 0x10000, v%d' % (PV1+k, PV1+k)); e('v_add_u32 v%d, 0x10000, v%d' % (PV2+k, PV2+k))
    o = (ks & 3)*16384; r = 128 + 4*(q % R)
    lds(('A', q), 'ds_read_b64_tr_b16 a[%d:%d], v%d offset:%d' % (r, r+1, PV1+t, o))
    lds(('A', q), 'ds_read_b64_tr_b16 a[%d:%d], v%d offset:%d' % (r+2, r+3, PV2+t, o))
e('v_and_b32 v20, 31, v1'); e('v_lshrrev_b32 v22, 5, v1'); e('v_and_b32 v23, 15, v20'); e('v_xor_b32 v23, v23, v22'); e('v_lshlrev_b32 v23, 4, v23')
e('v_lshlrev_b32 v24, 8, v20'); e('s_lshl_b32 s8, s4, 13'); e('s_add_u32 s8, s8, %d' % SCR); e('v_add3_u32 v23, v23, v24, s8')
e('v_lshrrev_b32 v24, 3, v1'); e('v_and_b32 v25, 7, v1'); e('v_xor_b32 v20, v24, v25'); e('v_lshlrev_b32 v20, 4, v20')
e('v_lshl_add_u32 v20, v24, 8, v20'); e('v_add_u32 v20, s8, v20')
e('v_lshlrev_b32 v22, 18, v24'); e('v_lshl_add_u32 v22, v25, 4, v22')
e('s_lshl_b32 s9, s3, 8'); e('s_add_u32 s9, s9, %d' % WS_PART); e('s_lshl_b32 s10, s4, 16'); e('s_add_u32 s9, s9, s10')
def ep_unit(s_):
    b = 128 + 8*s_; tt = 208 + 4*(s_ & 1)
    for k in range(4): e('v_cvt_pk_bf16_f32 v%d, v%d, v%d' % (tt+k, b+2*k, b+2*k+1))
    e('v_xor_b32 v24, %d, v23' % (s_ << 5))
    lds(('W', s_), 'ds_write_b128 v24, v[%d:%d]' % (tt, tt+3))
def ep_read(half, i):
    e('v_xor_b32 v24, %d, v20' % ((((8*(i & 1)) ^ (8*half)) << 4)))
    lds(('R', half, i), 'ds_read_b128 v[%d:%d], v24 offset:%d' % (192+4*i, 195+4*i, i*2048))
def ep_store(half, i):
    need(('R', half, i))
    e('s_add_u32 s10, s9, %d' % (i*(8 << 18) + half*128))
    e('buffer_store_dwordx4 v[%d:%d], v22, %s, s10 offen sc1' % (192+4*i, 195+4*i, WS))
astamp(4)
for q in range(D): pv_read(q)
for q in range(32):
    if q+D < 32: pv_read(q+D)
    need(('A', q))
    ks, t = steps[q]; r = 128 + 4*(q % R)
    e('v_mfma_f32_32x32x16_bf16 v[%d:%d], a[%d:%d], a[%d:%d], %s' % (128+16*t, 128+16*t+15, r, r+3, 96+4*ks, 99+4*ks, '0' if ks == 0 else 'v[%d:%d]' % (128+16*t, 128+16*t+15)))
    if 19 <= q <= 22: ep_unit(q-19)
    if q == 24:
        need(('W', 3))
        for i in range(4): ep_read(0, i)
    if 27 <= q <= 30: ep_store(0, q-27)
astamp(5)
nop(8)
ep_unit(4); ep_unit(5); nop(4); ep_unit(6); ep_unit(7)
stamp(8)
need(('W', 7))
for i in range(4): ep_read(1, i)
for i in range(4): ep_store(1, i)
astamp(6)
e('v_mov_b32 v128, v26'); e('v_mov_b32 v129, %s' % sN); e('v_mov_b32 v130, v27'); e('v_mov_b32 v131, %s' % sN)
e('v_lshlrev_b32 v20, 14, v1'); e('s_lshl_b32 s8, s3, 4'); e('s_lshl_b32 s9, s4, 12'); e('s_add_u32 s8, s8, s9'); e('s_add_u32 s8, s8, %d' % WS_STATS)
e('v_cmp_gt_u32 vcc, 32, v1')
e('s_waitcnt vmcnt(0)')
astamp(7)
e('s_and_saveexec_b64 s[14:15], vcc')
e('buffer_store_dwordx4 v[128:131], v20, %s, s8 offen sc1' % WS)
e('s_mov_b64 exec, s[14:15]')
e('s_barrier')
stamp(9)
if ARG('exit','')=='stats': e('s_branch L_FIN')
e('s_cmp_lt_u32 s3, 128'); e('s_cbranch_scc1 L_LATE_E')

e('s_sub_u32 s5, s3, 128'); e('s_lshr_b32 s5, s5, 2')
e('s_and_b32 s6, s3, 3')
e('v_lshlrev_b32 v21, 4, v1')
e('s_lshl_b32 s8, s5, 2'); e('s_add_u32 s8, s8, s6'); e('s_lshl_b32 s7, s8, 12'); e('s_add_u32 s7, s7, %d' % WS_STATS)
e('s_lshl_b32 s8, s8, 16'); e('s_add_u32 s8, s8, %d' % WS_PART); e('s_lshl_b32 s9, s4, 14'); e('s_add_u32 s8, s8, s9')
e('v_lshlrev_b32 v20, 12, v3'); e('v_lshl_add_u32 v20, v2, 4, v20')
e('s_lshl_b32 s9, s4, 10'); e('s_add_u32 s9, s9, s7')
st4 = ['buffer_load_dwordx4 v[%d:%d], v21, %s, s7 offen offset:%d sc1' % (208+4*k, 211+4*k, WS, 1024*k) for k in range(4)]
if ARG('s4', '2') == '2':
    pollp(3, lambda k: ['buffer_load_dwordx4 v[%d:%d], v21, %s, s9 offen sc1' % (224+4*k, 227+4*k, WS)], lambda k: [225+4*k, 227+4*k], lambda k: [])
    for x_ in st4: e(x_)
    for i in range(16):
        e('buffer_load_dwordx4 v[%d:%d], v20, %s, s8 offen offset:%d sc1' % (64+4*i, 67+4*i, WS, 256*i))
    e('s_waitcnt vmcnt(16)')
    tagchk([209+2*k for k in range(8)])
    e('s_cbranch_vccz L_S4P2')
    poll(st4, [209+2*k for k in range(8)], sleep=0)
    e('L_S4P2:')
else:
    poll(st4, [209+2*k for k in range(8)], sleep=int(ARG('s4sl', 1)))
    for i in range(16):
        e('buffer_load_dwordx4 v[%d:%d], v20, %s, s8 offen offset:%d sc1' % (64+4*i, 67+4*i, WS, 256*i))
stamp(10)
lstamp(1)
e('v_max3_f32 v22, v208, v212, v216'); e('v_max_f32 v22, v22, v220')
wave_reduce(22, 'max'); e('v_readlane_b32 s9, v22, 63'); nop(2)
for k in range(4):
    e('v_subrev_f32 v%d, s9, v%d' % (208+4*k, 208+4*k)); e('v_exp_f32 v%d, v%d' % (208+4*k, 208+4*k))
nop(1)
e('v_mul_f32 v22, v208, v210')
for k in range(1, 4): e('v_fmac_f32 v22, v%d, v%d' % (208+4*k, 210+4*k))
wave_reduce(22); e('v_readlane_b32 s10, v22, 63')
e('v_mov_b32 v23, v208')
for k in range(1, 4):
    e('s_cmp_eq_u32 s4, %d' % k); e('s_cselect_b64 vcc, -1, 0'); e('v_cndmask_b32 v23, v23, v%d, vcc' % (208+4*k))
e('v_cvt_pk_bf16_f32 v24, v23, v23')
e('v_and_b32 v25, 0xffff0000, v24'); e('v_sub_f32 v25, v23, v25'); e('v_cvt_pk_bf16_f32 v25, v25, v25')
e('v_lshlrev_b32 v26, 2, v0'); e('v_add_u32 v26, %d, v26' % XX)
e('ds_write_b32 v26, v24'); e('ds_write_b32 v26, v25 offset:1024')
e('v_lshrrev_b32 v26, 3, v2'); e('v_lshlrev_b32 v26, 10, v26'); e('v_lshl_add_u32 v26, v3, 6, v26'); e('s_lshl_b32 s9, s4, 8'); e('s_add_u32 s9, s9, %d' % XX); e('v_add_u32 v26, s9, v26')
e('s_waitcnt lgkmcnt(0)')
for k in range(4): e('ds_read_b128 v[%d:%d], v26 offset:%d' % (XR+4*k, XR+4*k+3, 16*k))
e('s_waitcnt lgkmcnt(0)')
lstamp(2)
e('s_waitcnt vmcnt(0)')
gemv(16, 64, XR)
stamp(11)
e('v_lshrrev_b32 v20, 1, v3'); e('s_lshl_b32 s8, s4, 1'); e('v_add_u32 v20, s8, v20'); e('v_lshlrev_b32 v20, 9, v20')
e('v_and_b32 v22, 1, v3'); e('v_lshlrev_b32 v22, 4, v22'); e('v_lshl_add_u32 v22, v2, 5, v22'); e('v_add3_u32 v20, v20, v22, %s' % 's58')
L.insert(len(L)-1, '    s_mov_b32 s58, %d' % RED)
e('ds_write_b128 v20, v[%d:%d]' % (ACC, ACC+3))
barrier()
lstamp(3)
l = lab(); exec_lt(128, l)
e('v_lshlrev_b32 v20, 2, v0'); e('v_add_u32 v22, %d, v20' % RED)
for s in range(8): e('ds_read_b32 v%d, v22 offset:%d' % (XR+s, 512*s))
e('v_mov_b32 v23, s10'); e('v_rcp_f32 v23, v23')
e('s_waitcnt lgkmcnt(0)')
for s in range(1, 8): e('v_add_f32 v%d, v%d, v%d' % (XR, XR, XR+s))
e('v_mul_f32 v23, v23, v%d' % XR); e('v_cvt_pk_bf16_f32 v23, v23, v23')
e('v_add_u32 v20, %d, v20' % XX); e('ds_write_b32 v20, v23')
exec_restore(l)
barrier()
lstamp(4)
e('v_lshlrev_b32 v26, 5, v3'); e('s_lshl_b32 s9, s4, 7'); e('s_add_u32 s9, s9, %d' % XX); e('v_add_u32 v26, s9, v26')
for k in range(2): e('ds_read_b128 v[%d:%d], v26 offset:%d' % (XR+4*k, XR+4*k+3, 16*k))
e('s_waitcnt lgkmcnt(0)')
lstamp(5)
gemv(8, WR, XR)
lstamp(6)

def red_w16(nslot_bytes):
    e('v_and_b32 v22, 1, v3'); e('v_lshlrev_b32 v22, 4, v22'); e('v_lshl_add_u32 v22, v2, 5, v22')
    e('s_mul_i32 s8, s4, %d' % nslot_bytes); e('s_add_u32 s8, s8, %d' % RED); e('v_add_u32 v20, s8, v22')
    e('v_cmp_gt_u32 vcc, 2, v3'); e('s_and_saveexec_b64 s[14:15], vcc')
    e('ds_write_b128 v20, v[%d:%d]' % (ACC, ACC+3))
    e('s_mov_b64 exec, s[14:15]')
    barrier()
def pair_sum_publish(sbase):
    l = lab(); exec_lt(64, l)
    e('v_lshlrev_b32 v20, 3, v0'); e('v_add_u32 v22, %d, v20' % RED)
    for s in range(4): e('ds_read_b64 v[%d:%d], v22 offset:%d' % (XR+2*s, XR+2*s+1, 512*s))
    e('s_waitcnt lgkmcnt(0)')
    for s in range(1, 4):
        e('v_add_f32 v%d, v%d, v%d' % (XR, XR, XR+2*s)); e('v_add_f32 v%d, v%d, v%d' % (XR+1, XR+1, XR+2*s+1))
    e('v_cvt_pk_bf16_f32 v22, v%d, v%d' % (XR, XR+1)); e('v_mov_b32 v23, %s' % sN)
    e('buffer_store_dwordx2 v[22:23], v20, %s, %s offen sc1' % (WS, sbase))
    exec_restore(l)
red_w16(512)
lstamp(7)
e('s_lshl_b32 s9, s5, 2'); e('s_add_u32 s9, s9, s6'); e('s_lshl_b32 s9, s9, 9'); e('s_add_u32 s9, s9, %d' % WS_CTX)
pair_sum_publish('s9')
stamp(12)
e('s_branch L_FIN')

e('L_LATE_E:')
late_weights(NEARLY, 40, 'B')
e('s_cmp_ge_u32 s3, 107'); e('s_cbranch_scc1 L_FIN')
e('s_cmp_lt_u32 s3, 67'); e('s_cbranch_scc1 L_LATE_E2')
e('s_sub_u32 s6, s3, 47')
srd(SB, 34, 1280)
e('v_lshrrev_b32 v24, 3, v2'); e('v_lshl_add_u32 v24, v24, 2, v3'); e('v_mul_u32_u24 v24, 20, v24')
e('s_mul_i32 s8, s4, 160'); e('v_add_u32 v24, s8, v24')
e('v_lshlrev_b32 v21, 3, v0'); e('buffer_load_dwordx2 v[112:113], v21, %s, 0 offen' % SB)
e('s_waitcnt vmcnt(0)')
unpack(114, 115, 112); unpack(116, 117, 113)
for r in range(114, 118):
    e('v_mul_f32 v28, 0xbfb8aa3b, v%d' % r); e('v_exp_f32 v28, v28'); nop(1)
    e('v_add_f32 v28, 1.0, v28'); e('v_rcp_f32 v28, v28'); nop(1); e('v_mul_f32 v%d, v%d, v28' % (r, r))
e('v_cvt_pk_bf16_f32 v26, v114, v115'); e('v_cvt_pk_bf16_f32 v27, v116, v117')
e('v_perm_b32 v28, v26, v26, %s' % SEL_LO); e('v_perm_b32 v29, v26, v26, %s' % SEL_HI)
e('v_perm_b32 v30, v27, v27, %s' % SEL_LO); e('v_perm_b32 v31, v27, v27, %s' % SEL_HI)
e('v_lshlrev_b32 v21, 4, v0'); e('v_add_u32 v21, %d, v21' % XX)
l = lab(); exec_lt(160, l); e('ds_write_b128 v21, v[28:31]'); exec_restore(l)
barrier()
gemv_w8_tail(20, 0, wb='A')
l = lab(); exec_lt(32, l)
e('v_lshlrev_b32 v20, 3, v0'); e('v_add_u32 v21, %d, v20' % RED)
for s_ in range(8): e('ds_read_b64 v[%d:%d], v21 offset:%d' % (XR+2*s_, XR+2*s_+1, 256*s_))
e('s_lshl_b32 s8, s6, 8'); e('s_add_u32 s8, s8, %d' % WS_MOD); e('v_mov_b32 v23, %s' % sN)
e('s_waitcnt lgkmcnt(0)')
for s_ in (4, 2, 1):
    for k in range(s_): e('v_pk_add_f32 v[%d:%d], v[%d:%d], v[%d:%d]' % (XR+2*k, XR+2*k+1, XR+2*k, XR+2*k+1, XR+2*(k+s_), XR+2*(k+s_)+1))
e('v_cvt_pk_bf16_f32 v22, v%d, v%d' % (XR, XR+1))
e('buffer_store_dwordx2 v[22:23], v20, %s, s8 offen sc1' % WS)
exec_restore(l)
e('s_branch L_FIN')
e('L_LATE_E2:')
e('s_cmp_ge_u32 s3, 40'); e('s_cbranch_scc1 L_MLP')
e('s_mul_i32 s5, s3, 52'); e('s_lshr_b32 s5, s5, 8')
e('s_mul_i32 s6, s5, 5'); e('s_sub_u32 s6, s3, s6')
e('s_lshl_b32 s8, s5, 2'); e('s_add_u32 s8, s8, s4'); e('s_lshl_b32 s8, s8, 11'); e('s_add_u32 s8, s8, %d' % WS_CTX)
e('v_lshlrev_b32 v21, 3, v1')
e('s_lshl_b32 s9, s4, 9'); e('s_add_u32 s9, s9, %d' % XX); e('v_add_u32 v25, s9, v21')
e('v_lshlrev_b32 v26, 7, v3'); e('v_add_u32 v26, s9, v26')
e('v_and_b32 v22, 1, v3'); e('v_lshlrev_b32 v22, 4, v22'); e('v_lshl_add_u32 v22, v2, 5, v22')
e('s_lshl_b32 s9, s4, 9'); e('s_add_u32 s9, s9, %d' % RED); e('v_add_u32 v24, s9, v22')
e('v_cmp_gt_u32 s[12:13], 2, v3')
e('s_lshl_b32 s10, s5, 12'); e('s_lshl_b32 s11, s6, 9'); e('s_add_u32 s10, s10, s11'); e('s_add_u32 s10, s10, %d' % WS_X1P)
e('v_lshlrev_b32 v27, 3, v0'); e('v_add_u32 v23, %d, v27' % RED)
st = lambda k: 224 + 8*k
pollp(3, lambda k: ['buffer_load_dwordx2 v[%d:%d], v21, %s, s8 offen offset:%d sc1' % (st(k)+2*j, st(k)+2*j+1, WS, 512*j) for j in range(4)],
      lambda k: [st(k)+1+2*j for j in range(4)], lambda k: [st(k)+2*j for j in range(4)] if k < 3 else [248, 249, 250, 251], sleep=int(ARG('s5sl',0)))
stamp(10)
for k in range(4): unpack(8+2*k, 9+2*k, 248+k)
e('v_pk_add_f32 v[8:9], v[8:9], v[10:11]'); e('v_pk_add_f32 v[12:13], v[12:13], v[14:15]'); e('v_pk_add_f32 v[8:9], v[8:9], v[12:13]')
e('v_cvt_pk_bf16_f32 v28, v8, v9')
e('v_perm_b32 v30, v28, v28, %s' % SEL_LO); e('v_perm_b32 v31, v28, v28, %s' % SEL_HI)
e('ds_write_b64 v25, v[30:31]')
e('s_waitcnt lgkmcnt(0)')
for k in range(8): e('ds_read_b128 v[%d:%d], v26 offset:%d' % (XR+4*k, XR+4*k+3, 16*k))
e('s_waitcnt lgkmcnt(6)')
gemv(32, 'A', XR, wait=lambda i: e('s_waitcnt lgkmcnt(%d)' % max(0, 6-(i+2)//4)) if (i % 4 == 2 and i < 28) else None)
e('s_mov_b64 s[14:15], exec'); e('s_mov_b64 exec, s[12:13]')
e('ds_write_b128 v24, v[%d:%d]' % (ACC, ACC+3))
e('s_mov_b64 exec, s[14:15]')
barrier()
l = lab(); exec_lt(64, l)
for s_ in range(4): e('ds_read_b64 v[%d:%d], v23 offset:%d' % (XR+2*s_, XR+2*s_+1, 512*s_))
e('v_mov_b32 v29, %s' % sN)
e('s_waitcnt lgkmcnt(0)')
e('v_pk_add_f32 v[%d:%d], v[%d:%d], v[%d:%d]' % (XR, XR+1, XR, XR+1, XR+2, XR+3)); e('v_pk_add_f32 v[%d:%d], v[%d:%d], v[%d:%d]' % (XR+4, XR+5, XR+4, XR+5, XR+6, XR+7))
e('v_pk_add_f32 v[%d:%d], v[%d:%d], v[%d:%d]' % (XR, XR+1, XR, XR+1, XR+4, XR+5))
e('v_cvt_pk_bf16_f32 v28, v%d, v%d' % (XR, XR+1))
e('buffer_store_dwordx2 v[28:29], v27, %s, s10 offen sc1' % WS)
exec_restore(l)
stamp(12)
e('s_branch L_FIN')

e('L_MLP:')
e('s_sub_u32 s5, s3, 40')
srd(SB, 16, 1280)
lm = lab(); exec_lt(160, lm)
e('v_lshlrev_b32 v21, 3, v0'); e('buffer_load_dwordx2 v[224:225], v21, %s, 0 offen' % SB)
e('v_lshlrev_b32 v21, 4, v0')
lds_ = []
for q in range(4):
    lds_.append('s_mov_b32 s12, %d' % (WS_MOD + (2+q)*2560))
    lds_.append('buffer_load_dwordx4 v[%d:%d], v21, %s, s12 offen sc1' % (192+4*q, 195+4*q, WS))
poll(lds_, [193+2*k for k in range(8)], sleep=4)
for q in range(4):
    b = 192+4*q; d = 240+4*q
    unpack(d, d+1, b); unpack(d+2, d+3, b+2)
unpack(236, 237, 224); unpack(238, 239, 225)
for k in range(4): e('v_add_f32 v%d, 1.0, v%d' % (248+k, 248+k))
exec_restore(lm)
lm = lab(); exec_lt(160, lm)
e('v_lshlrev_b32 v21, 4, v0')
lds_ = []
for kg in range(8):
    lds_.append('s_mov_b32 s12, %d' % (WS_X1P + kg*4096))
    lds_.append('buffer_load_dwordx4 v[%d:%d], v21, %s, s12 offen sc1' % (192+4*kg, 195+4*kg, WS))
X1L = SCR + 16384; GBL = X1L + 4096
e('v_add_u32 v25, %d, v21' % X1L); e('ds_write_b128 v25, v[252:255] offset:4096')
ldA, ldB = lds_[:8], lds_[8:]
tgA, tgB = [193+2*k for k in range(8)], [209+2*k for k in range(8)]
for x_ in ldA + ldB: e(x_)
e('L_X1:')
e('s_waitcnt vmcnt(4)'); tagchk(tgA); e('s_cbranch_vccz L_X1B')
e('s_sub_u32 s59, s59, 1'); e('s_cbranch_scc1 L_END')
for x_ in ldA: e(x_)
e('s_waitcnt vmcnt(4)'); tagchk(tgB); e('s_cbranch_vccz L_X1A')
for x_ in ldB: e(x_)
e('s_branch L_X1')
e('L_X1A:')
e('s_waitcnt vmcnt(0)'); tagchk(tgA); e('s_cbranch_vccz L_X1D')
e('s_sub_u32 s59, s59, 1'); e('s_cbranch_scc1 L_END')
for x_ in ldA: e(x_)
e('s_branch L_X1A')
e('L_X1B:')
e('s_waitcnt vmcnt(0)'); tagchk(tgB); e('s_cbranch_vccz L_X1D')
e('s_sub_u32 s59, s59, 1'); e('s_cbranch_scc1 L_END')
for x_ in ldB: e(x_)
e('s_branch L_X1B')
e('L_X1D:')
stamp(10)
unpack(232, 233, 192); unpack(234, 235, 194)
for kg in range(1, 8):
    b = 192+4*kg
    unpack(224, 225, b); unpack(226, 227, b+2)
    e('v_pk_add_f32 v[232:233], v[232:233], v[224:225]'); e('v_pk_add_f32 v[234:235], v[234:235], v[226:227]')
e('v_pk_fma_f32 v[232:233], v[240:241], v[232:233], v[236:237]'); e('v_pk_fma_f32 v[234:235], v[242:243], v[234:235], v[238:239]')
e('v_pk_add_f32 v[22:23], v[232:233], v[234:235]'); e('v_pk_mul_f32 v[28:29], v[232:233], v[232:233]'); e('v_pk_fma_f32 v[28:29], v[234:235], v[234:235], v[28:29]')
e('ds_write_b128 v25, v[232:235]')
e('v_add_f32 v22, v22, v23'); e('v_add_f32 v23, v28, v29')
e('s_branch L_MS1')
e(lm + ':')
e('v_mov_b32 v22, 0'); e('v_mov_b32 v23, 0')
e('L_MS1:')
e('s_mov_b64 exec, s[14:15]')
e('v_cmp_gt_u32 vcc, 160, v0'); nop(2); e('v_cndmask_b32 v22, 0, v22, vcc'); e('v_cndmask_b32 v23, 0, v23, vcc')
for sh in (1, 2, 4, 8):
    nop(1)
    e('v_add_f32_dpp v22, v22, v22 row_shr:%d row_mask:0xf bank_mask:0xf bound_ctrl:0' % sh); e('v_add_f32_dpp v23, v23, v23 row_shr:%d row_mask:0xf bank_mask:0xf bound_ctrl:0' % sh)
nop(1); e('v_add_f32_dpp v22, v22, v22 row_bcast:15 row_mask:0xa bank_mask:0xf'); e('v_add_f32_dpp v23, v23, v23 row_bcast:15 row_mask:0xa bank_mask:0xf')
nop(1); e('v_add_f32_dpp v22, v22, v22 row_bcast:31 row_mask:0xc bank_mask:0xf'); e('v_add_f32_dpp v23, v23, v23 row_bcast:31 row_mask:0xc bank_mask:0xf')
ST = SCR + 3072
e('s_lshl_b32 s10, s4, 3'); e('s_add_u32 s10, s10, %d' % ST); e('v_mov_b32 v20, s10')
e('s_mov_b64 s[14:15], exec'); e('s_mov_b32 exec_lo, 0'); e('s_mov_b32 exec_hi, 0x80000000')
e('ds_write_b64 v20, v[22:23]')
e('s_mov_b64 exec, s[14:15]')
barrier()
e('v_mov_b32 v20, %d' % ST); e('ds_read_b128 v[24:27], v20'); e('ds_read_b128 v[28:31], v20 offset:16')
e('v_lshlrev_b32 v21, 4, v0'); e('v_add_u32 v21, %d, v21' % XX)
e('s_waitcnt lgkmcnt(0)')
e('v_pk_add_f32 v[24:25], v[24:25], v[26:27]'); e('v_pk_add_f32 v[28:29], v[28:29], v[30:31]'); e('v_pk_add_f32 v[22:23], v[24:25], v[28:29]')
e('v_mul_f32 v22, %s, v22' % hex(f2u(1/640.))); e('v_mul_f32 v23, %s, v23' % hex(f2u(1/640.)))
e('v_fma_f32 v23, -v22, v22, v23'); e('v_max_f32 v23, 0, v23'); e('v_add_f32 v23, %s, v23' % hex(f2u(1e-5))); e('v_rsq_f32 v24, v23'); e('v_mov_b32 v23, v22')
lm = lab(); exec_lt(160, lm)
e('v_mov_b32 v25, v24')
for k in (0, 2):
    e('v_pk_add_f32 v[%d:%d], v[%d:%d], v[22:23] neg_lo:[0,1] neg_hi:[0,1]' % (224+k, 225+k, 232+k, 233+k))
    e('v_pk_mul_f32 v[%d:%d], v[%d:%d], v[%d:%d]' % (228+k, 229+k, 248+k, 249+k, 24, 25))
    e('v_pk_fma_f32 v[%d:%d], v[%d:%d], v[%d:%d], v[%d:%d]' % (224+k, 225+k, 224+k, 225+k, 228+k, 229+k, 244+k, 245+k))
e('v_cvt_pk_bf16_f32 v26, v224, v225'); e('v_cvt_pk_bf16_f32 v27, v226, v227')
e('v_perm_b32 v28, v26, v26, %s' % SEL_LO); e('v_perm_b32 v29, v26, v26, %s' % SEL_HI)
e('v_perm_b32 v30, v27, v27, %s' % SEL_LO); e('v_perm_b32 v31, v27, v27, %s' % SEL_HI)
e('ds_write_b128 v21, v[28:31]')
exec_restore(lm)
e('v_lshrrev_b32 v20, 3, v2'); e('v_lshl_add_u32 v22, v20, 2, v3'); e('v_mul_u32_u24 v22, 80, v22')
e('s_mul_i32 s8, s4, 640'); e('s_add_u32 s8, s8, %d' % XX); e('v_add_u32 v21, s8, v22')
e('v_lshrrev_b32 v22, 1, v3'); e('v_cmp_eq_u32 s[12:13], v20, v22')
e('s_lshl_b32 s8, s4, 1'); e('v_add_u32 v20, s8, v20'); e('v_lshlrev_b32 v20, 8, v20')
e('v_and_b32 v22, 7, v2'); e('v_lshlrev_b32 v22, 5, v22'); e('v_and_b32 v23, 1, v3'); e('v_lshlrev_b32 v23, 4, v23')
e('v_add3_u32 v20, v20, v22, v23'); e('v_add_u32 v20, %d, v20' % RED)
barrier()
for i in range(0, 20, 4): e('ds_read_b128 v[%d:%d], v21 offset:%d' % (XR+i, XR+i+3, 4*i))
e('s_waitcnt vmcnt(0) lgkmcnt(3)')
gemv(20, 'A', XR, wait=lambda i: e('s_waitcnt lgkmcnt(%d)' % max(0, 3-(i+2)//4)) if (i % 4 == 2 and i < 16) else None)
e('s_mov_b64 s[14:15], exec'); e('s_mov_b64 exec, s[12:13]')
e('ds_write_b128 v20, v[%d:%d]' % (ACC, ACC+3))
e('s_mov_b64 exec, s[14:15]')
XX3 = SCR + 3584
e('v_lshlrev_b32 v20, 2, v0'); e('v_add_u32 v21, %d, v20' % RED); e('v_add_u32 v20, %d, v20' % XX3)
barrier()
l = lab(); exec_lt(64, l)
for s_ in range(8): e('ds_read_b32 v%d, v21 offset:%d' % (XR+s_, 256*s_))
e('s_waitcnt lgkmcnt(0)')
e('v_pk_add_f32 v[%d:%d], v[%d:%d], v[%d:%d]' % (XR, XR+1, XR, XR+1, XR+4, XR+5)); e('v_pk_add_f32 v[%d:%d], v[%d:%d], v[%d:%d]' % (XR+2, XR+3, XR+2, XR+3, XR+6, XR+7))
e('v_pk_add_f32 v[%d:%d], v[%d:%d], v[%d:%d]' % (XR, XR+1, XR, XR+1, XR+2, XR+3)); e('v_add_f32 v22, v%d, v%d' % (XR, XR+1))
e('v_max_f32 v22, 0, v22'); e('v_cvt_pk_bf16_f32 v22, v22, v22')
e('ds_write_b32 v20, v22')
exec_restore(l)
barrier()
stamp(11)
e('v_lshlrev_b32 v20, 4, v3'); e('s_lshl_b32 s8, s4, 6'); e('s_add_u32 s8, s8, %d' % XX3); e('v_add_u32 v20, s8, v20')
e('ds_read_b128 v[%d:%d], v20' % (XR, XR+3))
e('s_waitcnt lgkmcnt(0)')
AF = 208
for i in range(4):
    for d in range(4): e('v_and_b32 v%d, v%d, v%d' % (AF+4*i+d, XR+i, MK[d]))
nop(2)
AC2 = 224
for i in range(4):
    for cg in range(5):
        a = AC2+4*cg
        e('v_mfma_f32_16x16x32_bf16 v[%d:%d], v[%d:%d], %s, %s' % (a, a+3, AF+4*i, AF+4*i+3, aq(20+5*i+cg), '0' if i == 0 else 'v[%d:%d]' % (a, a+3)))
nop(8)
e('v_and_b32 v22, 1, v3'); e('v_lshlrev_b32 v22, 4, v22'); e('v_lshl_add_u32 v22, v2, 5, v22')
e('s_mul_i32 s8, s4, 2560'); e('s_add_u32 s8, s8, %d' % RED); e('v_add_u32 v20, s8, v22')
e('v_cmp_gt_u32 vcc, 2, v3'); e('s_and_saveexec_b64 s[14:15], vcc')
for cg in range(5): e('ds_write_b128 v20, v[%d:%d] offset:%d' % (AC2+4*cg, AC2+4*cg+3, 512*cg))
e('s_mov_b64 exec, s[14:15]')
barrier()
l = lab(); exec_lt(160, l)
e('v_lshlrev_b32 v21, 4, v0'); e('v_add_u32 v20, %d, v21' % RED)
for s in range(4): e('ds_read_b128 v[%d:%d], v20 offset:%d' % (XR+4*s, XR+4*s+3, 2560*s))
e('s_waitcnt lgkmcnt(0)')
for s in range(1, 4):
    for k in range(4): e('v_add_f32 v%d, v%d, v%d' % (XR+k, XR+k, XR+4*s+k))
e('v_mov_b32 v208, v192'); e('v_mov_b32 v209, %s' % sN); e('v_mov_b32 v210, v193'); e('v_mov_b32 v211, %s' % sN)
e('v_mov_b32 v212, v194'); e('v_mov_b32 v213, %s' % sN); e('v_mov_b32 v214, v195'); e('v_mov_b32 v215, %s' % sN)
e('v_lshlrev_b32 v20, 5, v0'); e('s_lshl_b32 s8, s5, 13'); e('s_add_u32 s8, s8, %d' % WS_MLP)
e('buffer_store_dwordx4 v[208:211], v20, %s, s8 offen sc1' % WS); e('buffer_store_dwordx4 v[212:215], v20, %s, s8 offen offset:16 sc1' % WS)
exec_restore(l)
stamp(12)
e('s_cmp_ge_u32 s5, 20'); e('s_cbranch_scc1 L_FIN')
e('v_and_b32 v20, 31, v0'); e('v_lshrrev_b32 v21, 5, v0')
e('v_lshlrev_b32 v22, 13, v21'); e('v_lshl_add_u32 v22, v20, 3, v22')
e('s_lshl_b32 s8, s5, 8'); e('s_add_u32 s8, s8, %d' % WS_MLP)
e('v_cmp_gt_u32 vcc, 3, v21'); e('v_add_u32 v23, %d, v22' % (24*8192)); nop(1); e('v_cndmask_b32 v23, v22, v23, vcc')
e('s_add_u32 s9, s8, %d' % (8*8192)); e('s_add_u32 s10, s8, %d' % (16*8192))
e('s_mov_b64 s[12:13], vcc')
st = lambda k: 216 + 8*k
pollp(3, lambda k: ['buffer_load_dwordx2 v[%d:%d], v%d, %s, %s offen sc1' % (st(k)+2*j, st(k)+2*j+1, a_, WS, so) for j, (a_, so) in enumerate([(22, 's8'), (22, 's9'), (22, 's10'), (23, 's8')])],
      lambda k: [st(k)+1+2*j for j in range(4)], lambda k: [st(k)+2*j for j in range(4)] if k < 3 else [192, 194, 196, 198], sleep=int(ARG('fsl',0)))
stamp(13)
e('v_cndmask_b32 v198, 0, v198, s[12:13]')
e('v_add_f32 v192, v192, v194'); e('v_add_f32 v196, v196, v198'); e('v_add_f32 v192, v192, v196')
FR = SCR + 24576
e('v_lshlrev_b32 v22, 2, v0'); e('v_add_u32 v22, %d, v22' % FR); e('ds_write_b32 v22, v192')
barrier()
l = lab(); exec_lt(16, l)
e('v_lshlrev_b32 v20, 3, v0'); e('v_add_u32 v22, %d, v20' % FR)
for p in range(8): e('ds_read_b64 v[%d:%d], v22 offset:%d' % (192+2*p, 193+2*p, 128*p))
e('s_lshl_b32 s8, s5, 7'); e('s_add_u32 s8, s8, %d' % X1L); e('v_add_u32 v23, s8, v20')
e('ds_read_b64 v[208:209], v23'); e('ds_read_b64 v[210:211], v23 offset:4096')
e('s_waitcnt lgkmcnt(0)')
for p in range(1, 8): e('v_add_f32 v192, v192, v%d' % (192+2*p)); e('v_add_f32 v193, v193, v%d' % (193+2*p))
e('v_fma_f32 v192, v210, v192, v208'); e('v_fma_f32 v193, v211, v193, v209')
e('v_cvt_pk_bf16_f32 v192, v192, v193')
srd(SA, 38, 1280)
e('v_lshlrev_b32 v20, 2, v0'); e('s_lshl_b32 s8, s5, 6')
e('buffer_store_dword v192, v20, %s, s8 offen' % SA)
exec_restore(l)
e('s_cmp_lg_u32 s3, 40'); e('s_cbranch_scc1 L_FIN')
l = lab(); exec_lt(1, l)
e('v_mov_b32 v20, 0'); e('v_mov_b32 v22, s97'); e('buffer_store_dword v22, v20, %s, 0 offen sc1' % WS)
exec_restore(l)
e('L_FIN:')
if STAMPS and '--dbg' in sys.argv:
    stamp(14)
    e('s_load_dwordx2 s[8:9], s[0:1], 96')
    e('s_waitcnt lgkmcnt(0)')
    e('s_mov_b32 s10, 256'); e('s_mov_b32 s11, 0x20000')
    e('s_cmp_lg_u32 s3, 40'); e('s_cbranch_scc1 L_END')
    l = lab(); exec_lt(1, l)
    for k in range(15):
        e('v_mov_b32 v24, s%d' % (60+2*k)); e('v_mov_b32 v20, %d' % (4*k)); e('buffer_store_dword v24, v20, s[8:11], 0 offen'); nop(2)
    exec_restore(l)
elif STAMPS:
    stamp(14)
    e('s_waitcnt lgkmcnt(0)')
    l = lab(); exec_lt(1, l)
    e('s_lshl_b32 s8, s3, 6'); e('s_add_u32 s8, s8, %d' % WS_STAMP); e('v_mov_b32 v20, 0')
    for k in range(0, 16, 4):
        for j in range(4): e('v_mov_b32 v%d, s%d' % (24+j, 60+2*(k+j)))
        e('buffer_store_dwordx4 v[24:27], v20, %s, s8 offen offset:%d' % (WS, 4*k)); nop(2)
    exec_restore(l)
e('L_END:')
e('s_endpgm')
L.append('.section .rodata,"a"')
L.append('.p2align 6')
L.append('.amdhsa_kernel %s_kernel' % NAME)
for k, v in [('next_free_vgpr', 512), ('next_free_sgpr', 102), ('accum_offset', 256), ('group_segment_fixed_size', 0), ('kernarg_size', 112),
             ('user_sgpr_count', 2), ('user_sgpr_kernarg_segment_ptr', 1), ('system_sgpr_workgroup_id_x', 1)]:
    L.append('  .amdhsa_%s %d' % (k, v))
L.append('.end_amdhsa_kernel')
txt = '\n'.join(L) + '\n'
import subprocess, re
tmp = txt.replace('NSLICE', '0')
open('_sz.s', 'w').write(tmp)
subprocess.run(['clang', '-x', 'assembler', '-target', 'amdgcn-amd-amdhsa', '-mcpu=gfx950', '-c', '_sz.s', '-o', '_sz.o'], check=True)
dis = subprocess.run(['llvm-objdump', '-d', '--mcpu=gfx950', '_sz.o'], capture_output=True, text=True).stdout
end = int(re.findall(r's_endpgm\s+// ([0-9A-F]+):', dis)[-1], 16)
m = re.findall(r's_getpc_b64.*// ([0-9A-F]+):', dis)
pc = int(m[0], 16) + 4 if m else 0
nsl = (end - pc) // 1024 - 1
print('code bytes', end, 'slices', nsl)
txt = txt.replace('NSLICE', str(nsl))
open(OUT, 'w').write(txt)
print('wrote', OUT, len(L), 'lines')
```

```python
import sys
def ARG(k,d):
    for a in sys.argv[1:]:
        if a.startswith('--%s='%k): return a.split('=')[1]
    return d
NAME = "adaLN_cond__compressed_kv_cla__dense_activation_relu__decode"
STAMPS = '--stamps' in sys.argv
OUT = [a for a in sys.argv[1:] if not a.startswith('--')]
OUT = OUT[0] if OUT else 'cdna_kernels/%s.s' % NAME

L = []
def e(s=''):
    for ln in s.split('\n'):
        L.append('    ' + ln.strip() if ln.strip() and not ln.strip().endswith(':') else ln.strip())
_lab = [0]
def lab(p='L'):
    _lab[0] += 1
    return '%s_%d' % (p, _lab[0])
def nop(n):
    while n > 0:
        k = min(n, 16); e('s_nop %d' % (k-1)); n -= k

WS_GEN=0; WS_MOD=0x1000; MOD_KH=0x4000; WS_Q=0x10000; WS_QAF=0x20000; WS_QA=0x28000
WS_STATS=0x900000; WS_CTX=0x60000; WS_X1P=0x70000; WS_MLP=0x80000; WS_STAMP=0xC0000; WS_PART=0x100000
WS_SIZE=0x980000
SCR=131072
XX=SCR; RED=SCR+4096
QSCALE = (128**-0.5)*1.4426950408889634
import struct
def f2u(f): return struct.unpack('<I', struct.pack('<f', f))[0]

sID='s3'; sW='s4'; sN='s42'; WS='s[44:47]'; SA='s[48:51]'; SB='s[52:55]'
SEL_LO='s56'; SEL_HI='s57'
vT='v0'; vL='v1'; vN='v2'; vG='v3'
MK=[4,5,6,7]; AB=[8,12]; ACC=16
WR=32; XR=192

nst=[0]
LATE = '--late' in sys.argv
ATT = '--att' in sys.argv
EARLY = '--early' in sys.argv
def estamp(k, wait=None):
    if STAMPS and EARLY:
        if wait is not None: e('s_waitcnt vmcnt(%d)' % wait)
        e('s_memrealtime s[%d:%d]' % (60+2*k, 61+2*k))
def stamp(k):
    if EARLY and 5 <= k <= 8: return
    if STAMPS and not ((LATE or ATT) and 1 <= k <= 8): e('s_memrealtime s[%d:%d]' % (60+2*k, 61+2*k))
def lstamp(k):
    if STAMPS and LATE: e('s_memrealtime s[%d:%d]' % (60+2*k, 61+2*k))
def astamp(k):
    if STAMPS and ATT: e('s_memrealtime s[%d:%d]' % (60+2*k, 61+2*k))

def srd(q, plo, size, add=None):
    b = int(q[2:q.index(':')])
    if add is None:
        e('s_mov_b32 s%d, s%d' % (b, plo)); e('s_mov_b32 s%d, s%d' % (b+1, plo+1))
    else:
        e('s_add_u32 s%d, s%d, %s' % (b, plo, add)); e('s_addc_u32 s%d, s%d, 0' % (b+1, plo+1))
    e('s_mov_b32 s%d, %d' % (b+2, size)); e('s_mov_b32 s%d, 0x20000' % (b+3))

QW = list(range(0, 96, 4)) + list(range(160, 192, 4)) + list(range(192, 224, 4))
def aq(i): return 'a[%d:%d]' % (QW[i], QW[i]+3)
def gemv(n, wbase, xbase, acc=ACC, wait=None):
    def ands(i):
        a = AB[i & 1]
        for d in range(4): e('v_and_b32 v%d, v%d, v%d' % (a+d, xbase+i, MK[d]))
    ands(0)
    for i in range(n):
        if i+1 < n: ands(i+1)
        else: nop(2)
        if wait: wait(i)
        a = AB[i & 1]
        c = '0' if i == 0 else 'v[%d:%d]' % (acc, acc+3)
        b_ = aq(i) if wbase == 'A' else 'v[%d:%d]' % (wbase+4*i, wbase+4*i+3)
        e('v_mfma_f32_16x16x32_bf16 v[%d:%d], v[%d:%d], %s, %s' % (acc, acc+3, a, a+3, b_, c))
    nop(8)

def wave_reduce(v, op='add', tmp=None):
    ins = 'v_add_f32_dpp' if op == 'add' else 'v_max_f32_dpp'
    for sh in (1,2,4,8):
        nop(2)
        if op == 'add': e('%s v%d, v%d, v%d row_shr:%d row_mask:0xf bank_mask:0xf bound_ctrl:0' % (ins, v, v, v, sh))
        else: e('%s v%d, v%d, v%d row_shr:%d row_mask:0xf bank_mask:0xf' % (ins, v, v, v, sh))
    nop(2); e('%s v%d, v%d, v%d row_bcast:15 row_mask:0xa bank_mask:0xf' % (ins, v, v, v))
    nop(2); e('%s v%d, v%d, v%d row_bcast:31 row_mask:0xc bank_mask:0xf' % (ins, v, v, v))
    nop(1)

def tagchk(tags):
    e('v_sad_u32 v30, v%d, %s, 0' % (tags[0], sN))
    for t in tags[1:]: e('v_sad_u32 v30, v%d, %s, v30' % (t, sN))
    e('v_cmp_ne_u32 vcc, 0, v30')
def poll(loads, tags, sleep=1, pre=None):
    l0 = lab('P'); l1 = lab('PD')
    e(l0 + ':')
    for s_ in loads: e(s_)
    e('s_waitcnt vmcnt(0)')
    tagchk(tags)
    e('s_cbranch_vccz %s' % l1)
    e('s_sub_u32 s59, s59, 1')
    e('s_cbranch_scc1 L_END')
    if sleep: e('s_sleep %d' % sleep)
    e('s_branch %s' % l0)
    e(l1 + ':')
def pollp(K, loads, tags, regs, sleep=0):
    P = sum(1 for x in loads(0) if x.startswith('buffer_'))
    l0 = lab('P'); ld = lab('PD'); dn = [lab('PK') for _ in range(K)]
    for k in range(K):
        for s_ in loads(k): e(s_)
    e(l0 + ':')
    for k in range(K):
        e('s_waitcnt vmcnt(%d)' % ((K-1)*P))
        tagchk(tags(k))
        e('s_cbranch_vccz %s' % dn[k])
        if k == 0:
            e('s_sub_u32 s59, s59, 1'); e('s_cbranch_scc1 L_END')
        if sleep: e('s_sleep %d' % sleep)
        for s_ in loads(k): e(s_)
    e('s_branch %s' % l0)
    for k in range(K-1, 0, -1):
        e(dn[k] + ':')
        e('s_waitcnt vmcnt(%d)' % ((K-1-k)*P if False else 0)) if False else None
        for d_, s_ in zip(regs(K), regs(k)): e('v_mov_b32 v%d, v%d' % (d_, s_))
        e('s_branch %s' % ld)
    e(dn[0] + ':')
    for d_, s_ in zip(regs(K), regs(0)): e('v_mov_b32 v%d, v%d' % (d_, s_))
    e(ld + ':')

def exec_lt(n, lbl):
    e('v_cmp_gt_u32 vcc, %d, %s' % (n, vT)); e('s_and_saveexec_b64 s[14:15], vcc'); e('s_cbranch_execz %s' % lbl)
def exec_restore(lbl):
    e(lbl + ':'); e('s_mov_b64 exec, s[14:15]')

def unpack(lo, hi, src):
    e('v_lshlrev_b32 v%d, 16, v%d' % (lo, src)); e('v_and_b32 v%d, 0xffff0000, v%d' % (hi, src))

def barrier(lds=True):
    if lds: e('s_waitcnt lgkmcnt(0)')
    e('s_barrier')

def hash_nonce():
    e('s_waitcnt lgkmcnt(0)')
    e('s_mul_i32 s8, %s, 0x9e3779b1' % sN); e('s_add_u32 s97, s8, 0x7f4a7c15')
    e('s_and_b32 %s, s97, 0xbfffbfff' % sN)

TAILR = int(ARG('tail', 6))
def swz(k): return ((k & 3) << 2) | ((k >> 2) & 3)
S0C_A = int(ARG('s0a', 8))
S1_A, S2_A = int(ARG('s1a',0)), int(ARG('s2a',22))
def dma_setup():
    e('s_lshl_b32 s8, s3, 17')
    srd('s[92:95]', 18, 131072, add='s8')
    e('v_lshlrev_b32 v19, 4, v1')
    e('s_lshl_b32 s96, s4, 15')
W0ROWS = 99
def dma_rows(r0, r1):
    e('v_lshlrev_b32 v31, 4, v1')
    lskip = lab('DS')
    for r in range(r0, r1):
        if r1 == 32 and r == W0ROWS:
            e('s_cmp_eq_u32 s4, 0'); e('s_cbranch_scc1 %s' % lskip)
        e('s_mov_b32 m0, s96')
        e('v_xor_b32 v30, %d, v31' % (swz(r) << 4))
        e('buffer_load_dwordx4 v30, s[92:95], s96 offen nt lds')
        e('s_add_u32 s96, s96, 1024')
    if False:
        e('s_lshl_b32 s96, s4, 12'); e('s_add_u32 s96, s96, %d' % (16*1024)); e('s_lshl_b32 s8, s4, 4'); e('v_xor_b32 v31, s8, v31')
        for i in range(4):
            e('s_mov_b32 m0, s96')
            e('v_xor_b32 v30, %d, v31' % (i << 6))
            e('buffer_load_dwordx4 v30, s[92:95], s96 offen nt lds')
            e('s_add_u32 s96, s96, 1024')
        e(lskip + ':')

NEARLY = int(ARG('ne', 0))
NE5, NEM, NEN = int(ARG('ne5', 0)), int(ARG('nem', 0)), int(ARG('nen', 0))
def late_weights(first, sfx):
    D_, N_, M_ = 'L_LW_D'+sfx, 'L_LW_S0N'+sfx, 'L_LW_MLP'+sfx
    lo, hi = (0, NE5) if first else (NE5, 40)
    e('s_cmp_ge_u32 s3, 107'); e('s_cbranch_scc1 %s' % D_)
    e('s_cmp_ge_u32 s3, 67'); e('s_cbranch_scc1 %s' % N_)
    e('s_cmp_ge_u32 s3, 40'); e('s_cbranch_scc1 %s' % M_)
    e('s_mul_i32 s5, s3, 52'); e('s_lshr_b32 s5, s5, 8'); e('s_mul_i32 s6, s5, 5'); e('s_sub_u32 s6, s3, s6')
    srd(SA, 26, 4096*1280)
    e('s_lshl_b32 s8, s5, 9'); e('s_lshl_b32 s9, s4, 7'); e('s_add_u32 s8, s8, s9'); e('v_lshl_add_u32 v20, v3, 5, s8')
    e('s_movk_i32 s10, 1280'); e('v_mul_lo_u32 v20, v20, s10'); e('s_lshl_b32 s9, s6, 8'); e('v_lshlrev_b32 v22, 4, v2'); e('v_add3_u32 v20, v20, v22, s9')
    for i in range(lo, min(hi, 32)):
        e('s_mov_b32 s12, %d' % (i*1280)); e('buffer_load_dwordx4 %s, v20, %s, s12 offen nt' % (aq(i), SA))
    e('s_branch %s' % D_)
    e(M_ + ':')
    lo, hi = (0, NEM) if first else (NEM, 40)
    e('s_sub_u32 s5, s3, 40')
    if lo < 20:
        srd(SA, 30, 640*3456)
        e('v_lshrrev_b32 v20, 3, v2'); e('v_lshl_add_u32 v20, v20, 2, v3'); e('v_mul_u32_u24 v20, 20, v20')
        e('s_mul_i32 s8, s4, 160'); e('v_add_u32 v20, s8, v20')
        e('s_movk_i32 s10, 3456'); e('v_mul_lo_u32 v20, v20, s10'); e('v_and_b32 v22, 7, v2'); e('v_lshlrev_b32 v22, 4, v22')
        e('s_lshl_b32 s9, s5, 7'); e('v_add3_u32 v20, v20, v22, s9')
        for i in range(lo, min(hi, 20)):
            e('s_mov_b32 s12, %d' % (i*3456)); e('buffer_load_dwordx4 %s, v20, %s, s12 offen nt' % (aq(i), SA))
    if hi > 20:
        srd(SA, 32, 1728*1280)
        e('s_lshl_b32 s8, s5, 6'); e('s_lshl_b32 s9, s4, 4'); e('s_add_u32 s8, s8, s9'); e('v_lshl_add_u32 v20, v3, 2, s8')
        e('s_movk_i32 s10, 1280'); e('v_mul_lo_u32 v20, v20, s10'); e('v_lshl_add_u32 v20, v2, 4, v20')
        for i in range(max(lo, 20), hi):
            e('s_mov_b32 s12, %d' % ((i-20)*256)); e('buffer_load_dwordx4 %s, v20, %s, s12 offen nt' % (aq(i), SA))
    e('s_branch %s' % D_)
    e(N_ + ':')
    lo, hi = (0, NEN) if first else (NEN, 40)
    if lo < 20:
        e('s_sub_u32 s6, s3, 47')
        srd(SA, 36, 640*7680)
        e('v_lshrrev_b32 v20, 3, v2'); e('v_lshl_add_u32 v20, v20, 2, v3'); e('v_mul_u32_u24 v20, 20, v20')
        e('s_mul_i32 s8, s4, 160'); e('v_add_u32 v20, s8, v20')
        e('s_movk_i32 s10, 7680'); e('v_mul_lo_u32 v20, v20, s10'); e('v_and_b32 v22, 7, v2'); e('v_lshlrev_b32 v22, 4, v22')
        e('s_lshl_b32 s11, s6, 7'); e('v_add3_u32 v20, v20, v22, s11')
        for i in range(lo, min(hi, 20)):
            e('s_mov_b32 s12, %d' % (i*7680)); e('buffer_load_dwordx4 %s, v20, %s, s12 offen nt' % (aq(i), SA))
    e(D_ + ':')

HDR = """; Fused adaLN + compressed-KV attention (absorbed form) + ReLU MLP decode step. One persistent launch, 256 workgroups (one per CU).
; All spin loops are bounded. Workgroups with id >= 256 exit at once."""
for ln in HDR.split('\n'): L.append(ln)
L.append('; @launch grid=(256,1,1) block=(256,1,1) lds=163840')
L.append('.amdgcn_target "amdgcn-amd-amdhsa--gfx950"')
L.append('.text')
L.append('.globl %s_kernel' % NAME)
L.append('.p2align 8')
L.append('.type %s_kernel,@function' % NAME)
L.append('%s_kernel:' % NAME)
e('s_cmp_ge_u32 s2, 256')
e('s_cbranch_scc1 L_END')
stamp(0)
if '--dbg' in sys.argv:
    for k in range(1, 16): e('s_mov_b32 s%d, 0' % (60+2*k))
e('s_load_dwordx16 s[16:31], s[0:1], 0')
e('s_load_dwordx8 s[32:39], s[0:1], 64')
e('s_load_dwordx2 s[40:41], s[0:1], 104')
e('s_sub_u32 s3, s2, 40'); e('s_add_u32 s5, s2, 88'); e('s_cmp_lt_u32 s2, 40'); e('s_cselect_b32 s3, s5, s3')
e('s_cmp_ge_u32 s2, 128'); e('s_cselect_b32 s3, s2, s3')
e('v_and_b32 v1, 63, v0')
e('v_and_b32 v2, 15, v0')
e('v_bfe_u32 v3, v0, 4, 2')
e('v_lshrrev_b32 v20, 6, v0')
e('s_mov_b32 s56, 0x01000100')
e('s_mov_b32 s57, 0x03020302')
e('s_mov_b32 s59, 0x10000')
e('v_readfirstlane_b32 s4, v20')
def masks():
    e('v_and_b32 v20, 1, v0'); e('v_lshlrev_b32 v20, 4, v20'); e('v_mov_b32 v21, 0xffff'); e('v_lshlrev_b32 v21, v20, v21')
    e('v_bfe_u32 v22, v0, 1, 2')
    for d in range(4):
        e('v_cmp_eq_u32 vcc, %d, v22' % d); nop(2); e('v_cndmask_b32 v%d, 0, v21, vcc' % MK[d])
e('v_lshrrev_b32 v24, 3, v2'); e('v_lshl_add_u32 v24, v24, 2, v3'); e('v_mul_u32_u24 v24, 10, v24')
e('s_mul_i32 s8, s4, 80'); e('v_add_u32 v24, s8, v24')
if ARG('pf','0') == '1':
    e('s_getpc_b64 s[10:11]')
    e('L_PC:')
    e('s_lshr_b32 s5, s2, 3'); e('s_mul_i32 s6, s4, 8'); e('s_add_u32 s5, s5, s6'); e('s_and_b32 s5, s5, 31')
    e('s_min_u32 s5, s5, NSLICE'); e('s_lshl_b32 s5, s5, 10')
    e('v_lshlrev_b32 v20, 4, v1'); e('v_add_u32 v20, s5, v20')
    e('global_load_dwordx4 v[248:251], v20, s[10:11]')
e('s_waitcnt lgkmcnt(0)')
e('s_load_dword s42, s[40:41], 0')
srd(WS, 40, WS_SIZE)
e('s_cmp_lt_u32 s3, 64'); e('s_cbranch_scc1 L_S1')
e('s_cmp_lt_u32 s3, 88'); e('s_cbranch_scc1 L_NOS0')
e('s_cmp_ge_u32 s3, 128'); e('s_cbranch_scc1 L_S2ONLY')

UK = 72
def s2_issue():
    e('s_sub_u32 s8, s3, 128'); e('s_lshr_b32 s8, s8, 2'); e('s_and_b32 s9, s3, 3')
    srd(SB, 22, 512*8192)
    e('s_lshl_b32 s9, s9, 7'); e('s_lshl_b32 s10, s4, 5'); e('s_add_u32 s9, s9, s10')
    e('v_add_u32 v20, s9, v2'); e('v_lshlrev_b32 v20, 13, v20'); e('v_lshlrev_b32 v21, 4, v3')
    e('s_lshl_b32 s10, s8, 8'); e('v_add3_u32 v20, v20, v21, s10')
    for tt in range(2):
        e('s_mov_b32 s12, %d' % (tt*16*8192))
        for ks in range(4):
            r = UK + 16*tt + 4*ks
            e('buffer_load_dwordx4 v[%d:%d], v20, %s, s12 offen offset:%d nt' % (r, r+3, SB, ks*64))
def s0_issue():
    e('s_lshr_b32 s6, s5, 1'); e('s_and_b32 s7, s5, 1')
    srd(SA, 36, 640*7680); srd(SB, 34, 1280)
    e('s_mul_i32 s9, s7, 320'); e('v_add_u32 v20, s9, v24')
    e('s_movk_i32 s10, 7680'); e('v_mul_lo_u32 v20, v20, s10')
    e('v_and_b32 v21, 7, v2'); e('v_lshlrev_b32 v21, 4, v21')
    e('s_lshl_b32 s11, s6, 7'); e('v_add3_u32 v20, v20, v21, s11')
    e('v_lshlrev_b32 v21, 2, v0'); e('s_mul_i32 s12, s7, 640')
    e('buffer_load_dword v25, v21, %s, s12 offen' % SB)
    for i in range(10):
        e('s_mov_b32 s12, %d' % (i*7680)); e('buffer_load_dwordx4 v[%d:%d], v20, %s, s12 offen nt' % (WR+4*i, WR+4*i+3, SA))
def gemv_w8_tail(nx, vm=0, rowreg=24, wb=WR):
    e('v_lshlrev_b32 v21, 2, v%d' % rowreg); e('v_add_u32 v21, %d, v21' % XX)
    for i in range(0, nx, 2): e('ds_read_b64 v[%d:%d], v21 offset:%d' % (XR+i, XR+i+1, 4*i))
    e('v_lshrrev_b32 v20, 3, v2'); e('v_lshrrev_b32 v21, 1, v3'); e('v_cmp_eq_u32 s[12:13], v20, v21')
    e('s_lshl_b32 s8, s4, 1'); e('v_add_u32 v20, s8, v20'); e('v_lshlrev_b32 v20, 8, v20')
    e('v_and_b32 v21, 7, v2'); e('v_lshlrev_b32 v21, 5, v21'); e('v_and_b32 v22, 1, v3'); e('v_lshlrev_b32 v22, 4, v22')
    e('v_add3_u32 v20, v20, v21, v22'); e('v_add_u32 v20, %d, v20' % RED)
    e('s_waitcnt vmcnt(%d) lgkmcnt(0)' % vm)
    gemv(nx, wb, XR)
    e('s_mov_b64 s[14:15], exec'); e('s_mov_b64 exec, s[12:13]')
    e('ds_write_b128 v20, v[%d:%d]' % (ACC, ACC+3))
    e('s_mov_b64 exec, s[14:15]')
    barrier()
def s0_finish(vm):
    e('s_waitcnt vmcnt(%d)' % (10+vm))
    unpack(26, 27, 25)
    for r in (26, 27):
        e('v_mul_f32 v28, 0xbfb8aa3b, v%d' % r); e('v_exp_f32 v28, v28'); nop(1)
        e('v_add_f32 v28, 1.0, v28'); e('v_rcp_f32 v28, v28'); nop(1); e('v_mul_f32 v%d, v%d, v28' % (r, r))
    e('v_cvt_pk_bf16_f32 v26, v26, v27')
    e('v_perm_b32 v28, v26, v26, %s' % SEL_LO); e('v_perm_b32 v29, v26, v26, %s' % SEL_HI)
    e('v_lshlrev_b32 v21, 3, v0'); e('v_add_u32 v21, %d, v21' % XX)
    l = lab(); exec_lt(160, l); e('ds_write_b64 v21, v[28:29]'); exec_restore(l)
    barrier()
    gemv_w8_tail(10, vm)
    l = lab(); exec_lt(32, l)
    e('v_lshlrev_b32 v20, 3, v0'); e('v_add_u32 v21, %d, v20' % RED)
    for s_ in range(8): e('ds_read_b64 v[%d:%d], v21 offset:%d' % (XR+2*s_, XR+2*s_+1, 256*s_))
    e('s_lshl_b32 s8, s7, 14'); e('s_lshl_b32 s9, s6, 8'); e('s_add_u32 s8, s8, s9'); e('s_add_u32 s8, s8, %d' % WS_MOD)
    e('v_mov_b32 v23, %s' % sN)
    e('s_waitcnt lgkmcnt(0)')
    for s_ in (4, 2, 1):
        for k in range(s_): e('v_pk_add_f32 v[%d:%d], v[%d:%d], v[%d:%d]' % (XR+2*k, XR+2*k+1, XR+2*k, XR+2*k+1, XR+2*(k+s_), XR+2*(k+s_)+1))
    e('v_cvt_pk_bf16_f32 v22, v%d, v%d' % (XR, XR+1))
    e('buffer_store_dwordx2 v[22:23], v20, %s, s8 offen sc1' % WS)
    exec_restore(l)

def s2_finish(arows):
    e('s_sub_u32 s5, s3, 128'); e('s_lshr_b32 s5, s5, 2'); e('s_and_b32 s6, s3, 3')
    l = lab(); exec_lt(128, l)
    e('v_lshlrev_b32 v20, 3, v0'); e('s_lshl_b32 s8, s5, 10'); e('s_add_u32 s8, s8, %d' % WS_Q)
    st = lambda k: 140 + 2*k
    pollp(3, lambda k: ['buffer_load_dwordx2 v[%d:%d], v20, %s, s8 offen sc1' % (st(k), st(k)+1, WS)],
          lambda k: [st(k)+1], lambda k: [st(k)] if k < 3 else [136], sleep=1)
    e('v_cvt_pk_bf16_f32 v136, v136, v136')
    e('v_lshlrev_b32 v21, 1, v0'); e('v_add_u32 v21, %d, v21' % XX); e('ds_write_b16 v21, v136')
    exec_restore(l)
    stamp(2)
    barrier()
    e('v_lshlrev_b32 v21, 4, v3'); e('v_add_u32 v21, %d, v21' % XX)
    for ks in range(4): e('ds_read_b128 v[%d:%d], v21 offset:%d' % (XR+4*ks, XR+4*ks+3, 64*ks))
    e('s_lshl_b32 s8, s6, 3'); e('s_lshl_b32 s9, s4, 1'); e('s_add_u32 s8, s8, s9'); e('s_lshl_b32 s8, s8, 10')
    e('s_lshl_b32 s9, s5, 4'); e('s_add_u32 s8, s8, s9'); e('s_add_u32 s8, s8, %d' % WS_QA)
    e('v_lshlrev_b32 v20, 10, v2'); e('v_lshrrev_b32 v21, 1, v3'); e('v_lshlrev_b32 v21, 9, v21'); e('v_and_b32 v24, 1, v3'); e('v_lshlrev_b32 v24, 3, v24')
    e('v_add3_u32 v20, v20, v21, v24')
    e('v_cmp_eq_u32 s[10:11], 1, v2')
    e('s_mov_b32 s9, %s' % hex(f2u(QSCALE)))
    e('s_waitcnt vmcnt(%d) lgkmcnt(0)' % arows)
    for ks in range(4):
        for tt in range(2):
            r = UK + 16*tt + 4*ks; a = 208 + 4*tt
            e('v_mfma_f32_16x16x32_bf16 v[%d:%d], v[%d:%d], v[%d:%d], %s' % (a, a+3, r, r+3, XR+4*ks, XR+4*ks+3, '0' if ks == 0 else 'v[%d:%d]' % (a, a+3)))
    nop(8)
    for tt, m in ((1, 's[10:11]'),):
        for r in range(4): e('v_cndmask_b32 v%d, v%d, v%d, %s' % (208+r, 208+r, 208+4*tt+r, m))
    for r in range(4): e('v_mul_f32 v%d, s9, v%d' % (208+r, 208+r))
    e('v_cvt_pk_bf16_f32 v22, v208, v209'); e('v_cvt_pk_bf16_f32 v23, v210, v211')
    e('v_cmp_gt_u32 vcc, 2, v2'); e('s_and_saveexec_b64 s[14:15], vcc')
    e('buffer_store_dwordx2 v[22:23], v20, %s, s8 offen sc1' % WS)
    e('s_mov_b64 exec, s[14:15]')
    estamp(6)
    e('s_waitcnt vmcnt(0)'); e('s_barrier')
    l = lab(); exec_lt(8, l)
    e('v_lshlrev_b32 v20, 11, v0'); e('s_sub_u32 s8, s3, 128'); e('s_lshl_b32 s8, s8, 4'); e('s_add_u32 s8, s8, %d' % WS_QAF); e('v_mov_b32 v22, %s' % sN)
    e('buffer_store_dword v22, v20, %s, s8 offen sc1' % WS)
    exec_restore(l)
    stamp(3)
e('s_sub_u32 s5, s3, 88')
s0_issue()
masks()
hash_nonce()
s0_finish(0)
stamp(1)
dma_setup(); dma_rows(0, 32)
e('s_branch L_DMA_D')

e('L_NOS0:')
masks()
hash_nonce()
dma_setup(); dma_rows(0, 32)
e('s_branch L_DMA_D')

e('L_S1:')
e('s_lshr_b32 s5, s3, 1'); e('s_and_b32 s6, s3, 1')
srd(SA, 20, 640*8192); srd(SB, 16, 1280)
e('v_mul_u32_u24 v21, 20, v1')
e('buffer_load_dwordx4 v[124:127], v21, %s, 0 offen' % SB); e('buffer_load_dword v128, v21, %s, 0 offen offset:16' % SB)
e('v_lshlrev_b32 v21, 3, v0'); e('buffer_load_dwordx2 v[130:131], v21, %s, 0 offen' % SB)
masks()
e('v_lshrrev_b32 v24, 3, v2'); e('v_lshl_add_u32 v24, v24, 2, v3'); e('v_mul_u32_u24 v24, 20, v24')
e('s_mul_i32 s8, s4, 160'); e('v_add_u32 v24, s8, v24')
e('v_lshlrev_b32 v23, 13, v24'); e('v_and_b32 v21, 7, v2'); e('v_lshlrev_b32 v21, 4, v21')
e('s_lshl_b32 s10, s5, 8'); e('s_lshl_b32 s11, s6, 7'); e('s_add_u32 s10, s10, s11'); e('v_add3_u32 v23, v23, v21, s10')
if ARG('wq', 'early') == 'late': e('s_waitcnt vmcnt(0)')
for i in range(20):
    e('s_mov_b32 s12, %d' % (i*8192)); e('buffer_load_dwordx4 v[%d:%d], v23, %s, s12 offen nt' % (WR+4*i, WR+4*i+3, SA))
dma_setup(); dma_rows(0, S1_A)
e('s_waitcnt vmcnt(%d)' % (20+S1_A))
for k in range(5): unpack(132+2*k, 133+2*k, 124+k)
e('v_add_f32 v20, v132, v133')
for k in range(2, 10): e('v_add_f32 v20, v20, v%d' % (132+k))
wave_reduce(20); e('v_readlane_b32 s8, v20, 63'); nop(2)
e('v_mov_b32 v21, s8'); e('v_mul_f32 v21, %s, v21' % hex(f2u(1/640.)))
e('v_mov_b32 v20, 0')
for k in range(10):
    e('v_sub_f32 v22, v%d, v21' % (132+k)); e('v_fmac_f32 v20, v22, v22')
wave_reduce(20); e('v_readlane_b32 s8, v20, 63'); nop(2)
e('v_mov_b32 v22, s8'); e('v_mul_f32 v22, %s, v22' % hex(f2u(1/640.))); e('v_add_f32 v22, %s, v22' % hex(f2u(1e-5)))
e('v_rsq_f32 v22, v22'); nop(1)
unpack(132, 133, 130); unpack(134, 135, 131)
for r in range(132, 136):
    e('v_sub_f32 v%d, v%d, v21' % (r, r)); e('v_mul_f32 v%d, v%d, v22' % (r, r))
hash_nonce()
l = lab(); exec_lt(160, l)
e('v_lshlrev_b32 v20, 4, v0')
e('s_mov_b32 s8, %d' % WS_MOD); e('s_mov_b32 s9, %d' % (WS_MOD+2560)); e('s_mov_b32 s10, %d' % (WS_MOD+MOD_KH)); e('s_mov_b32 s11, %d' % (WS_MOD+MOD_KH+2560))
st = lambda k: 144 + 16*k
pollp(2, lambda k: ['buffer_load_dwordx4 v[%d:%d], v20, %s, %s offen sc1' % (st(k)+4*j, st(k)+4*j+3, WS, so) for j, so in enumerate(['s8', 's10', 's9', 's11'])],
      lambda k: [st(k)+1+2*j for j in range(8)], lambda k: [st(k)+2*j for j in range(8)] if k < 2 else list(range(176, 184)))
unpack(8, 9, 176); unpack(10, 11, 177); unpack(12, 13, 178); unpack(14, 15, 179)
e('v_pk_add_f32 v[8:9], v[8:9], v[12:13]'); e('v_pk_add_f32 v[10:11], v[10:11], v[14:15]')
unpack(12, 13, 180); unpack(14, 15, 181); unpack(16, 17, 182); unpack(18, 19, 183)
e('v_pk_add_f32 v[12:13], v[12:13], v[16:17]'); e('v_pk_add_f32 v[14:15], v[14:15], v[18:19]')
e('v_pk_fma_f32 v[8:9], v[132:133], v[12:13], v[8:9]'); e('v_pk_fma_f32 v[10:11], v[134:135], v[14:15], v[10:11]')
e('v_pk_add_f32 v[8:9], v[8:9], v[132:133]'); e('v_pk_add_f32 v[10:11], v[10:11], v[134:135]')
e('v_cvt_pk_bf16_f32 v26, v8, v9'); e('v_cvt_pk_bf16_f32 v27, v10, v11')
e('v_perm_b32 v28, v26, v26, %s' % SEL_LO); e('v_perm_b32 v29, v26, v26, %s' % SEL_HI)
e('v_perm_b32 v30, v27, v27, %s' % SEL_LO); e('v_perm_b32 v31, v27, v27, %s' % SEL_HI)
e('v_add_u32 v21, %d, v20' % XX); e('ds_write_b128 v21, v[28:31]')
exec_restore(l)
stamp(1)
barrier()
gemv_w8_tail(20, S1_A)
l = lab(); exec_lt(64, l)
e('v_lshlrev_b32 v20, 2, v0'); e('v_add_u32 v20, %d, v20' % RED)
for s_ in range(8): e('ds_read_b32 v%d, v20 offset:%d' % (XR+s_, 256*s_))
e('s_lshl_b32 s8, s5, 10'); e('s_lshl_b32 s9, s6, 9'); e('s_add_u32 s8, s8, s9'); e('s_add_u32 s8, s8, %d' % WS_Q)
e('v_mov_b32 v23, %s' % sN); e('v_lshlrev_b32 v20, 3, v0')
e('s_waitcnt lgkmcnt(0)')
e('v_pk_add_f32 v[%d:%d], v[%d:%d], v[%d:%d]' % (XR, XR+1, XR, XR+1, XR+4, XR+5)); e('v_pk_add_f32 v[%d:%d], v[%d:%d], v[%d:%d]' % (XR+2, XR+3, XR+2, XR+3, XR+6, XR+7))
e('v_pk_add_f32 v[%d:%d], v[%d:%d], v[%d:%d]' % (XR, XR+1, XR, XR+1, XR+2, XR+3)); e('v_add_f32 v22, v%d, v%d' % (XR, XR+1))
e('buffer_store_dwordx2 v[22:23], v20, %s, s8 offen sc1' % WS)
exec_restore(l)
stamp(2)
dma_rows(S1_A, 32)
e('s_branch L_DMA_D')

e('L_S2ONLY:')
masks(); hash_nonce()
s2_issue(); dma_setup()
if ARG('s2w', '1') == '1': e('s_waitcnt vmcnt(0)')
dma_rows(0, S2_A)
s2_finish(S2_A)
dma_rows(S2_A, 32)
e('s_branch L_DMA_D')

e('L_DMA_D:')
e('v_lshlrev_b32 v21, 4, v1')
stamp(4)
QA_ADDR=224; S_ACC=208; QB=232
e('v_and_b32 v20, 31, v1'); e('v_lshrrev_b32 v22, 5, v1')
e('v_and_b32 v23, 3, v20'); e('v_lshlrev_b32 v23, 2, v23'); e('v_bfe_u32 v24, v20, 2, 2'); e('v_or_b32 v23, v23, v24')
e('v_xor_b32 v23, v23, v22'); e('v_lshlrev_b32 v23, 4, v23')
e('s_lshl_b32 s8, s4, 15'); e('v_lshlrev_b32 v24, 10, v20'); e('v_add3_u32 v23, v23, v24, s8')
for jj in range(8): e('v_xor_b32 v%d, %d, v23' % (QA_ADDR+jj, jj << 5))
e('v_lshlrev_b32 v%d, 4, v1' % QB); e('v_add_u32 v%d, %d, v%d' % (QB, SCR, QB))
e('s_waitcnt vmcnt(0)')
for j in range(32):
    e('ds_read_b128 a[%d:%d], v%d offset:%d' % (4*j, 4*j+3, QA_ADDR+(j & 7), (j >> 3)*256))
    if j >= 12: e('s_waitcnt lgkmcnt(12)')
e('s_cmp_lg_u32 s4, 0'); e('s_cbranch_scc1 L_E3D')
e('s_and_b32 s8, s3, 7'); e('s_lshl_b32 s8, s8, 11'); e('s_add_u32 s8, s8, %d' % WS_QAF)
pollp(2, lambda k: ['buffer_load_dword v%d, v21, %s, s8 offen sc1' % (26+2*k, WS), 'buffer_load_dword v%d, v21, %s, s8 offen offset:1024 sc1' % (27+2*k, WS)], lambda k: [26+2*k, 27+2*k], lambda k: [], sleep=1)
e('L_E3D:')
e('s_barrier')
stamp(5)
e('s_mov_b32 s9, %d' % WS_QA)
e('buffer_load_dwordx4 a[224:227], v21, %s, s9 offen sc1' % WS)
e('s_lshl_b32 s8, s4, 13'); e('s_add_u32 s8, s8, %d' % WS_QA)
for i in range(8):
    if i == 4: e('s_add_u32 s8, s8, 4096')
    e('buffer_load_dwordx4 a[%d:%d], v21, %s, s8 offen offset:%d sc1' % (192+4*i, 195+4*i, WS, (i & 3)*1024))
e('s_lshl_b32 s8, s4, 13'); e('v_add_u32 v25, s8, v%d' % QB)
e('s_cmp_lt_u32 s3, 128'); e('s_cbranch_scc1 L_NOUV')
srd(SA, 24, 512*8192)
e('s_and_b32 s8, s3, 3'); e('s_lshl_b32 s8, s8, 7'); e('s_lshl_b32 s9, s4, 5'); e('s_add_u32 s8, s8, s9')
e('v_lshrrev_b32 v20, 1, v3'); e('v_lshlrev_b32 v20, 4, v20'); e('v_and_b32 v22, 1, v3'); e('v_lshlrev_b32 v22, 2, v22'); e('v_add3_u32 v20, v20, v22, s8')
e('v_lshlrev_b32 v20, 13, v20'); e('v_lshlrev_b32 v22, 4, v2')
e('s_sub_u32 s9, s3, 128'); e('s_lshr_b32 s9, s9, 2'); e('s_lshl_b32 s9, s9, 8'); e('v_add3_u32 v20, v20, v22, s9')
for i in range(8):
    e('s_mov_b32 s12, %d' % ((8*(i >> 2) + (i & 3))*8192)); e('buffer_load_dwordx4 v[%d:%d], v20, %s, s12 offen nt' % (WR+4*i, WR+4*i+3, SA))
e('s_waitcnt vmcnt(8)'); e('s_branch L_UVD')
e('L_NOUV:'); e('s_waitcnt vmcnt(0)')
e('L_UVD:')
for i in range(8): e('ds_write_b128 v25, a[%d:%d] offset:%d' % (192+4*i, 195+4*i, i*1024))
barrier()
stamp(6)
if ARG('exit','')=='qk': e('s_branch L_FIN')
D = 6; R = 8
def qk_read(j):
    e('ds_read_b128 a[%d:%d], v%d offset:%d' % (160+4*(j % R), 163+4*(j % R), QB, j*1024))
for j in range(1, D): qk_read(j)
for j in range(32):
    if j+D < 32: qk_read(j+D)
    if j > 0: e('s_waitcnt lgkmcnt(%d)' % min(D, 31-j))
    b = 'a[224:227]' if j == 0 else 'a[%d:%d]' % (160+4*(j % R), 163+4*(j % R))
    e('v_mfma_f32_32x32x16_bf16 v[%d:%d], a[%d:%d], %s, %s' % (S_ACC, S_ACC+15, 4*j, 4*j+3, b, '0' if j == 0 else 'v[%d:%d]' % (S_ACC, S_ACC+15)))
D = 4
if NE5 or NEM or NEN: late_weights(True, 'A')
astamp(1)
PV1=224; PV2=228
e('v_bfe_u32 v20, v1, 2, 2')
e('v_lshrrev_b32 v22, 5, v1')
e('v_bfe_u32 v23, v1, 4, 1')
e('v_bfe_u32 v24, v1, 1, 1')
e('v_lshl_or_b32 v23, v23, 1, v24')
e('v_xor_b32 v23, v23, v22')
e('v_lshl_or_b32 v23, v20, 2, v23')
e('v_lshlrev_b32 v23, 4, v23')
e('v_and_b32 v24, 1, v1'); e('v_lshlrev_b32 v24, 3, v24')
e('v_lshlrev_b32 v25, 2, v22'); e('v_add_u32 v25, v25, v20'); e('v_lshlrev_b32 v25, 10, v25')
e('s_lshl_b32 s8, s4, 8'); e('v_add3_u32 v23, v23, v24, v25'); e('v_add_u32 v23, s8, v23')
for t in range(4):
    e('v_xor_b32 v%d, %d, v23' % (PV1+t, t << 6))
    e('v_xor_b32 v%d, %d, v23' % (PV2+t, (t << 6) ^ (2 << 4))); e('v_add_u32 v%d, 8192, v%d' % (PV2+t, PV2+t))
s0 = S_ACC
e('v_max3_f32 v26, v%d, v%d, v%d' % (s0, s0+1, s0+2))
for k in range(3, 15, 2): e('v_max3_f32 v26, v26, v%d, v%d' % (s0+k, s0+k+1))
e('v_max_f32 v26, v26, v%d' % (s0+15))
e('v_mov_b32 v27, v26'); nop(2); e('v_permlane32_swap_b32 v26, v27'); nop(1); e('v_max_f32 v26, v26, v27')
astamp(2)
MX = SCR
e('v_and_b32 v20, 31, v1'); e('v_lshlrev_b32 v20, 2, v20'); e('v_add_u32 v20, %d, v20' % MX)
e('s_lshl_b32 s8, s4, 7'); e('v_add_u32 v22, s8, v20')
e('ds_write_b32 v22, v26')
barrier()
for w in range(4): e('ds_read_b32 v%d, v20 offset:%d' % (28+w, 128*w))
e('s_lshl_b32 s8, s4, 11'); e('s_add_u32 s8, s8, 8192'); e('v_add_u32 v23, s8, v%d' % QB)
e('s_waitcnt lgkmcnt(0)')
e('v_max3_f32 v26, v28, v29, v30'); e('v_max_f32 v26, v26, v31')
astamp(3)
e('v_mov_b32 v27, v26'); nop(1)
for k in range(0, 16, 2): e('v_pk_add_f32 v[%d:%d], v[%d:%d], v[26:27] neg_lo:[0,1] neg_hi:[0,1]' % (s0+k, s0+k+1, s0+k, s0+k+1))
for k in range(16): e('v_exp_f32 v%d, v%d' % (s0+k, s0+k))
e('v_pk_add_f32 v[28:29], v[%d:%d], v[%d:%d]' % (s0, s0+1, s0+2, s0+3)); e('v_pk_add_f32 v[30:31], v[%d:%d], v[%d:%d]' % (s0+4, s0+5, s0+6, s0+7))
for k in (8, 12): e('v_pk_add_f32 v[28:29], v[28:29], v[%d:%d]' % (s0+k, s0+k+1)); e('v_pk_add_f32 v[30:31], v[30:31], v[%d:%d]' % (s0+k+2, s0+k+3))
for k in range(8): e('v_cvt_pk_bf16_f32 v%d, v%d, v%d' % (s0+k, s0+2*k, s0+2*k+1))
e('v_pk_add_f32 v[28:29], v[28:29], v[30:31]')
e('ds_write_b128 v23, v[%d:%d]' % (s0, s0+3)); e('ds_write_b128 v23, v[%d:%d] offset:1024' % (s0+4, s0+7))
e('v_add_f32 v27, v28, v29')
e('v_mov_b32 v28, v27'); nop(2); e('v_permlane32_swap_b32 v27, v28'); nop(1); e('v_add_f32 v27, v27, v28')
e('ds_write_b32 v22, v27 offset:512')
barrier()
stamp(7)
for ks in range(8): e('ds_read_b128 a[%d:%d], v%d offset:%d' % (96+4*ks, 99+4*ks, QB, 8192+ks*1024))
for w in range(4): e('ds_read_b32 v%d, v20 offset:%d' % (28+w, 512+128*w))
e('s_waitcnt lgkmcnt(0)')
e('s_barrier')
e('v_add_f32 v27, v28, v29'); e('v_add_f32 v27, v27, v30'); e('v_add_f32 v27, v27, v31')
steps = [(ks, t) for half in range(2) for ks in range(8) for t in (2*half, 2*half+1)]
lds_q = []
def lds(tag, txt): e(txt); lds_q.append(tag)
def need(tag):
    idx = [i for i, t_ in enumerate(lds_q) if t_ == tag]
    if not idx: return
    k = max(idx)
    assert len(lds_q) <= 15
    n = len(lds_q) - 1 - k
    e('s_waitcnt lgkmcnt(%d)' % n); del lds_q[:k+1]
def pv_read(q):
    ks, t = steps[q]
    if ks == 4 and (t & 1) == 0:
        for k in (t, t+1): e('v_add_u32 v%d, 0x10000, v%d' % (PV1+k, PV1+k)); e('v_add_u32 v%d, 0x10000, v%d' % (PV2+k, PV2+k))
    o = (ks & 3)*16384; r = 128 + 4*(q % R)
    lds(('A', q), 'ds_read_b64_tr_b16 a[%d:%d], v%d offset:%d' % (r, r+1, PV1+t, o))
    lds(('A', q), 'ds_read_b64_tr_b16 a[%d:%d], v%d offset:%d' % (r+2, r+3, PV2+t, o))
e('v_and_b32 v20, 31, v1'); e('v_lshrrev_b32 v22, 5, v1'); e('v_and_b32 v23, 15, v20'); e('v_xor_b32 v23, v23, v22'); e('v_lshlrev_b32 v23, 4, v23')
e('v_lshlrev_b32 v24, 8, v20'); e('s_lshl_b32 s8, s4, 13'); e('s_add_u32 s8, s8, %d' % SCR); e('v_add3_u32 v23, v23, v24, s8')
e('v_lshrrev_b32 v24, 3, v1'); e('v_and_b32 v25, 7, v1'); e('v_xor_b32 v20, v24, v25'); e('v_lshlrev_b32 v20, 4, v20')
e('v_lshl_add_u32 v20, v24, 8, v20'); e('v_add_u32 v20, s8, v20')
e('v_lshlrev_b32 v22, 18, v24'); e('v_lshl_add_u32 v22, v25, 4, v22')
e('s_lshl_b32 s9, s3, 8'); e('s_add_u32 s9, s9, %d' % WS_PART); e('s_lshl_b32 s10, s4, 16'); e('s_add_u32 s9, s9, s10')
def ep_unit(s_):
    b = 128 + 8*s_; tt = 208 + 4*(s_ & 1)
    for k in range(4): e('v_cvt_pk_bf16_f32 v%d, v%d, v%d' % (tt+k, b+2*k, b+2*k+1))
    e('v_xor_b32 v24, %d, v23' % (s_ << 5))
    lds(('W', s_), 'ds_write_b128 v24, v[%d:%d]' % (tt, tt+3))
def ep_read(half, i):
    e('v_xor_b32 v24, %d, v20' % ((((8*(i & 1)) ^ (8*half)) << 4)))
    lds(('R', half, i), 'ds_read_b128 v[%d:%d], v24 offset:%d' % (192+4*i, 195+4*i, i*2048))
def ep_store(half, i):
    need(('R', half, i))
    e('s_add_u32 s10, s9, %d' % (i*(8 << 18) + half*128))
    e('buffer_store_dwordx4 v[%d:%d], v22, %s, s10 offen sc1' % (192+4*i, 195+4*i, WS))
astamp(4)
for q in range(D): pv_read(q)
for q in range(32):
    if q+D < 32: pv_read(q+D)
    need(('A', q))
    ks, t = steps[q]; r = 128 + 4*(q % R)
    e('v_mfma_f32_32x32x16_bf16 v[%d:%d], a[%d:%d], a[%d:%d], %s' % (128+16*t, 128+16*t+15, r, r+3, 96+4*ks, 99+4*ks, '0' if ks == 0 else 'v[%d:%d]' % (128+16*t, 128+16*t+15)))
    if 19 <= q <= 22: ep_unit(q-19)
    if q == 24:
        need(('W', 3))
        for i in range(4): ep_read(0, i)
    if 27 <= q <= 30: ep_store(0, q-27)
astamp(5)
nop(8)
ep_unit(4); ep_unit(5); nop(4); ep_unit(6); ep_unit(7)
stamp(8)
need(('W', 7))
for i in range(4): ep_read(1, i)
for i in range(4): ep_store(1, i)
astamp(6)
e('v_mov_b32 v128, v26'); e('v_mov_b32 v129, %s' % sN); e('v_mov_b32 v130, v27'); e('v_mov_b32 v131, %s' % sN)
e('v_lshlrev_b32 v20, 14, v1'); e('s_lshl_b32 s8, s3, 4'); e('s_lshl_b32 s9, s4, 12'); e('s_add_u32 s8, s8, s9'); e('s_add_u32 s8, s8, %d' % WS_STATS)
e('v_cmp_gt_u32 vcc, 32, v1')
e('s_waitcnt vmcnt(0)')
astamp(7)
e('s_and_saveexec_b64 s[14:15], vcc')
e('buffer_store_dwordx4 v[128:131], v20, %s, s8 offen sc1' % WS)
e('s_mov_b64 exec, s[14:15]')
e('s_barrier')
stamp(9)
if ARG('exit','')=='stats': e('s_branch L_FIN')
e('s_cmp_lt_u32 s3, 128'); e('s_cbranch_scc1 L_LATE_E')

e('s_sub_u32 s5, s3, 128'); e('s_lshr_b32 s5, s5, 2')
e('s_and_b32 s6, s3, 3')
e('v_lshlrev_b32 v21, 4, v1')
e('s_lshl_b32 s8, s5, 2'); e('s_add_u32 s8, s8, s6'); e('s_lshl_b32 s7, s8, 12'); e('s_add_u32 s7, s7, %d' % WS_STATS)
e('s_lshl_b32 s8, s8, 16'); e('s_add_u32 s8, s8, %d' % WS_PART); e('s_lshl_b32 s9, s4, 14'); e('s_add_u32 s8, s8, s9')
e('v_lshlrev_b32 v20, 12, v3'); e('v_lshl_add_u32 v20, v2, 4, v20')
e('s_lshl_b32 s9, s4, 10'); e('s_add_u32 s9, s9, s7')
st4 = ['buffer_load_dwordx4 v[%d:%d], v21, %s, s7 offen offset:%d sc1' % (208+4*k, 211+4*k, WS, 1024*k) for k in range(4)]
if ARG('s4', '2') == '2':
    pollp(3, lambda k: ['buffer_load_dwordx4 v[%d:%d], v21, %s, s9 offen sc1' % (224+4*k, 227+4*k, WS)], lambda k: [225+4*k, 227+4*k], lambda k: [], sleep=int(ARG('s4p', 0)))
    for x_ in st4: e(x_)
    for i in range(16):
        e('buffer_load_dwordx4 v[%d:%d], v20, %s, s8 offen offset:%d sc1' % (64+4*i, 67+4*i, WS, 256*i))
    e('s_waitcnt vmcnt(16)')
    tagchk([209+2*k for k in range(8)])
    e('s_cbranch_vccz L_S4P2')
    poll(st4, [209+2*k for k in range(8)], sleep=0)
    e('L_S4P2:')
else:
    poll(st4, [209+2*k for k in range(8)], sleep=int(ARG('s4sl', 1)))
    for i in range(16):
        e('buffer_load_dwordx4 v[%d:%d], v20, %s, s8 offen offset:%d sc1' % (64+4*i, 67+4*i, WS, 256*i))
stamp(10)
lstamp(1)
e('v_max3_f32 v22, v208, v212, v216'); e('v_max_f32 v22, v22, v220')
wave_reduce(22, 'max'); e('v_readlane_b32 s9, v22, 63'); nop(2)
for k in range(4):
    e('v_subrev_f32 v%d, s9, v%d' % (208+4*k, 208+4*k)); e('v_exp_f32 v%d, v%d' % (208+4*k, 208+4*k))
nop(1)
e('v_mul_f32 v22, v208, v210')
for k in range(1, 4): e('v_fmac_f32 v22, v%d, v%d' % (208+4*k, 210+4*k))
wave_reduce(22); e('v_readlane_b32 s10, v22, 63')
e('v_mov_b32 v23, v208')
for k in range(1, 4):
    e('s_cmp_eq_u32 s4, %d' % k); e('s_cselect_b64 vcc, -1, 0'); e('v_cndmask_b32 v23, v23, v%d, vcc' % (208+4*k))
e('v_cvt_pk_bf16_f32 v24, v23, v23')
e('v_and_b32 v25, 0xffff0000, v24'); e('v_sub_f32 v25, v23, v25'); e('v_cvt_pk_bf16_f32 v25, v25, v25')
e('v_lshlrev_b32 v26, 2, v0'); e('v_add_u32 v26, %d, v26' % XX)
e('ds_write_b32 v26, v24'); e('ds_write_b32 v26, v25 offset:1024')
e('v_lshrrev_b32 v26, 3, v2'); e('v_lshlrev_b32 v26, 10, v26'); e('v_lshl_add_u32 v26, v3, 6, v26'); e('s_lshl_b32 s9, s4, 8'); e('s_add_u32 s9, s9, %d' % XX); e('v_add_u32 v26, s9, v26')
e('s_waitcnt lgkmcnt(0)')
for k in range(4): e('ds_read_b128 v[%d:%d], v26 offset:%d' % (XR+4*k, XR+4*k+3, 16*k))
e('s_waitcnt lgkmcnt(0)')
lstamp(2)
e('s_waitcnt vmcnt(0)')
gemv(16, 64, XR)
stamp(11)
e('v_lshrrev_b32 v20, 1, v3'); e('s_lshl_b32 s8, s4, 1'); e('v_add_u32 v20, s8, v20'); e('v_lshlrev_b32 v20, 9, v20')
e('v_and_b32 v22, 1, v3'); e('v_lshlrev_b32 v22, 4, v22'); e('v_lshl_add_u32 v22, v2, 5, v22'); e('v_add3_u32 v20, v20, v22, %s' % 's58')
L.insert(len(L)-1, '    s_mov_b32 s58, %d' % RED)
e('ds_write_b128 v20, v[%d:%d]' % (ACC, ACC+3))
barrier()
lstamp(3)
l = lab(); exec_lt(128, l)
e('v_lshlrev_b32 v20, 2, v0'); e('v_add_u32 v22, %d, v20' % RED)
for s in range(8): e('ds_read_b32 v%d, v22 offset:%d' % (XR+s, 512*s))
e('v_mov_b32 v23, s10'); e('v_rcp_f32 v23, v23')
e('s_waitcnt lgkmcnt(0)')
for s in range(1, 8): e('v_add_f32 v%d, v%d, v%d' % (XR, XR, XR+s))
e('v_mul_f32 v23, v23, v%d' % XR); e('v_cvt_pk_bf16_f32 v23, v23, v23')
e('v_add_u32 v20, %d, v20' % XX); e('ds_write_b32 v20, v23')
exec_restore(l)
barrier()
lstamp(4)
e('v_lshlrev_b32 v26, 5, v3'); e('s_lshl_b32 s9, s4, 7'); e('s_add_u32 s9, s9, %d' % XX); e('v_add_u32 v26, s9, v26')
for k in range(2): e('ds_read_b128 v[%d:%d], v26 offset:%d' % (XR+4*k, XR+4*k+3, 16*k))
e('s_waitcnt lgkmcnt(0)')
lstamp(5)
gemv(8, WR, XR)
lstamp(6)

def red_w16(nslot_bytes):
    e('v_and_b32 v22, 1, v3'); e('v_lshlrev_b32 v22, 4, v22'); e('v_lshl_add_u32 v22, v2, 5, v22')
    e('s_mul_i32 s8, s4, %d' % nslot_bytes); e('s_add_u32 s8, s8, %d' % RED); e('v_add_u32 v20, s8, v22')
    e('v_cmp_gt_u32 vcc, 2, v3'); e('s_and_saveexec_b64 s[14:15], vcc')
    e('ds_write_b128 v20, v[%d:%d]' % (ACC, ACC+3))
    e('s_mov_b64 exec, s[14:15]')
    barrier()
def pair_sum_publish(sbase):
    l = lab(); exec_lt(64, l)
    e('v_lshlrev_b32 v20, 3, v0'); e('v_add_u32 v22, %d, v20' % RED)
    for s in range(4): e('ds_read_b64 v[%d:%d], v22 offset:%d' % (XR+2*s, XR+2*s+1, 512*s))
    e('s_waitcnt lgkmcnt(0)')
    for s in range(1, 4):
        e('v_add_f32 v%d, v%d, v%d' % (XR, XR, XR+2*s)); e('v_add_f32 v%d, v%d, v%d' % (XR+1, XR+1, XR+2*s+1))
    e('v_cvt_pk_bf16_f32 v22, v%d, v%d' % (XR, XR+1)); e('v_mov_b32 v23, %s' % sN)
    e('buffer_store_dwordx2 v[22:23], v20, %s, %s offen sc1' % (WS, sbase))
    exec_restore(l)
red_w16(512)
lstamp(7)
e('s_lshl_b32 s9, s5, 2'); e('s_add_u32 s9, s9, s6'); e('s_lshl_b32 s9, s9, 9'); e('s_add_u32 s9, s9, %d' % WS_CTX)
pair_sum_publish('s9')
stamp(12)
e('s_branch L_FIN')

e('L_LATE_E:')
late_weights(False, 'B')
e('s_cmp_ge_u32 s3, 107'); e('s_cbranch_scc1 L_FIN')
e('s_cmp_lt_u32 s3, 67'); e('s_cbranch_scc1 L_LATE_E2')
e('s_sub_u32 s6, s3, 47')
srd(SB, 34, 1280)
e('v_lshrrev_b32 v24, 3, v2'); e('v_lshl_add_u32 v24, v24, 2, v3'); e('v_mul_u32_u24 v24, 20, v24')
e('s_mul_i32 s8, s4, 160'); e('v_add_u32 v24, s8, v24')
e('v_lshlrev_b32 v21, 3, v0'); e('buffer_load_dwordx2 v[112:113], v21, %s, 0 offen' % SB)
e('s_waitcnt vmcnt(0)')
unpack(114, 115, 112); unpack(116, 117, 113)
for r in range(114, 118):
    e('v_mul_f32 v28, 0xbfb8aa3b, v%d' % r); e('v_exp_f32 v28, v28'); nop(1)
    e('v_add_f32 v28, 1.0, v28'); e('v_rcp_f32 v28, v28'); nop(1); e('v_mul_f32 v%d, v%d, v28' % (r, r))
e('v_cvt_pk_bf16_f32 v26, v114, v115'); e('v_cvt_pk_bf16_f32 v27, v116, v117')
e('v_perm_b32 v28, v26, v26, %s' % SEL_LO); e('v_perm_b32 v29, v26, v26, %s' % SEL_HI)
e('v_perm_b32 v30, v27, v27, %s' % SEL_LO); e('v_perm_b32 v31, v27, v27, %s' % SEL_HI)
e('v_lshlrev_b32 v21, 4, v0'); e('v_add_u32 v21, %d, v21' % XX)
l = lab(); exec_lt(160, l); e('ds_write_b128 v21, v[28:31]'); exec_restore(l)
barrier()
gemv_w8_tail(20, 0, wb='A')
l = lab(); exec_lt(32, l)
e('v_lshlrev_b32 v20, 3, v0'); e('v_add_u32 v21, %d, v20' % RED)
for s_ in range(8): e('ds_read_b64 v[%d:%d], v21 offset:%d' % (XR+2*s_, XR+2*s_+1, 256*s_))
e('s_lshl_b32 s8, s6, 8'); e('s_add_u32 s8, s8, %d' % WS_MOD); e('v_mov_b32 v23, %s' % sN)
e('s_waitcnt lgkmcnt(0)')
for s_ in (4, 2, 1):
    for k in range(s_): e('v_pk_add_f32 v[%d:%d], v[%d:%d], v[%d:%d]' % (XR+2*k, XR+2*k+1, XR+2*k, XR+2*k+1, XR+2*(k+s_), XR+2*(k+s_)+1))
e('v_cvt_pk_bf16_f32 v22, v%d, v%d' % (XR, XR+1))
e('buffer_store_dwordx2 v[22:23], v20, %s, s8 offen sc1' % WS)
exec_restore(l)
e('s_branch L_FIN')
e('L_LATE_E2:')
e('s_cmp_ge_u32 s3, 40'); e('s_cbranch_scc1 L_MLP')
e('s_mul_i32 s5, s3, 52'); e('s_lshr_b32 s5, s5, 8')
e('s_mul_i32 s6, s5, 5'); e('s_sub_u32 s6, s3, s6')
e('s_lshl_b32 s8, s5, 2'); e('s_add_u32 s8, s8, s4'); e('s_lshl_b32 s8, s8, 11'); e('s_add_u32 s8, s8, %d' % WS_CTX)
e('v_lshlrev_b32 v21, 3, v1')
e('s_lshl_b32 s9, s4, 9'); e('s_add_u32 s9, s9, %d' % XX); e('v_add_u32 v25, s9, v21')
e('v_lshlrev_b32 v26, 7, v3'); e('v_add_u32 v26, s9, v26')
e('v_and_b32 v22, 1, v3'); e('v_lshlrev_b32 v22, 4, v22'); e('v_lshl_add_u32 v22, v2, 5, v22')
e('s_lshl_b32 s9, s4, 9'); e('s_add_u32 s9, s9, %d' % RED); e('v_add_u32 v24, s9, v22')
e('v_cmp_gt_u32 s[12:13], 2, v3')
e('s_lshl_b32 s10, s5, 12'); e('s_lshl_b32 s11, s6, 9'); e('s_add_u32 s10, s10, s11'); e('s_add_u32 s10, s10, %d' % WS_X1P)
e('v_lshlrev_b32 v27, 3, v0'); e('v_add_u32 v23, %d, v27' % RED)
st = lambda k: 224 + 8*k
pollp(3, lambda k: ['buffer_load_dwordx2 v[%d:%d], v21, %s, s8 offen offset:%d sc1' % (st(k)+2*j, st(k)+2*j+1, WS, 512*j) for j in range(4)],
      lambda k: [st(k)+1+2*j for j in range(4)], lambda k: [st(k)+2*j for j in range(4)] if k < 3 else [248, 249, 250, 251], sleep=int(ARG('s5sl',3)))
stamp(10)
for k in range(4): unpack(8+2*k, 9+2*k, 248+k)
e('v_pk_add_f32 v[8:9], v[8:9], v[10:11]'); e('v_pk_add_f32 v[12:13], v[12:13], v[14:15]'); e('v_pk_add_f32 v[8:9], v[8:9], v[12:13]')
e('v_cvt_pk_bf16_f32 v28, v8, v9')
e('v_perm_b32 v30, v28, v28, %s' % SEL_LO); e('v_perm_b32 v31, v28, v28, %s' % SEL_HI)
e('ds_write_b64 v25, v[30:31]')
e('s_waitcnt lgkmcnt(0)')
for k in range(8): e('ds_read_b128 v[%d:%d], v26 offset:%d' % (XR+4*k, XR+4*k+3, 16*k))
e('s_waitcnt lgkmcnt(6)')
gemv(32, 'A', XR, wait=lambda i: e('s_waitcnt lgkmcnt(%d)' % max(0, 6-(i+2)//4)) if (i % 4 == 2 and i < 28) else None)
e('s_mov_b64 s[14:15], exec'); e('s_mov_b64 exec, s[12:13]')
e('ds_write_b128 v24, v[%d:%d]' % (ACC, ACC+3))
e('s_mov_b64 exec, s[14:15]')
barrier()
l = lab(); exec_lt(64, l)
for s_ in range(4): e('ds_read_b64 v[%d:%d], v23 offset:%d' % (XR+2*s_, XR+2*s_+1, 512*s_))
e('v_mov_b32 v29, %s' % sN)
e('s_waitcnt lgkmcnt(0)')
e('v_pk_add_f32 v[%d:%d], v[%d:%d], v[%d:%d]' % (XR, XR+1, XR, XR+1, XR+2, XR+3)); e('v_pk_add_f32 v[%d:%d], v[%d:%d], v[%d:%d]' % (XR+4, XR+5, XR+4, XR+5, XR+6, XR+7))
e('v_pk_add_f32 v[%d:%d], v[%d:%d], v[%d:%d]' % (XR, XR+1, XR, XR+1, XR+4, XR+5))
e('v_cvt_pk_bf16_f32 v28, v%d, v%d' % (XR, XR+1))
e('buffer_store_dwordx2 v[28:29], v27, %s, s10 offen sc1' % WS)
exec_restore(l)
stamp(12)
e('s_branch L_FIN')

e('L_MLP:')
e('s_sub_u32 s5, s3, 40')
srd(SB, 16, 1280)
lm = lab(); exec_lt(160, lm)
e('v_lshlrev_b32 v21, 3, v0'); e('buffer_load_dwordx2 v[224:225], v21, %s, 0 offen' % SB)
e('v_lshlrev_b32 v21, 4, v0')
lds_ = []
for q in range(4):
    lds_.append('s_mov_b32 s12, %d' % (WS_MOD + (2+q)*2560))
    lds_.append('buffer_load_dwordx4 v[%d:%d], v21, %s, s12 offen sc1' % (192+4*q, 195+4*q, WS))
poll(lds_, [193+2*k for k in range(8)], sleep=4)
for q in range(4):
    b = 192+4*q; d = 240+4*q
    unpack(d, d+1, b); unpack(d+2, d+3, b+2)
unpack(236, 237, 224); unpack(238, 239, 225)
for k in range(4): e('v_add_f32 v%d, 1.0, v%d' % (248+k, 248+k))
exec_restore(lm)
lm = lab(); exec_lt(160, lm)
e('v_lshlrev_b32 v21, 4, v0')
lds_ = []
for kg in range(8):
    lds_.append('s_mov_b32 s12, %d' % (WS_X1P + kg*4096))
    lds_.append('buffer_load_dwordx4 v[%d:%d], v21, %s, s12 offen sc1' % (192+4*kg, 195+4*kg, WS))
X1L = SCR + 16384; GBL = X1L + 4096
e('v_add_u32 v25, %d, v21' % X1L); e('ds_write_b128 v25, v[252:255] offset:4096')
ldA, ldB = lds_[:8], lds_[8:]
tgA, tgB = [193+2*k for k in range(8)], [209+2*k for k in range(8)]
for x_ in ldA + ldB: e(x_)
e('L_X1:')
e('s_waitcnt vmcnt(4)'); tagchk(tgA); e('s_cbranch_vccz L_X1B')
e('s_sub_u32 s59, s59, 1'); e('s_cbranch_scc1 L_END')
if int(ARG('xsl', 4)): e('s_sleep %d' % int(ARG('xsl', 4)))
for x_ in ldA: e(x_)
e('s_waitcnt vmcnt(4)'); tagchk(tgB); e('s_cbranch_vccz L_X1A')
if int(ARG('xsl', 4)): e('s_sleep %d' % int(ARG('xsl', 4)))
for x_ in ldB: e(x_)
e('s_branch L_X1')
e('L_X1A:')
e('s_waitcnt vmcnt(0)'); tagchk(tgA); e('s_cbranch_vccz L_X1D')
e('s_sub_u32 s59, s59, 1'); e('s_cbranch_scc1 L_END')
for x_ in ldA: e(x_)
e('s_branch L_X1A')
e('L_X1B:')
e('s_waitcnt vmcnt(0)'); tagchk(tgB); e('s_cbranch_vccz L_X1D')
e('s_sub_u32 s59, s59, 1'); e('s_cbranch_scc1 L_END')
for x_ in ldB: e(x_)
e('s_branch L_X1B')
e('L_X1D:')
stamp(10)
unpack(232, 233, 192); unpack(234, 235, 194)
for kg in range(1, 8):
    b = 192+4*kg
    unpack(224, 225, b); unpack(226, 227, b+2)
    e('v_pk_add_f32 v[232:233], v[232:233], v[224:225]'); e('v_pk_add_f32 v[234:235], v[234:235], v[226:227]')
e('v_pk_fma_f32 v[232:233], v[240:241], v[232:233], v[236:237]'); e('v_pk_fma_f32 v[234:235], v[242:243], v[234:235], v[238:239]')
e('v_pk_add_f32 v[22:23], v[232:233], v[234:235]'); e('v_pk_mul_f32 v[28:29], v[232:233], v[232:233]'); e('v_pk_fma_f32 v[28:29], v[234:235], v[234:235], v[28:29]')
e('ds_write_b128 v25, v[232:235]')
e('v_add_f32 v22, v22, v23'); e('v_add_f32 v23, v28, v29')
e('s_branch L_MS1')
e(lm + ':')
e('v_mov_b32 v22, 0'); e('v_mov_b32 v23, 0')
e('L_MS1:')
e('s_mov_b64 exec, s[14:15]')
e('v_cmp_gt_u32 vcc, 160, v0'); nop(2); e('v_cndmask_b32 v22, 0, v22, vcc'); e('v_cndmask_b32 v23, 0, v23, vcc')
for sh in (1, 2, 4, 8):
    nop(1)
    e('v_add_f32_dpp v22, v22, v22 row_shr:%d row_mask:0xf bank_mask:0xf bound_ctrl:0' % sh); e('v_add_f32_dpp v23, v23, v23 row_shr:%d row_mask:0xf bank_mask:0xf bound_ctrl:0' % sh)
nop(1); e('v_add_f32_dpp v22, v22, v22 row_bcast:15 row_mask:0xa bank_mask:0xf'); e('v_add_f32_dpp v23, v23, v23 row_bcast:15 row_mask:0xa bank_mask:0xf')
nop(1); e('v_add_f32_dpp v22, v22, v22 row_bcast:31 row_mask:0xc bank_mask:0xf'); e('v_add_f32_dpp v23, v23, v23 row_bcast:31 row_mask:0xc bank_mask:0xf')
ST = SCR + 3072
e('s_lshl_b32 s10, s4, 3'); e('s_add_u32 s10, s10, %d' % ST); e('v_mov_b32 v20, s10')
e('s_mov_b64 s[14:15], exec'); e('s_mov_b32 exec_lo, 0'); e('s_mov_b32 exec_hi, 0x80000000')
e('ds_write_b64 v20, v[22:23]')
e('s_mov_b64 exec, s[14:15]')
barrier()
e('v_mov_b32 v20, %d' % ST); e('ds_read_b128 v[24:27], v20'); e('ds_read_b128 v[28:31], v20 offset:16')
e('v_lshlrev_b32 v21, 4, v0'); e('v_add_u32 v21, %d, v21' % XX)
e('s_waitcnt lgkmcnt(0)')
e('v_pk_add_f32 v[24:25], v[24:25], v[26:27]'); e('v_pk_add_f32 v[28:29], v[28:29], v[30:31]'); e('v_pk_add_f32 v[22:23], v[24:25], v[28:29]')
e('v_mul_f32 v22, %s, v22' % hex(f2u(1/640.))); e('v_mul_f32 v23, %s, v23' % hex(f2u(1/640.)))
e('v_fma_f32 v23, -v22, v22, v23'); e('v_max_f32 v23, 0, v23'); e('v_add_f32 v23, %s, v23' % hex(f2u(1e-5))); e('v_rsq_f32 v24, v23'); e('v_mov_b32 v23, v22')
lm = lab(); exec_lt(160, lm)
e('v_mov_b32 v25, v24')
for k in (0, 2):
    e('v_pk_add_f32 v[%d:%d], v[%d:%d], v[22:23] neg_lo:[0,1] neg_hi:[0,1]' % (224+k, 225+k, 232+k, 233+k))
    e('v_pk_mul_f32 v[%d:%d], v[%d:%d], v[%d:%d]' % (228+k, 229+k, 248+k, 249+k, 24, 25))
    e('v_pk_fma_f32 v[%d:%d], v[%d:%d], v[%d:%d], v[%d:%d]' % (224+k, 225+k, 224+k, 225+k, 228+k, 229+k, 244+k, 245+k))
e('v_cvt_pk_bf16_f32 v26, v224, v225'); e('v_cvt_pk_bf16_f32 v27, v226, v227')
e('v_perm_b32 v28, v26, v26, %s' % SEL_LO); e('v_perm_b32 v29, v26, v26, %s' % SEL_HI)
e('v_perm_b32 v30, v27, v27, %s' % SEL_LO); e('v_perm_b32 v31, v27, v27, %s' % SEL_HI)
e('ds_write_b128 v21, v[28:31]')
exec_restore(lm)
e('v_lshrrev_b32 v20, 3, v2'); e('v_lshl_add_u32 v22, v20, 2, v3'); e('v_mul_u32_u24 v22, 80, v22')
e('s_mul_i32 s8, s4, 640'); e('s_add_u32 s8, s8, %d' % XX); e('v_add_u32 v21, s8, v22')
e('v_lshrrev_b32 v22, 1, v3'); e('v_cmp_eq_u32 s[12:13], v20, v22')
e('s_lshl_b32 s8, s4, 1'); e('v_add_u32 v20, s8, v20'); e('v_lshlrev_b32 v20, 8, v20')
e('v_and_b32 v22, 7, v2'); e('v_lshlrev_b32 v22, 5, v22'); e('v_and_b32 v23, 1, v3'); e('v_lshlrev_b32 v23, 4, v23')
e('v_add3_u32 v20, v20, v22, v23'); e('v_add_u32 v20, %d, v20' % RED)
barrier()
for i in range(0, 20, 4): e('ds_read_b128 v[%d:%d], v21 offset:%d' % (XR+i, XR+i+3, 4*i))
e('s_waitcnt vmcnt(0) lgkmcnt(3)')
gemv(20, 'A', XR, wait=lambda i: e('s_waitcnt lgkmcnt(%d)' % max(0, 3-(i+2)//4)) if (i % 4 == 2 and i < 16) else None)
e('s_mov_b64 s[14:15], exec'); e('s_mov_b64 exec, s[12:13]')
e('ds_write_b128 v20, v[%d:%d]' % (ACC, ACC+3))
e('s_mov_b64 exec, s[14:15]')
XX3 = SCR + 3584
e('v_lshlrev_b32 v20, 2, v0'); e('v_add_u32 v21, %d, v20' % RED); e('v_add_u32 v20, %d, v20' % XX3)
barrier()
l = lab(); exec_lt(64, l)
for s_ in range(8): e('ds_read_b32 v%d, v21 offset:%d' % (XR+s_, 256*s_))
e('s_waitcnt lgkmcnt(0)')
e('v_pk_add_f32 v[%d:%d], v[%d:%d], v[%d:%d]' % (XR, XR+1, XR, XR+1, XR+4, XR+5)); e('v_pk_add_f32 v[%d:%d], v[%d:%d], v[%d:%d]' % (XR+2, XR+3, XR+2, XR+3, XR+6, XR+7))
e('v_pk_add_f32 v[%d:%d], v[%d:%d], v[%d:%d]' % (XR, XR+1, XR, XR+1, XR+2, XR+3)); e('v_add_f32 v22, v%d, v%d' % (XR, XR+1))
e('v_max_f32 v22, 0, v22'); e('v_cvt_pk_bf16_f32 v22, v22, v22')
e('ds_write_b32 v20, v22')
exec_restore(l)
barrier()
stamp(11)
e('v_lshlrev_b32 v20, 4, v3'); e('s_lshl_b32 s8, s4, 6'); e('s_add_u32 s8, s8, %d' % XX3); e('v_add_u32 v20, s8, v20')
e('ds_read_b128 v[%d:%d], v20' % (XR, XR+3))
e('s_waitcnt lgkmcnt(0)')
AF = 208
for i in range(4):
    for d in range(4): e('v_and_b32 v%d, v%d, v%d' % (AF+4*i+d, XR+i, MK[d]))
nop(2)
AC2 = 224
for i in range(4):
    for cg in range(5):
        a = AC2+4*cg
        e('v_mfma_f32_16x16x32_bf16 v[%d:%d], v[%d:%d], %s, %s' % (a, a+3, AF+4*i, AF+4*i+3, aq(20+5*i+cg), '0' if i == 0 else 'v[%d:%d]' % (a, a+3)))
nop(8)
e('v_and_b32 v22, 1, v3'); e('v_lshlrev_b32 v22, 4, v22'); e('v_lshl_add_u32 v22, v2, 5, v22')
e('s_mul_i32 s8, s4, 2560'); e('s_add_u32 s8, s8, %d' % RED); e('v_add_u32 v20, s8, v22')
e('v_cmp_gt_u32 vcc, 2, v3'); e('s_and_saveexec_b64 s[14:15], vcc')
for cg in range(5): e('ds_write_b128 v20, v[%d:%d] offset:%d' % (AC2+4*cg, AC2+4*cg+3, 512*cg))
e('s_mov_b64 exec, s[14:15]')
barrier()
l = lab(); exec_lt(160, l)
e('v_lshlrev_b32 v21, 4, v0'); e('v_add_u32 v20, %d, v21' % RED)
for s in range(4): e('ds_read_b128 v[%d:%d], v20 offset:%d' % (XR+4*s, XR+4*s+3, 2560*s))
e('s_waitcnt lgkmcnt(0)')
for s in range(1, 4):
    for k in range(4): e('v_add_f32 v%d, v%d, v%d' % (XR+k, XR+k, XR+4*s+k))
e('v_mov_b32 v208, v192'); e('v_mov_b32 v209, %s' % sN); e('v_mov_b32 v210, v193'); e('v_mov_b32 v211, %s' % sN)
e('v_mov_b32 v212, v194'); e('v_mov_b32 v213, %s' % sN); e('v_mov_b32 v214, v195'); e('v_mov_b32 v215, %s' % sN)
e('v_lshlrev_b32 v20, 5, v0'); e('s_lshl_b32 s8, s5, 13'); e('s_add_u32 s8, s8, %d' % WS_MLP)
e('buffer_store_dwordx4 v[208:211], v20, %s, s8 offen sc1' % WS); e('buffer_store_dwordx4 v[212:215], v20, %s, s8 offen offset:16 sc1' % WS)
exec_restore(l)
stamp(12)
e('s_cmp_ge_u32 s5, 20'); e('s_cbranch_scc1 L_FIN')
e('v_and_b32 v20, 31, v0'); e('v_lshrrev_b32 v21, 5, v0')
e('v_lshlrev_b32 v22, 13, v21'); e('v_lshl_add_u32 v22, v20, 3, v22')
e('s_lshl_b32 s8, s5, 8'); e('s_add_u32 s8, s8, %d' % WS_MLP)
e('v_cmp_gt_u32 vcc, 3, v21'); e('v_add_u32 v23, %d, v22' % (24*8192)); nop(1); e('v_cndmask_b32 v23, v22, v23, vcc')
e('s_add_u32 s9, s8, %d' % (8*8192)); e('s_add_u32 s10, s8, %d' % (16*8192))
e('s_mov_b64 s[12:13], vcc')
st = lambda k: 216 + 8*k
pollp(3, lambda k: ['buffer_load_dwordx2 v[%d:%d], v%d, %s, %s offen sc1' % (st(k)+2*j, st(k)+2*j+1, a_, WS, so) for j, (a_, so) in enumerate([(22, 's8'), (22, 's9'), (22, 's10'), (23, 's8')])],
      lambda k: [st(k)+1+2*j for j in range(4)], lambda k: [st(k)+2*j for j in range(4)] if k < 3 else [192, 194, 196, 198], sleep=int(ARG('fsl',0)))
stamp(13)
e('v_cndmask_b32 v198, 0, v198, s[12:13]')
e('v_add_f32 v192, v192, v194'); e('v_add_f32 v196, v196, v198'); e('v_add_f32 v192, v192, v196')
FR = SCR + 24576
e('v_lshlrev_b32 v22, 2, v0'); e('v_add_u32 v22, %d, v22' % FR); e('ds_write_b32 v22, v192')
barrier()
l = lab(); exec_lt(16, l)
e('v_lshlrev_b32 v20, 3, v0'); e('v_add_u32 v22, %d, v20' % FR)
for p in range(8): e('ds_read_b64 v[%d:%d], v22 offset:%d' % (192+2*p, 193+2*p, 128*p))
e('s_lshl_b32 s8, s5, 7'); e('s_add_u32 s8, s8, %d' % X1L); e('v_add_u32 v23, s8, v20')
e('ds_read_b64 v[208:209], v23'); e('ds_read_b64 v[210:211], v23 offset:4096')
e('s_waitcnt lgkmcnt(0)')
for p in range(1, 8): e('v_add_f32 v192, v192, v%d' % (192+2*p)); e('v_add_f32 v193, v193, v%d' % (193+2*p))
e('v_fma_f32 v192, v210, v192, v208'); e('v_fma_f32 v193, v211, v193, v209')
e('v_cvt_pk_bf16_f32 v192, v192, v193')
srd(SA, 38, 1280)
e('v_lshlrev_b32 v20, 2, v0'); e('s_lshl_b32 s8, s5, 6')
e('buffer_store_dword v192, v20, %s, s8 offen' % SA)
exec_restore(l)
e('s_cmp_lg_u32 s3, 40'); e('s_cbranch_scc1 L_FIN')
l = lab(); exec_lt(1, l)
e('v_mov_b32 v20, 0'); e('v_mov_b32 v22, s97'); e('buffer_store_dword v22, v20, %s, 0 offen sc1' % WS)
exec_restore(l)
e('L_FIN:')
if STAMPS and '--dbg' in sys.argv:
    stamp(14)
    e('s_load_dwordx2 s[8:9], s[0:1], 96')
    e('s_waitcnt lgkmcnt(0)')
    e('s_mov_b32 s10, 256'); e('s_mov_b32 s11, 0x20000')
    e('s_cmp_lg_u32 s3, 40'); e('s_cbranch_scc1 L_END')
    l = lab(); exec_lt(1, l)
    for k in range(15):
        e('v_mov_b32 v24, s%d' % (60+2*k)); e('v_mov_b32 v20, %d' % (4*k)); e('buffer_store_dword v24, v20, s[8:11], 0 offen'); nop(2)
    exec_restore(l)
elif STAMPS:
    stamp(14)
    e('s_waitcnt lgkmcnt(0)')
    l = lab(); exec_lt(1, l)
    e('s_lshl_b32 s8, s3, 6'); e('s_add_u32 s8, s8, %d' % WS_STAMP); e('v_mov_b32 v20, 0')
    for k in range(0, 16, 4):
        for j in range(4): e('v_mov_b32 v%d, s%d' % (24+j, 60+2*(k+j)))
        e('buffer_store_dwordx4 v[24:27], v20, %s, s8 offen offset:%d' % (WS, 4*k)); nop(2)
    exec_restore(l)
e('L_END:')
e('s_endpgm')
L.append('.section .rodata,"a"')
L.append('.p2align 6')
L.append('.amdhsa_kernel %s_kernel' % NAME)
for k, v in [('next_free_vgpr', 512), ('next_free_sgpr', 102), ('accum_offset', 256), ('group_segment_fixed_size', 0), ('kernarg_size', 112),
             ('user_sgpr_count', 2), ('user_sgpr_kernarg_segment_ptr', 1), ('system_sgpr_workgroup_id_x', 1)]:
    L.append('  .amdhsa_%s %d' % (k, v))
L.append('.end_amdhsa_kernel')
txt = '\n'.join(L) + '\n'
import subprocess, re
tmp = txt.replace('NSLICE', '0')
open('_sz.s', 'w').write(tmp)
subprocess.run(['clang', '-x', 'assembler', '-target', 'amdgcn-amd-amdhsa', '-mcpu=gfx950', '-c', '_sz.s', '-o', '_sz.o'], check=True)
dis = subprocess.run(['llvm-objdump', '-d', '--mcpu=gfx950', '_sz.o'], capture_output=True, text=True).stdout
end = int(re.findall(r's_endpgm\s+// ([0-9A-F]+):', dis)[-1], 16)
m = re.findall(r's_getpc_b64.*// ([0-9A-F]+):', dis)
pc = int(m[0], 16) + 4 if m else 0
nsl = (end - pc) // 1024 - 1
print('code bytes', end, 'slices', nsl)
txt = txt.replace('NSLICE', str(nsl))
open(OUT, 'w').write(txt)
print('wrote', OUT, len(L), 'lines')
```
